```python
import torch

def _softmax(x, axis=-1):
    return torch.softmax(x, dim=axis)
def _gelu(x):
    return torch.nn.functional.gelu(x, approximate="tanh")
def _silu(x):
    return torch.nn.functional.silu(x)
def _sigmoid(x):
    return torch.sigmoid(x)
def _layernorm(x, axis=-1, eps=1e-5):
    m = x.mean(dim=axis, keepdim=True)
    v = x.var(dim=axis, keepdim=True, unbiased=False)
    return (x - m) / torch.sqrt(v + eps)
def _scatter_add(tgt, idx, src, axis=0):
    return tgt.clone().index_add_(axis, idx, src)
def _segment_sum(src, seg, n):
    out = torch.zeros((n,) + src.shape[1:], dtype=src.dtype)
    return out.index_add_(0, seg, src)
def _pad(x, pw):
    flat = tuple(v for pair in reversed(pw) for v in pair)
    return torch.nn.functional.pad(x, flat)

kernel_name = 'concat_heads__linear_attn_block__ssm_conv_h3__prompt'

def setup_inputs():

    _w = (lambda a: (lambda t: t.to(torch.bfloat16) if t.is_floating_point() else t)(torch.as_tensor(a)))
    def _A_setup():
        B, S, D = 1, 2048, 576
        return {
            "x": _w((lambda *s: torch.randn(*s, dtype=torch.bfloat16) * 0.05)(B, S, D)),
            "wqkv": _w((lambda *s: torch.randn(*s, dtype=torch.bfloat16) * 0.8)(D, 3 * D)),
            "wo": _w((lambda *s: torch.randn(*s, dtype=torch.bfloat16) * 0.05)(D, D)),
        }
    _A_in = _A_setup()

    def _B_setup():
        B, S, D = 1, 2048, 576
        ks = 4
        return {
            "q": _w((lambda *s: torch.randn(*s, dtype=torch.bfloat16) * 0.05)(B, S, D)),
            "k": _w((lambda *s: torch.randn(*s, dtype=torch.bfloat16) * 0.4)(B, S, D)),
            "v": _w((lambda *s: torch.randn(*s, dtype=torch.bfloat16) * 0.4)(B, S, D)),
            "shift_k": _w((lambda *s: torch.randn(*s, dtype=torch.bfloat16) * 0.4)(D, ks) * 0.5),
            "ssm_k": _w((lambda *s: torch.randn(*s, dtype=torch.bfloat16) * 1.6)(D, S) * (1.0 / S ** 0.5)),
            "ssm_D": _w((lambda *s: torch.randn(*s, dtype=torch.bfloat16) * 0.4)(D)),
        }
    _B_in = _B_setup()

    return {
        "A_x": _A_in["x"],
        "A_wqkv": _A_in["wqkv"],
        "A_wo": _A_in["wo"],
        "B_q": _B_in["q"],
        "B_k": _B_in["k"],
        "B_v": _B_in["v"],
        "B_shift_k": _B_in["shift_k"],
        "B_ssm_k": _B_in["ssm_k"],
        "B_ssm_D": _B_in["ssm_D"],
    }

def reference(A_x, A_wqkv, A_wo, B_q, B_k, B_v, B_shift_k, B_ssm_k, B_ssm_D):
    def _A_ref(x, wqkv, wo):
        B, S, D = x.shape
        H = 32; Dh = D // H
        qkv = (lambda x, *d: x.permute(*d))((x @ wqkv).reshape(B, S, 3, H, Dh), 2, 0, 3, 1, 4)
        q, k, v = qkv[0], qkv[1], qkv[2]
        phi = lambda t: torch.where(t > 0, t + 1, torch.exp(t)) + 1e-6
        pq, pk = phi(q), phi(k)
        kv = torch.einsum("bhsd,bhse->bhde", pk, v)
        z = torch.einsum("bhsd->bhd", pk)
        num = torch.einsum("bhqd,bhde->bhqe", pq, kv)
        den = torch.einsum("bhqd,bhd->bhq", pq, z)[..., None] + 1e-6
        o = num / den
        return (lambda x, *d: x.permute(*d))(o, 0, 2, 1, 3).reshape(B, S, D) @ wo

    def _B_ref(q, k, v, shift_k, ssm_k, ssm_D):
        B, S, D = q.shape
        ks = shift_k.shape[-1]
        k_pad = _pad(k, ((0, 0), (ks - 1, 0), (0, 0)))
        k_shift = torch.zeros_like(k)
        for t in range(ks):
            k_shift = k_shift + k_pad[:, t:t + S, :] * shift_k[:, ks - 1 - t][None, None, :]
        kv = k_shift * v
        L = 2 * S
        kv_pad = _pad(kv, ((0, 0), (0, S), (0, 0)))
        kf_pad = _pad(ssm_k, ((0, 0), (0, S)))
        kv_f = (lambda x, axes=(-2,-1): torch.fft.rfft2(x.float(), dim=axes))(kv_pad[:, None, :, :], axes=(1, 2))
        kf_f = (lambda x, axes=(-2,-1): torch.fft.rfft2(x.float(), dim=axes))(kf_pad[:, None, :], axes=(1, 2))
        kf_f = (lambda x, *d: x.permute(*d))(kf_f, 1, 2, 0)
        y_f = kv_f * kf_f[None, :, :, :]
        y = (lambda x, s, axes=(-2,-1): torch.fft.irfft2(x, s=s, dim=axes).to(torch.bfloat16))(y_f, (1, L), axes=(1, 2))[:, 0, :S, :]
        y = y + kv * ssm_D[None, None, :]
        return q * y

    a = _A_ref(A_x, A_wqkv, A_wo)
    b = _B_ref(B_q, B_k, B_v, B_shift_k, B_ssm_k, B_ssm_D)
    return torch.concatenate([a, b], axis=-1)
```

```python
class A:
    def __init__(self):
        self.L = []
        self.uid = 0
    def __call__(self, s=""):
        for l in s.strip("\n").split("\n"):
            self.L.append("    " + l.strip() if not l.strip().endswith(":") else l.strip())
    def c(self, s):
        self.L.append("    ; " + s)
    def label(self, n):
        self.L.append(n + ":")
    def newlabel(self, base):
        self.uid += 1
        return f"L_{base}_{self.uid}"
    def raw(self, s):
        self.L.append(s)
    def text(self):
        return "\n".join(self.L) + "\n"

def vr(b, n=1):
    return f"v{b}" if n == 1 else f"v[{b}:{b+n-1}]"
def ar(b, n=1):
    return f"a{b}" if n == 1 else f"a[{b}:{b+n-1}]"
def sr(b, n=1):
    return f"s{b}" if n == 1 else f"s[{b}:{b+n-1}]"

def srd(a, s, base_lo, base_hi, nbytes):
    a(f"s_mov_b32 s{s}, s{base_lo}")
    a(f"s_and_b32 s{s+1}, s{base_hi}, 0xffff")
    a(f"s_mov_b32 s{s+2}, {nbytes}")
    a(f"s_mov_b32 s{s+3}, 0x20000")
```

```python
from asmlib import *

WS_UT  = 0x000000
WS_QT  = 0x240000
WS_PQ  = 0x480000
WS_KVS = 0x6C0000
KVS_BYTES = 32*18*20*4
WS_FLAG = 0x6D0000
WS_STAMP = 0x800000
WS_SRD_BYTES = 0x800000

LOG2E = 0x3fb8aa3b
EPS = 0x358637bd
ONE_EPS = 0x3f800008

S_X, S_W, S_WO, S_Q, S_K, S_V, S_SH, S_H = 40, 42, 44, 46, 48, 50, 52, 54
S_D, S_OUT, S_DBG, S_WS = 56, 58, 60, 62

N_KV, N_Q, N_B = 128, 48, 72
ID_Q, ID_B, ID_Z = 128, 176, 248

def stamp(a, idx, on):
    if not on: return
    a("s_memrealtime s[96:97]")
    a("s_waitcnt lgkmcnt(0)")
    a("v_mov_b32 v250, s96")
    a("v_mov_b32 v251, s97")
    a("s_lshl_b32 s98, s2, 7")
    a(f"s_add_u32 s98, s98, {WS_STAMP + idx*8}")
    a("v_mov_b32 v252, s98")
    a("s_mov_b64 s[96:97], exec")
    a("s_mov_b64 exec, 1")
    a(f"global_store_dwordx2 v252, v[250:251], s[{S_WS}:{S_WS+1}]")
    a("s_mov_b64 exec, s[96:97]")

def entry(a, name, nwg):
    a.raw(f".globl {name}")
    a.raw(".p2align 8")
    a.raw(f".type {name},@function")
    a.label(name)
    a(f"s_cmp_ge_u32 s2, {nwg}")
    a(f"s_cbranch_scc1 L_{name}_exit")
    a("s_load_dwordx16 s[40:55], s[0:1], 0")
    a("s_load_dwordx8 s[56:63], s[0:1], 64")
    a("v_lshrrev_b32 v1, 6, v0")
    a("s_nop 0")
    a("v_readfirstlane_b32 s3, v1")
    a("v_and_b32 v1, 63, v0")
    a("s_waitcnt lgkmcnt(0)")

def phi4(a, r, t, consts):
    cl, c1, ce = consts
    a(f"v_pk_mul_f32 v[{t}:{t+1}], v[{r}:{r+1}], v[{cl}:{cl+1}]")
    a(f"v_pk_mul_f32 v[{t+2}:{t+3}], v[{r+2}:{r+3}], v[{cl}:{cl+1}]")
    for i in range(4): a(f"v_exp_f32_e64 v{t+i}, v{t+i} clamp")
    a(f"v_pk_add_f32 v[{r}:{r+1}], v[{r}:{r+1}], v[{c1}:{c1+1}]")
    a(f"v_pk_add_f32 v[{r+2}:{r+3}], v[{r+2}:{r+3}], v[{c1}:{c1+1}]")
    a(f"v_pk_add_f32 v[{t}:{t+1}], v[{t}:{t+1}], v[{ce}:{ce+1}]")
    a(f"v_pk_add_f32 v[{t+2}:{t+3}], v[{t+2}:{t+3}], v[{ce}:{ce+1}]")
    for i in range(4): a(f"v_max_f32 v{r+i}, v{r+i}, v{t+i}")

def load_phi_consts(a, base):
    for i, c in enumerate((LOG2E, LOG2E, ONE_EPS, ONE_EPS, EPS, EPS)):
        a(f"v_mov_b32 v{base+i}, {hex(c)}")
    return (base, base+2, base+4)
```

```python
from common import *

CV_HE, CV_HO, CV_U = 0, 4160, 8320
CV_WAVE = 13056
CV_Y = 8*CV_WAVE
CV_LDS = CV_Y + 8*4096

def conv_role(a, sc, diag, wait_inputs):
    a.c("==== conv: long causal convolution via Toeplitz MFMA ====")
    a("s_and_b32 s21, s20, 7")
    a("s_mul_i32 s21, s21, 9")
    a("s_lshr_b32 s22, s20, 3")
    a("s_add_u32 s21, s21, s22")
    a("s_lshl_b32 s22, s21, 3")
    a("s_add_u32 s22, s22, s3")
    a(f"s_mul_i32 s23, s3, {CV_WAVE}")
    srd(a, 12, S_WS, S_WS+1, WS_SRD_BYTES)
    srd(a, 16, S_H, S_H+1, 576*4096)
    a("s_lshl_b32 s24, s22, 12")
    a("v_lshlrev_b32 v2, 4, v1")
    H = 64
    for j in range(4):
        a(f"buffer_load_dwordx4 v[{H+8*j}:{H+8*j+3}], v2, s[16:19], s24 offen offset:{1024*j}")
        a(f"buffer_load_dword v{H+8*j+4}, v2, s[16:19], s24 offen offset:{1024*j+16}")
    a("s_lshr_b32 s25, s22, 1")
    a("s_lshl_b32 s25, s25, 2")
    a(f"s_load_dword s26, s[{S_D}:{S_D+1}], s25")
    a("v_mov_b32 v4, 0"); a("v_mov_b32 v5, 0"); a("v_mov_b32 v6, 0"); a("v_mov_b32 v7, 0")
    a("v_add_u32 v3, s23, v2")
    a("s_mov_b32 exec_lo, -1"); a("s_mov_b32 exec_hi, 0")
    a(f"ds_write_b128 v3, v[4:7] offset:{CV_U+4096}")
    a("s_mov_b64 exec, 3")
    a(f"ds_write_b128 v3, v[4:7] offset:{CV_HE}")
    a(f"ds_write_b128 v3, v[4:7] offset:{CV_HO}")
    a("s_mov_b64 exec, -1")
    a("v_and_b32 v8, 15, v1")
    a("v_lshrrev_b32 v9, 4, v1")
    a("v_lshrrev_b32 v10, 1, v9")
    a("v_and_b32 v11, 1, v9")
    a("v_lshlrev_b32 v12, 4, v10")
    a("v_lshl_add_u32 v12, v11, 3, v12")
    a("v_add_u32 v12, v12, v8")
    a("v_and_b32 v13, 1, v8")
    a("v_add_u32 v12, v12, v13")
    a("v_lshlrev_b32 v12, 1, v12")
    a("v_cmp_eq_u32 vcc, 0, v13")
    a(f"v_mov_b32 v14, {CV_HO}")
    a("v_add_u32 v12, s23, v12")
    a("v_cndmask_b32 v14, 0, v14, vcc")
    a("v_add_u32 v16, v12, v14")
    for t in range(1, 4): a(f"v_add_u32 v{16+t}, {1024*t}, v16")
    a("v_sub_u32 v20, v10, v8")
    a("v_lshlrev_b32 v20, 5, v20")
    a("v_lshl_add_u32 v20, v11, 4, v20")
    a(f"v_add_u32 v20, {CV_U + 32*127 - 3584}, v20")
    a("v_add_u32 v20, s23, v20")
    a("s_waitcnt vmcnt(0)")
    for j in range(4):
        h = H + 8*j
        a(f"ds_write_b128 v3, v[{h}:{h+3}] offset:{CV_HE + 32 + 1024*j}")
        t = 96 + 4*(j & 1)
        for i in range(4): a(f"v_alignbit_b32 v{t+i}, v{h+i+1}, v{h+i}, 16")
        a(f"ds_write_b128 v3, v[{t}:{t+3}] offset:{CV_HO + 32 + 1024*j}")
    a(f"v_lshlrev_b32 v4, 16, v{H}")
    a("s_mov_b64 exec, 1")
    a(f"ds_write_b32 v3, v4 offset:{CV_HO + 28}")
    a("s_mov_b64 exec, -1")
    AD = 24
    a("s_waitcnt lgkmcnt(0)")
    a("s_and_b32 s25, s22, 1")
    a("s_lshl_b32 s25, s25, 4")
    a("s_lshr_b32 s26, s26, s25")
    a("s_and_b32 s26, s26, 0xffff")
    a("v_sub_u32 v4, 15, v8")
    a("v_lshrrev_b32 v5, 3, v4")
    a("v_and_b32 v4, 7, v4")
    a("v_and_b32 v6, 1, v4")
    a("v_lshlrev_b32 v6, 4, v6")
    a("v_mov_b32 v7, s26")
    a("v_lshlrev_b32 v7, v6, v7")
    a("v_lshrrev_b32 v4, 1, v4")
    a("v_cmp_eq_u32 vcc, v5, v9")
    a("s_nop 1")
    a("v_cndmask_b32 v7, 0, v7, vcc")
    for j in range(4):
        a(f"v_cmp_eq_u32 vcc, {j}, v4")
        a("s_nop 1")
        a(f"v_cndmask_b32 v{AD+j}, 0, v7, vcc")
    wait_inputs()
    UU = 64
    for j in range(4):
        a(f"buffer_load_dwordx4 v[{UU+4*j}:{UU+4*j+3}], v2, s[12:15], s24 offen offset:{1024*j}{sc}")
    QQ = 224
    a("v_lshlrev_b32 v4, 5, v8")
    a("v_lshl_add_u32 v4, v9, 3, v4")
    a(f"s_add_u32 s27, s24, {WS_QT}")
    for t in range(8):
        a(f"buffer_load_dwordx2 v[{QQ+2*t}:{QQ+2*t+1}], v4, s[12:15], s27 offen offset:{512*t}{sc}")
    a("s_waitcnt vmcnt(8)")
    for j in range(4):
        a(f"ds_write_b128 v3, v[{UU+4*j}:{UU+4*j+3}] offset:{CV_U + 1024*j}")
    a("s_waitcnt lgkmcnt(0)")
    stamp(a, 5, diag)
    ACCV = 32
    SA = [64, 128]; SB = [96, 160]
    def reads(s):
        out = []
        for j in range(8):
            b = 16 + (j >> 1); o = 128*(j & 1); r = SA[s] + 4*j
            out.append(f"ds_read2_b32 v[{r}:{r+1}], v{b} offset0:{o} offset1:{o+1}")
            out.append(f"ds_read2_b32 v[{r+2}:{r+3}], v{b} offset0:{o+2} offset1:{o+3}")
        B = [f"ds_read_b128 v[{SB[s]+4*i}:{SB[s]+4*i+3}], v20 offset:{512*(7-i)}" for i in range(8)]
        seq = []
        for k in range(8):
            seq += [B[k], out[2*k], out[2*k+1]]
        return seq
    def adv():
        for t in range(4): a(f"v_add_u32 v{16+t}, 64, v{16+t}")
        a("v_add_u32 v20, 64, v20")
    for r in reads(0): a(r)
    adv()
    a("s_waitcnt lgkmcnt(0)")
    for t in range(8):
        a(f"v_mfma_f32_16x16x32_bf16 v[{ACCV+4*t}:{ACCV+4*t+3}], v[{AD}:{AD+3}], v[{SB[0]+4*t}:{SB[0]+4*t+3}], 0")
    pairs = sorted([(i, j) for i in range(8) for j in range(8) if i + j <= 7], key=lambda p: (max(p), p[0]+p[1]))
    def body(s, nxt):
        rs = reads(1 - s) if nxt else []
        k = 0
        for idx, (i, j) in enumerate(pairs):
            if k < len(rs): a(rs[k]); k += 1
            t = i + j
            a(f"v_mfma_f32_16x16x32_bf16 v[{ACCV+4*t}:{ACCV+4*t+3}], v[{SA[s]+4*j}:{SA[s]+4*j+3}], v[{SB[s]+4*i}:{SB[s]+4*i+3}], v[{ACCV+4*t}:{ACCV+4*t+3}]")
        if nxt:
            adv()
            a("s_waitcnt lgkmcnt(0)")
    a("s_mov_b32 s28, 0")
    a.label("L_conv_loop")
    body(0, True)
    body(1, True)
    a("s_add_u32 s28, s28, 1")
    a("s_cmp_lt_u32 s28, 3")
    a("s_cbranch_scc1 L_conv_loop")
    body(0, True)
    body(1, False)
    stamp(a, 6, diag)
    a("s_waitcnt vmcnt(0)")
    a("v_mov_b32 v14, 0xffff0000")
    a("v_lshlrev_b32 v4, 5, v8")
    a("v_lshl_add_u32 v4, v9, 3, v4")
    a("s_lshl_b32 s25, s3, 12")
    a(f"s_add_u32 s25, s25, {CV_Y}")
    a("v_add_u32 v4, s25, v4")
    for t in range(8):
        r = ACCV + 4*t; q = QQ + 2*t; u = 64 + 4*(t & 1)
        a(f"v_lshlrev_b32 v{u}, 16, v{q}");   a(f"v_and_b32 v{u+1}, v14, v{q}")
        a(f"v_lshlrev_b32 v{u+2}, 16, v{q+1}"); a(f"v_and_b32 v{u+3}, v14, v{q+1}")
        a(f"v_pk_mul_f32 v[{r}:{r+1}], v[{r}:{r+1}], v[{u}:{u+1}]")
        a(f"v_pk_mul_f32 v[{r+2}:{r+3}], v[{r+2}:{r+3}], v[{u+2}:{u+3}]")
        a(f"v_cvt_pk_bf16_f32 v{u}, v{r}, v{r+1}")
        a(f"v_cvt_pk_bf16_f32 v{u+1}, v{r+2}, v{r+3}")
        a(f"ds_write_b64 v4, v[{u}:{u+1}] offset:{512*t}")
    a("s_waitcnt lgkmcnt(0)")
    a("s_barrier")
    a("v_lshlrev_b32 v4, 3, v0")
    a(f"v_add_u32 v4, {CV_Y}, v4")
    Y = 64
    for ch in range(8): a(f"ds_read_b64 v[{Y+2*ch}:{Y+2*ch+1}], v4 offset:{4096*ch}")
    srd(a, 16, S_OUT, S_OUT+1, 2048*2304)
    a("v_mul_u32_u24 v5, 9216, v0")
    a("s_lshl_b32 s25, s21, 4")
    a("s_add_u32 s25, s25, 1152")
    a("s_mov_b32 s36, 0x05040100")
    a("s_mov_b32 s37, 0x07060302")
    a("s_waitcnt lgkmcnt(0)")
    for row in range(4):
        d = row >> 1; sel = "s36" if (row & 1) == 0 else "s37"
        o = 96 + 4*row
        for k in range(4):
            a(f"v_perm_b32 v{o+k}, v{Y+2*(2*k+1)+d}, v{Y+2*(2*k)+d}, {sel}")
        so = "s25"
        if row == 0: a(f"buffer_store_dwordx4 v[{o}:{o+3}], v5, s[16:19], s25 offen")
        elif row == 1: a(f"buffer_store_dwordx4 v[{o}:{o+3}], v5, s[16:19], s25 offen offset:2304")
        else:
            if row == 2: a("s_add_u32 s25, s25, 4608")
            a(f"buffer_store_dwordx4 v[{o}:{o+3}], v5, s[16:19], s25 offen offset:{2304*(row-2)}")
```

```python
from common import *

class G1Cfg:
    def __init__(self, q, ns):
        self.q = q
        self.lab = "q" if q else "kv"
        self.NT = 12 if q else 9
        self.WB = 384 if q else 288
        self.CH = self.WB // 16
        self.NS = ns
        self.SLOT = 16384 + 64*self.WB
        self.NWI = self.CH

def g1_loader(a, c, diag):
    L = c.lab
    srd(a, 12, S_X, S_X+1, 2048*1152)
    srd(a, 16, S_W, S_W+1, 576*3456)
    a("v_lshrrev_b32 v2, 3, v1")
    a("v_and_b32 v3, 7, v1")
    a("v_xor_b32 v3, v3, v2")
    a("v_lshlrev_b32 v3, 4, v3")
    a("v_mul_u32_u24 v2, 1152, v2")
    a("v_add_u32 v2, v2, v3")
    a("s_lshl_b32 s26, s22, 7")
    a("s_lshl_b32 s27, s25, 3")
    a("s_add_u32 s26, s26, s27")
    a("s_mul_i32 s26, s26, 1152")
    a("s_lshl_b32 s29, s25, 10")
    def issue_x():
        for mm in range(4):
            a(f"s_add_u32 m0, s29, {mm*4096}")
            a(f"s_add_u32 s31, s26, {mm*36864}")
            a("buffer_load_dwordx4 v2, s[12:15], s31 offen lds")
    def issue_w(n):
        for mm in range(n):
            a(f"s_add_u32 m0, s29, {16384 + mm*4096}")
            a("s_nop 0")
            a(f"buffer_load_dwordx4 v{4+mm}, s[16:19], s28 offen lds")
    def advance():
        a("s_add_u32 s26, s26, 128")
        a(f"s_add_u32 s28, s28, {64*3456}")
        a(f"s_add_u32 s29, s29, {c.SLOT}")
        a(f"s_cmp_ge_u32 s29, {c.SLOT*c.NS}")
        a(f"s_cselect_b32 s37, {c.SLOT*c.NS}, 0")
        a("s_sub_u32 s29, s29, s37")
    issue_x()
    nmm = (c.NWI + 3)//4
    a("s_lshl_b32 s30, s25, 6")
    if c.q:
        a("s_mul_i32 s34, s23, 384")
        for mm in range(nmm):
            a("v_add_u32 v12, s30, v1")
            if mm: a(f"v_add_u32 v12, {256*mm}, v12")
            a("v_mul_u32_u24 v13, 2731, v12")
            a("v_lshrrev_b32 v13, 16, v13")
            a("v_mul_u32_u24 v14, 24, v13")
            a("v_sub_u32 v12, v12, v14")
            a("v_bfe_u32 v14, v13, 1, 1")
            a("v_bfe_u32 v11, v13, 3, 1")
            a("v_lshl_or_b32 v14, v11, 1, v14")
            a("v_lshlrev_b32 v14, 1, v14")
            a("v_xor_b32 v12, v12, v14")
            a("v_mul_u32_u24 v13, 3456, v13")
            a("v_lshl_add_u32 v13, v12, 4, v13")
            a(f"v_add_u32 v{4+mm}, s34, v13")
    else:
        a("s_mul_i32 s33, s23, 144")
        a("s_add_u32 s34, s33, 1152")
        a("s_add_u32 s35, s33, 2160")
        a("v_mov_b32 v10, s34")
        a("v_mov_b32 v11, s35")
        for mm in range(nmm):
            a("v_add_u32 v12, s30, v1")
            if mm: a(f"v_add_u32 v12, {256*mm}, v12")
            a("v_mul_u32_u24 v13, 3641, v12")
            a("v_lshrrev_b32 v13, 16, v13")
            a("v_mul_u32_u24 v14, 18, v13")
            a("v_sub_u32 v12, v12, v14")
            a("v_and_b32 v14, 8, v13")
            a("v_xor_b32 v14, v14, v12")
            a("v_cmp_gt_u32 vcc, 16, v12")
            a("v_mul_u32_u24 v13, 3456, v13")
            a("s_nop 0")
            a("v_cndmask_b32 v12, v12, v14, vcc")
            a("v_cmp_gt_u32 vcc, 9, v12")
            a("v_lshl_add_u32 v13, v12, 4, v13")
            a("s_nop 0")
            a("v_cndmask_b32 v12, v11, v10, vcc")
            a(f"v_add_u32 v{4+mm}, v12, v13")
    a("s_mov_b32 s28, 0")
    variants = [(nmm, None)] if c.NWI % 4 == 0 else [(nmm, "hi"), (nmm-1, "lo")]
    for nw, tag in variants:
        if tag == "hi":
            a(f"s_cmp_lt_u32 s25, {c.NWI % 4}")
            a(f"s_cbranch_scc0 L_ld_{L}_lo")
        if tag == "lo": a.label(f"L_ld_{L}_lo")
        n = 4 + nw
        issue_w(nw)
        advance(); issue_x(); issue_w(nw)
        a(f"s_waitcnt vmcnt({n})")
        a("s_barrier")
        for _ in range(c.NS - 2):
            advance(); issue_x(); issue_w(nw)
        a(f"s_mov_b32 s36, {c.NS}")
        a.label(f"L_ld_{L}_{tag}_loop")
        a(f"s_waitcnt vmcnt({(c.NS-2)*n})")
        a("s_barrier")
        advance(); issue_x(); issue_w(nw)
        a("s_add_u32 s36, s36, 1")
        a("s_cmp_lt_u32 s36, 9")
        a(f"s_cbranch_scc1 L_ld_{L}_{tag}_loop")
        for k in range(c.NS - 1):
            a(f"s_waitcnt vmcnt({(c.NS-2-k)*n})")
            a("s_barrier")
        a(f"s_branch L_ld_{L}_done")
    a.label(f"L_ld_{L}_done")

ACC = 64
def g1_compute(a, c, diag):
    L = c.lab
    XF, WF, NW = 16, 32, 8
    a("v_and_b32 v2, 15, v1")
    a("v_lshrrev_b32 v3, 4, v1")
    a("s_lshl_b32 s24, s3, 12")
    a("v_and_b32 v4, 7, v2")
    a("v_xor_b32 v4, v4, v3")
    a("v_lshlrev_b32 v5, 7, v2")
    a("v_lshl_add_u32 v5, v4, 4, v5")
    a("v_add_u32 v6, s24, v5")
    a("v_xor_b32 v7, 64, v6")
    a("v_bfe_u32 v4, v1, 2, 2")
    a("v_lshl_add_u32 v5, v3, 3, v4")
    a(f"v_mul_u32_u24 v5, {c.WB}, v5")
    a("v_and_b32 v8, 3, v1")
    a("v_lshl_add_u32 v5, v8, 3, v5")
    a("v_add_u32 v5, 16384, v5")
    if c.q:
        a("v_lshrrev_b32 v4, 1, v4")
        a("v_and_b32 v8, 1, v3")
        a("v_lshl_or_b32 v4, v8, 1, v4")
        for t in range(4):
            a(f"v_xor_b32 v{8+t}, {t}, v4")
            a(f"v_lshl_add_u32 v{8+t}, v{8+t}, 5, v5")
        nb = 4
    else:
        a("v_and_b32 v4, 1, v3")
        a("v_lshlrev_b32 v4, 7, v4")
        a("v_add_u32 v8, v5, v4")
        a("v_sub_u32 v9, v5, v4")
        a("v_mov_b32 v10, v5")
        nb = 3
    NACC = 2*c.NT*4
    for i in range(NACC): a(f"v_mov_b32 v{ACC+i}, 0")
    a("s_mov_b32 s24, 0")
    a("s_mov_b32 s25, 0")
    AX0, AX1, AW = 12, 13, 236
    def wread(i):
        ks, tau = divmod(i, c.NT)
        if c.q:
            b = AW + (tau & 3); off = 128*(tau >> 2)
        else:
            b = AW + (0 if tau < 4 else (1 if tau < 8 else 2)); off = 32*tau
        r = WF + (i % NW)*4
        off += 32*ks*c.WB
        a(f"ds_read_b64_tr_b16 v[{r}:{r+1}], v{b} offset:{off}")
        a(f"ds_read_b64_tr_b16 v[{r+2}:{r+3}], v{b} offset:{off + 4*c.WB}")
    a.label(f"L_g1{L}_loop")
    a("s_barrier")
    if diag:
        a("s_cmp_eq_u32 s24, 0")
        a(f"s_cbranch_scc0 L_nost_{L}")
        stamp(a, 1, diag)
        a.label(f"L_nost_{L}")
    a(f"v_add_u32 v{AX0}, s25, v6")
    a(f"v_add_u32 v{AX1}, s25, v7")
    for t in range(nb): a(f"v_add_u32 v{AW+t}, s25, v{8+t}")
    a(f"ds_read_b128 v[{XF}:{XF+3}], v{AX0}")
    wread(0)
    a(f"ds_read_b128 v[{XF+4}:{XF+7}], v{AX0} offset:2048")
    D = 5
    for i in range(1, D): wread(i)
    pend = ["x0", "w0", "w0", "x1"] + [f"w{i}" for i in range(1, D) for _ in range(2)]
    def wait_for(names):
        last = max(idx for idx, t in enumerate(pend) if t in names)
        a(f"s_waitcnt lgkmcnt({len(pend) - 1 - last})")
        del pend[:last+1]
    NST = 2*c.NT
    for i in range(NST):
        ks, tau = divmod(i, c.NT)
        if i + D < NST:
            wread(i + D); pend.extend([f"w{i+D}"]*2)
        if i == 2:
            a(f"ds_read_b128 v[{XF+8}:{XF+11}], v{AX1}"); pend.append("y0")
            a(f"ds_read_b128 v[{XF+12}:{XF+15}], v{AX1} offset:2048"); pend.append("y1")
        need = [f"w{i}"]
        if i == 0: need += ["x0"]
        if i == c.NT: need += ["y0", "y1"]
        if any(t in pend for t in need): wait_for([t for t in need if t in pend])
        w = WF + (i % NW)*4
        for st in range(2):
            if i == 0 and st == 1: wait_for(["x1"])
            x = XF + ks*8 + st*4
            acc = ACC + (st*c.NT + tau)*4
            if c.q: a(f"v_mfma_f32_16x16x32_bf16 v[{acc}:{acc+3}], v[{w}:{w+3}], v[{x}:{x+3}], v[{acc}:{acc+3}]")
            else:   a(f"v_mfma_f32_16x16x32_bf16 v[{acc}:{acc+3}], v[{x}:{x+3}], v[{w}:{w+3}], v[{acc}:{acc+3}]")
    a(f"s_add_u32 s25, s25, {c.SLOT}")
    a(f"s_cmp_ge_u32 s25, {c.SLOT*c.NS}")
    a(f"s_cselect_b32 s37, {c.SLOT*c.NS}, 0")
    a("s_sub_u32 s25, s25, s37")
    a("s_add_u32 s24, s24, 1")
    a("s_cmp_lt_u32 s24, 9")
    a(f"s_cbranch_scc1 L_g1{L}_loop")

def q_epilogue(a, c, sc, diag):
    a.c("-- Q epilogue --")
    cs = load_phi_consts(a, 16)
    T = 24
    srd(a, 12, S_WS, S_WS+1, WS_SRD_BYTES)
    a("v_and_b32 v5, 1, v3")
    a("v_lshlrev_b32 v4, 10, v5")
    a("v_lshl_add_u32 v4, v2, 4, v4")
    a("v_cmp_gt_u32 s[34:35], 2, v3")
    a("s_lshl_b32 s25, s22, 3")
    a("s_lshl_b32 s26, s3, 1")
    a("s_add_u32 s25, s25, s26")
    a("s_mul_i32 s25, s25, 18432")
    a(f"s_add_u32 s25, s25, {WS_PQ}")
    a("s_mul_i32 s27, s23, 12")
    P = 32
    grp = 0
    def tile_off(dst, tau):
        a(f"s_add_u32 s28, s27, {tau}")
        a("s_mul_i32 s29, s28, 7282")
        a("s_lshr_b32 s29, s29, 16")
        a("s_mul_i32 s30, s29, 9")
        a("s_sub_u32 s30, s28, s30")
        a("s_lshl_b32 s30, s30, 11")
        a("s_lshl_b32 s29, s29, 8")
        a(f"s_add_u32 {dst}, s29, s30")
    for tp in range(6):
        tile_off("s32", 2*tp); tile_off("s33", 2*tp+1)
        a("v_mov_b32 v6, s33")
        a("v_mov_b32 v7, s32")
        a("v_cndmask_b32 v6, v6, v7, s[34:35]")
        a("v_add_u32 v6, v6, v4")
        for st in range(2):
            p = P + 4*(grp % 4); grp += 1
            accA = ACC + (st*12 + 2*tp)*4; accB = accA + 4
            phi4(a, accA, T, cs); phi4(a, accB, T+4, cs)
            a(f"v_cvt_pk_bf16_f32 v{p}, v{accA}, v{accA+1}")
            a(f"v_cvt_pk_bf16_f32 v{p+1}, v{accA+2}, v{accA+3}")
            a(f"v_cvt_pk_bf16_f32 v{p+2}, v{accB}, v{accB+1}")
            a(f"v_cvt_pk_bf16_f32 v{p+3}, v{accB+2}, v{accB+3}")
            a(f"s_add_u32 s26, s25, {st*18432}")
            a("s_nop 0")
            a(f"v_permlane32_swap_b32 v{p}, v{p+2}")
            a(f"v_permlane32_swap_b32 v{p+1}, v{p+3}")
            a("s_nop 1")
            a(f"v_permlane16_swap_b32 v{p}, v{p+2}")
            a(f"v_permlane16_swap_b32 v{p+1}, v{p+3}")
            a("s_nop 1")
            a(f"buffer_store_dwordx4 v[{p}:{p+3}], v6, s[12:15], s26 offen{sc}")

def kv_epilogue(a, c, sc, diag):
    a.c("-- KV epilogue: phi(K), V -> LDS T[col][s]; kv/z via MFMA; atomics --")
    TS = 288
    cs = load_phi_consts(a, 16)
    T = 24
    a("v_mov_b32 v5, 0")
    a(f"global_load_dword v60, v5, s[{S_DBG}:{S_DBG+1}] sc0 sc1")
    a("s_barrier")
    a(f"v_mul_u32_u24 v4, {TS}, v2")
    a("v_lshl_add_u32 v4, v3, 3, v4")
    a("s_lshl_b32 s24, s3, 6")
    a("v_add_u32 v4, s24, v4")
    a("v_mov_b32 v6, 0x3f803f80")
    a("v_lshlrev_b32 v7, 2, v1")
    a(f"ds_write_b32 v7, v6 offset:{160*TS}")
    a("v_cmp_gt_u32 s[26:27], 8, v2")
    for tau in range(9):
        for st in range(2):
            r = ACC + (st*9 + tau)*4
            if tau < 4:
                phi4(a, r, T, cs)
            elif tau == 4:
                for i in range(4): a(f"v_mov_b32 v{T+4+i}, v{r+i}")
                phi4(a, r, T, cs)
                for i in range(4): a(f"v_cndmask_b32 v{r+i}, v{T+4+i}, v{r+i}, s[26:27]")
            p = 32 + 2*((tau*2+st) % 8)
            a(f"v_cvt_pk_bf16_f32 v{p}, v{r}, v{r+1}")
            a(f"v_cvt_pk_bf16_f32 v{p+1}, v{r+2}, v{r+3}")
            a(f"ds_write_b64 v4, v[{p}:{p+1}] offset:{16*tau*TS + st*32}")
    a("s_waitcnt lgkmcnt(0)")
    a("s_barrier")
    stamp(a, 4, diag)
    a("s_mul_i32 s24, s3, 18")
    a("v_add_u32 v4, s24, v2")
    a(f"v_mul_u32_u24 v4, {TS}, v4")
    a("v_lshl_add_u32 v4, v3, 4, v4")
    a(f"v_add_u32 v5, {72*TS}, v4")
    a(f"v_add_u32 v6, {16*TS}, v5")
    a("v_lshlrev_b32 v7, 4, v3")
    a(f"v_add_u32 v7, {160*TS}, v7")
    a("v_cmp_eq_u32 vcc, 2, v2")
    a("s_nop 1")
    a("v_cndmask_b32 v6, v6, v7, vcc")
    F = 64
    def rd(ks):
        a(f"ds_read_b128 v[{F+ks*16}:{F+ks*16+3}], v4 offset:{64*ks}")
        a(f"ds_read_b128 v[{F+ks*16+8}:{F+ks*16+11}], v5 offset:{64*ks}")
        a(f"ds_read_b128 v[{F+ks*16+4}:{F+ks*16+7}], v4 offset:{64*ks + 16*TS}")
        a(f"ds_read_b128 v[{F+ks*16+12}:{F+ks*16+15}], v6 offset:{64*ks}")
    for ks in range(3): rd(ks)
    R = 32
    for ks in range(4):
        a(f"s_waitcnt lgkmcnt({[8, 8, 4, 0][ks]})")
        for dt in range(2):
            for et in range(2):
                r = R + (dt*2+et)*4
                A_ = F + ks*16 + dt*4; B_ = F + ks*16 + 8 + et*4
                cc = f"v[{r}:{r+3}]" if ks else "0"
                a(f"v_mfma_f32_16x16x32_bf16 v[{r}:{r+3}], v[{A_}:{A_+3}], v[{B_}:{B_+3}], {cc}")
        if ks == 0: rd(3)
    srd(a, 12, S_WS, S_WS+1, WS_SRD_BYTES)
    a("s_lshl_b32 s24, s23, 2")
    a("s_add_u32 s24, s24, s3")
    a("s_mul_i32 s24, s24, 1440")
    a(f"s_add_u32 s24, s24, {WS_KVS}")
    a("v_mul_u32_u24 v4, 320, v3")
    a("v_lshl_add_u32 v4, v2, 2, v4")
    a.label("L_kv_flag")
    a("s_waitcnt vmcnt(0)")
    a("v_readfirstlane_b32 s25, v60")
    a("s_cmp_lg_u32 s25, 0")
    a("s_cbranch_scc1 L_kv_go")
    a("s_sleep 1")
    a("v_mov_b32 v5, 0")
    a(f"global_load_dword v60, v5, s[{S_DBG}:{S_DBG+1}] sc0 sc1")
    a("s_branch L_kv_flag")
    a.label("L_kv_go")
    stamp(a, 5, diag)
    a("s_nop 7")
    for i in range(4):
        a(f"buffer_atomic_add_f32 v{R+i}, v4, s[12:15], s24 offen offset:{80*i}")
    a("s_mov_b32 exec_lo, 0x00070007")
    a("s_mov_b32 exec_hi, 0x00070007")
    for i in range(4):
        a(f"buffer_atomic_add_f32 v{R+4+i}, v4, s[12:15], s24 offen offset:{80*i + 64}")
    a("s_mov_b64 exec, 0xffff")
    for i in range(2):
        a(f"buffer_atomic_add_f32 v{R+8+i}, v4, s[12:15], s24 offen offset:{80*i + 1280}")
    a("s_mov_b64 exec, 7")
    for i in range(2):
        a(f"buffer_atomic_add_f32 v{R+12+i}, v4, s[12:15], s24 offen offset:{80*i + 1280 + 64}")
    a("s_mov_b64 exec, -1")

def g1_role(a, q, ns, sc, diag, after):
    c = G1Cfg(q, ns)
    a(f"s_cmp_ge_u32 s3, 4")
    a(f"s_cbranch_scc0 L_g1{c.lab}_compute")
    a("s_sub_u32 s25, s3, 4")
    g1_loader(a, c, diag)
    after("loader")
    a.label(f"L_g1{c.lab}_compute")
    g1_compute(a, c, diag)
    stamp(a, 2, diag)
    if q: q_epilogue(a, c, sc, diag)
    else: kv_epilogue(a, c, sc, diag)
    if diag: a("s_waitcnt vmcnt(0)")
    stamp(a, 3, diag)
    after("compute")
```

```python
from common import *

G2_WO = 0
G2_KVB = 590*128
G2_ZT = G2_KVB + 590*48
G2_ZZ = G2_ZT + 32*288
G2_LDS = G2_ZZ + 288

def g2_role(a, sc, diag, wait_kv, wait_pq):
    a.c("==== G2: out = (pq/den) @ (blockdiag(kv) @ wo) ====")
    a("s_and_b32 s22, s20, 15")
    a("s_lshr_b32 s23, s20, 4")
    srd(a, 12, S_WS, S_WS+1, WS_SRD_BYTES)
    srd(a, 16, S_WO, S_WO+1, 576*1152)
    a("v_lshrrev_b32 v2, 3, v1")
    a("v_and_b32 v3, 7, v1")
    a("v_bfe_u32 v4, v1, 4, 1")
    a("v_lshlrev_b32 v4, 1, v4")
    a("v_xor_b32 v3, v3, v4")
    a("v_lshlrev_b32 v3, 4, v3")
    a("v_mul_u32_u24 v2, 1152, v2")
    a("v_add_u32 v2, v2, v3")
    a("v_xor_b32 v3, 64, v2")
    a("s_lshl_b32 s24, s23, 7")
    for i in range(9):
        a(f"s_add_u32 s25, s3, {8*i}")
        a("s_mul_i32 s26, s25, 3641")
        a("s_lshr_b32 s26, s26, 16")
        a("s_add_u32 s26, s26, s25")
        a("s_and_b32 s26, s26, 1")
        a("s_lshl_b32 m0, s25, 10")
        a("s_mul_i32 s25, s25, 9216")
        a("s_add_u32 s25, s25, s24")
        a("s_cmp_eq_u32 s26, 0")
        lab = a.newlabel("wo")
        a(f"s_cbranch_scc1 {lab}_0")
        a("buffer_load_dwordx4 v3, s[16:19], s25 offen lds")
        a(f"s_branch {lab}_1")
        a.label(f"{lab}_0")
        a("buffer_load_dwordx4 v2, s[16:19], s25 offen lds")
        a.label(f"{lab}_1")
    for i in range(4): a(f"v_mov_b32 v{4+i}, 0")
    a("v_lshlrev_b32 v8, 4, v0")
    a("v_cmp_gt_u32 vcc, 112, v0")
    a("s_and_saveexec_b64 s[26:27], vcc")
    a(f"v_add_u32 v11, {576*128}, v8")
    a("ds_write_b128 v11, v[4:7]")
    a("s_mov_b64 exec, -1")
    a(f"v_add_u32 v11, {G2_ZT}, v8")
    a("ds_write_b128 v11, v[4:7]")
    a("v_cmp_gt_u32 vcc, 82, v0")
    a("s_and_saveexec_b64 s[26:27], vcc")
    a("ds_write_b128 v11, v[4:7] offset:8192")
    a("s_mov_b64 exec, -1")
    a("v_and_b32 v9, 15, v1")
    a("v_lshrrev_b32 v10, 4, v1")
    wait_kv()
    a(f"s_mov_b32 s28, s{S_WS}"); a(f"s_and_b32 s29, s{S_WS+1}, 0xffff")
    a(f"s_mov_b32 s30, {WS_KVS + KVS_BYTES}"); a("s_mov_b32 s31, 0x20000")
    KV = 64
    for i in range(6):
        a(f"s_mov_b32 s25, {WS_KVS + i*8192}")
        a(f"buffer_load_dwordx4 v[{KV+4*i}:{KV+4*i+3}], v8, s[28:31], s25 offen{sc}")
    wait_pq()
    PQ = 128
    a("s_lshl_b32 s25, s22, 3")
    a("s_add_u32 s25, s25, s3")
    a("s_mul_i32 s25, s25, 18432")
    a(f"s_add_u32 s25, s25, {WS_PQ}")
    a("v_lshlrev_b32 v11, 4, v1")
    for ks in range(18):
        if ks in (4, 8, 12, 16): a("s_add_u32 s25, s25, 4096")
        a(f"buffer_load_dwordx4 v[{PQ+4*ks}:{PQ+4*ks+3}], v11, s[12:15], s25 offen offset:{1024*(ks % 4)}{sc}")
    a("s_waitcnt lgkmcnt(0)")
    a("s_barrier")
    for i in range(6):
        k = KV + 4*i
        a(f"v_add_u32 v12, {512*i}, v0")
        a("v_mul_u32_u24 v13, 13108, v12")
        a("v_lshrrev_b32 v13, 16, v13")
        a("v_mul_u32_u24 v14, 5, v13")
        a("v_sub_u32 v14, v12, v14")
        a("v_mul_u32_u24 v15, 48, v13")
        a("v_lshl_add_u32 v15, v14, 3, v15")
        a(f"v_add_u32 v15, {G2_KVB}, v15")
        a(f"s_waitcnt vmcnt({18+5-i})")
        a(f"v_cvt_pk_bf16_f32 v{k}, v{k}, v{k+1}")
        a(f"v_cvt_pk_bf16_f32 v{k+1}, v{k+2}, v{k+3}")
        a("v_cmp_eq_u32 vcc, 4, v14")
        if i == 5:
            a("s_movk_i32 s38, 576")
            a("v_cmp_gt_u32 s[26:27], s38, v13")
            a("s_mov_b64 exec, s[26:27]")
        a(f"v_mov_b32 v18, v{k}")
        a("s_nop 0")
        a(f"v_cndmask_b32_e64 v19, v{k+1}, 0, vcc")
        a("ds_write_b64 v15, v[18:19]")
        a("s_and_b64 exec, exec, vcc")
        a("ds_write_b64 v15, v[4:5] offset:8")
        a("v_mul_u32_u24 v16, 3641, v13")
        a("v_lshrrev_b32 v16, 16, v16")
        a("v_mul_u32_u24 v17, 18, v16")
        a("v_sub_u32 v17, v13, v17")
        a("v_and_b32 v18, 7, v16")
        a("v_mul_u32_u24 v18, 18, v18")
        a("v_add_u32 v17, v17, v18")
        a("v_mul_u32_u24 v16, 144, v16")
        a("v_add_u32 v17, v17, v16")
        a("v_lshlrev_b32 v17, 1, v17")
        a(f"v_add_u32 v17, {G2_ZT}, v17")
        a(f"ds_write_b16 v17, v{k+1}")
        a("s_mov_b64 exec, -1")
    a("s_waitcnt vmcnt(0) lgkmcnt(0)")
    a("s_barrier")
    stamp(a, 5, diag)
    a("v_lshrrev_b32 v12, 2, v9")
    a("v_and_b32 v13, 3, v9")
    a("v_lshl_add_u32 v13, v12, 3, v13")
    a("v_mul_u32_u24 v13, 288, v13")
    a(f"v_add_u32 v13, {G2_ZT}, v13")
    a(f"v_add_u32 v14, {4*288}, v13")
    a(f"v_mov_b32 v15, {G2_ZZ}")
    a("v_cmp_eq_u32 vcc, v12, v10")
    a("s_nop 1")
    a("v_cndmask_b32 v13, v15, v13, vcc")
    a("v_cndmask_b32 v14, v15, v14, vcc")
    ZF = 64
    DEN = 100
    for th in range(2):
        for k in range(9): a(f"ds_read_b128 v[{ZF+4*k}:{ZF+4*k+3}], v{13+th} offset:{16*(9*th+k)}")
        for k in range(9):
            a(f"s_waitcnt lgkmcnt({8-k})")
            ks = 9*th + k
            c = f"v[{DEN+4*th}:{DEN+4*th+3}]" if k else "0"
            a(f"v_mfma_f32_16x16x32_bf16 v[{DEN+4*th}:{DEN+4*th+3}], v[{ZF+4*k}:{ZF+4*k+3}], v[{PQ+4*ks}:{PQ+4*ks+3}], {c}")
    a("v_bfe_u32 v12, v1, 2, 2")
    a("v_and_b32 v13, 3, v1")
    a("v_lshl_add_u32 v20, v10, 3, v12")
    a("v_lshlrev_b32 v21, 3, v13")
    a("v_lshlrev_b32 v22, 3, v10")
    a("v_mul_u32_u24 v23, 48, v9")
    a("v_lshl_add_u32 v23, v10, 4, v23")
    a(f"v_add_u32 v23, {G2_KVB}, v23")
    a("v_cmp_eq_u32 s[34:35], 3, v10")
    a("v_cmp_gt_u32 s[36:37], 2, v9")
    def fswz(dst, row, tmp):
        a(f"v_mul_u32_u24 v{tmp}, 3641, v{row}")
        a(f"v_lshrrev_b32 v{tmp}, 19, v{tmp}")
        a(f"v_lshrrev_b32 v{dst}, 3, v{row}")
        a(f"v_add_u32 v{tmp}, v{tmp}, v{dst}")
        a(f"v_and_b32 v{tmp}, 1, v{tmp}")
        a(f"v_bfe_u32 v{dst}, v{row}, 1, 1")
        a(f"v_lshl_or_b32 v{tmp}, v{tmp}, 1, v{dst}")
        a(f"v_lshlrev_b32 v{dst}, 7, v{row}")
        a(f"v_lshl_or_b32 v{dst}, v{tmp}, 5, v{dst}")
    AF = 32
    BF = 48
    MO = 64
    a("s_lshl_b32 s24, s3, 2")
    a("s_mov_b32 s25, 0")
    a.label("L_g2_fold")
    a("s_add_u32 s26, s24, s25")
    a("s_mul_i32 s27, s26, 18")
    a("s_mul_i32 s28, s26, 864")
    a("v_add_u32 v24, s28, v23")
    a(f"v_mov_b32 v25, {G2_ZZ}")
    a("v_cndmask_b32 v24, v24, v25, s[34:35]")
    a(f"v_add_u32 v26, {16*48}, v24")
    a("v_cndmask_b32 v26, v26, v25, s[34:35]")
    a(f"ds_read_b128 v[{BF}:{BF+3}], v24")
    a(f"ds_read_b128 v[{BF+4}:{BF+7}], v26")
    a("v_add_u32 v24, s27, v20")
    fswz(26, 24, 27)
    a("v_add_u32 v26, v26, v21")
    a("v_add_u32 v24, 4, v24")
    fswz(28, 24, 27)
    a("v_add_u32 v28, v28, v21")
    for ft in range(4):
        a(f"v_xor_b32 v29, {32*ft}, v26")
        a(f"v_xor_b32 v30, {32*ft}, v28")
        a(f"ds_read_b64_tr_b16 v[{AF+4*ft}:{AF+4*ft+1}], v29")
        a(f"ds_read_b64_tr_b16 v[{AF+4*ft+2}:{AF+4*ft+3}], v30")
    a("v_add_u32 v24, s27, v9")
    fswz(26, 24, 27)
    a("v_add_u32 v26, v26, v22")
    a("v_add_u32 v24, 16, v24")
    fswz(28, 24, 27)
    a("v_add_u32 v28, v28, v22")
    a("s_waitcnt lgkmcnt(0)")
    for dt in range(2):
        for ft in range(4):
            r = MO + 16*dt + 4*ft
            a(f"v_mfma_f32_16x16x32_bf16 v[{r}:{r+3}], v[{AF+4*ft}:{AF+4*ft+3}], v[{BF+4*dt}:{BF+4*dt+3}], 0")
    a("s_nop 4")
    for dt in range(2):
        if dt == 1: a("s_mov_b64 exec, s[36:37]")
        for ft in range(4):
            r = MO + 16*dt + 4*ft
            if dt == 0 and ft == 0: a("s_nop 3")
            a(f"v_cvt_pk_bf16_f32 v{r}, v{r}, v{r+1}")
            a(f"v_cvt_pk_bf16_f32 v{r+1}, v{r+2}, v{r+3}")
            a(f"v_xor_b32 v29, {32*ft}, v{26 + 2*dt}")
            a(f"ds_write_b64 v29, v[{r}:{r+1}]")
    a("s_mov_b64 exec, -1")
    a("s_add_u32 s25, s25, 1")
    a("s_cmp_lt_u32 s25, 4")
    a("s_cbranch_scc1 L_g2_fold")
    RD = 108
    for x in range(8):
        a(f"v_add_f32 v{RD+x}, {hex(EPS)}, v{DEN+x}")
        a(f"v_rcp_f32 v{RD+x}, v{RD+x}")
    a("s_waitcnt lgkmcnt(0)")
    a("s_barrier")
    stamp(a, 6, diag)
    a("v_mul_u32_u24 v12, 144, v10")
    a("v_bfe_u32 v13, v1, 2, 2")
    a("v_add_u32 v12, v12, v13")
    a("v_lshlrev_b32 v12, 7, v12")
    a("v_add_u32 v12, v12, v21")
    a("v_lshrrev_b32 v13, 1, v13")
    a("v_and_b32 v14, 1, v10")
    a("v_lshl_or_b32 v15, v14, 1, v13")
    a("v_xor_b32 v16, 2, v15")
    MA = 32
    for par in range(2):
        for ft in range(4):
            a(f"v_xor_b32 v17, {ft}, v{15+par}")
            a(f"v_lshl_add_u32 v{MA+4*par+ft}, v17, 5, v12")
    OUT = 16
    MF = [64, 80]
    NP = [96, 100]
    TMP = 40
    a("v_mov_b32 v14, 0xffff0000")
    def mreads(ks):
        s = ks & 1
        for ft in range(4):
            for hh in range(2):
                r = MF[s] + 4*ft + 2*hh
                a(f"ds_read_b64_tr_b16 v[{r}:{r+1}], v{MA+4*(ks&1)+ft} offset:{(8*ks+4*hh)*128}")
    def norm(ks):
        s = ks & 1
        for p in range(4):
            x = (8*ks + 2*p)//18
            src = PQ + 4*ks + p; t = TMP + 2*(p & 1)
            a(f"v_lshlrev_b32 v{t}, 16, v{src}")
            a(f"v_and_b32 v{t+1}, v14, v{src}")
            rd = RD + x
            if rd % 2 == 0: a(f"v_pk_mul_f32 v[{t}:{t+1}], v[{t}:{t+1}], v[{rd}:{rd+1}] op_sel_hi:[1,0]")
            else:           a(f"v_pk_mul_f32 v[{t}:{t+1}], v[{t}:{t+1}], v[{rd-1}:{rd}] op_sel:[0,1] op_sel_hi:[1,1]")
            a(f"v_cvt_pk_bf16_f32 v{NP[s]+p}, v{t}, v{t+1}")
    mreads(0); norm(0)
    for ks in range(18):
        s = ks & 1
        a("s_waitcnt lgkmcnt(0)")
        if ks + 1 < 18: mreads(ks + 1)
        for ft in range(4):
            c = f"v[{OUT+4*ft}:{OUT+4*ft+3}]" if ks else "0"
            a(f"v_mfma_f32_16x16x32_bf16 v[{OUT+4*ft}:{OUT+4*ft+3}], v[{MF[s]+4*ft}:{MF[s]+4*ft+3}], v[{NP[s]}:{NP[s]+3}], {c}")
        if ks + 1 < 18: norm(ks + 1)
        a("s_nop 0")
    stamp(a, 7, diag)
    srd(a, 16, S_OUT, S_OUT+1, 2048*2304)
    a("s_lshl_b32 s25, s22, 7")
    a("s_lshl_b32 s26, s3, 4")
    a("s_add_u32 s25, s25, s26")
    a("s_mul_i32 s25, s25, 2304")
    a("s_lshl_b32 s26, s23, 7")
    a("s_add_u32 s25, s25, s26")
    a("v_mul_u32_u24 v4, 2304, v9")
    a("v_lshl_add_u32 v4, v10, 4, v4")
    a("s_nop 4")
    for pr in range(2):
        A_ = OUT + 8*pr; B_ = A_ + 4; p = 64 + 4*pr
        a(f"v_cvt_pk_bf16_f32 v{p}, v{A_}, v{A_+1}")
        a(f"v_cvt_pk_bf16_f32 v{p+1}, v{A_+2}, v{A_+3}")
        a(f"v_cvt_pk_bf16_f32 v{p+2}, v{B_}, v{B_+1}")
        a(f"v_cvt_pk_bf16_f32 v{p+3}, v{B_+2}, v{B_+3}")
        a("s_nop 1")
        a(f"v_permlane32_swap_b32 v{p}, v{p+2}")
        a(f"v_permlane32_swap_b32 v{p+1}, v{p+3}")
        a("s_nop 1")
        a(f"v_permlane16_swap_b32 v{p}, v{p+2}")
        a(f"v_permlane16_swap_b32 v{p+1}, v{p+3}")
        a("s_nop 1")
        a(f"buffer_store_dwordx4 v[{p}:{p+3}], v4, s[16:19], s25 offen offset:{64*pr}")
```

```python
from common import *

def z_role(a, diag):
    a.c("==== Z: zero-init ====")
    for i in range(4): a(f"v_mov_b32 v{4+i}, 0")
    a("v_lshlrev_b32 v2, 4, v0")
    a(f"s_mov_b32 s16, s{S_WS}"); a(f"s_and_b32 s17, s{S_WS+1}, 0xffff")
    a(f"s_mov_b32 s18, {WS_FLAG + 0x4000}"); a("s_mov_b32 s19, 0x20000")
    n = (WS_FLAG + 0x4000 - WS_KVS) // 8192
    for i in range(n):
        if (i*8192 >= KVS_BYTES) and (WS_KVS + (i+1)*8192 <= WS_FLAG): continue
        a(f"s_mov_b32 s21, {WS_KVS + i*8192}")
        a("buffer_store_dwordx4 v[4:7], v2, s[16:19], s21 offen sc0 sc1")
    a("s_waitcnt vmcnt(0)")
    a("s_barrier")
    a("s_cmp_eq_u32 s3, 0")
    a("s_cbranch_scc0 L_z_done")
    a("v_mov_b32 v4, 1")
    a("v_mov_b32 v5, 0")
    a("s_mov_b64 exec, 1")
    a(f"global_store_dword v5, v4, s[{S_DBG}:{S_DBG+1}] sc0 sc1")
    a("s_mov_b64 exec, -1")
    a.label("L_z_done")

def prep_role(a, sc, diag):
    a.c("==== prep: uT (reversed) = (shiftconv(k)*v)^T, qT = q^T ====")
    srd(a, 12, S_WS, S_WS+1, WS_SRD_BYTES)
    srd(a, 16, S_K, S_K+1, 2048*1152)
    srd(a, 24, S_V, S_V+1, 2048*1152)
    srd(a, 28, S_Q, S_Q+1, 2048*1152)
    srd(a, 32, S_SH, S_SH+1, 576*8)
    a("s_lshr_b32 s23, s20, 3")
    a("s_and_b32 s22, s20, 7")
    a("s_lshl_b32 s22, s22, 8")
    a("s_lshl_b32 s21, s3, 5")
    a("s_add_u32 s22, s22, s21")
    a("v_and_b32 v2, 7, v1")
    a("v_lshrrev_b32 v3, 3, v1")
    a("v_lshl_add_u32 v4, v3, 2, s22")
    a("v_mul_u32_u24 v5, 1152, v4")
    a("s_lshl_b32 s37, s23, 7")
    a("v_lshl_add_u32 v6, v2, 4, s37")
    a("v_add_u32 v5, v5, v6")
    a("v_subrev_u32 v7, 3456, v5")
    a("v_cmp_eq_u32 vcc, 0, v4")
    a("v_mov_b32 v8, 0x40000000")
    a("v_lshlrev_b32 v9, 2, v6")
    a("v_cndmask_b32 v7, v7, v8, vcc")
    K = 16; V = 44; Q = 60; W = 76
    for j in range(3): a(f"buffer_load_dwordx4 v[{K+4*j}:{K+4*j+3}], v7, s[16:19], 0 offen offset:{1152*j} nt")
    for j in range(4): a(f"buffer_load_dwordx4 v[{K+12+4*j}:{K+12+4*j+3}], v5, s[16:19], 0 offen offset:{1152*j} nt")
    for j in range(4): a(f"buffer_load_dwordx4 v[{V+4*j}:{V+4*j+3}], v5, s[24:27], 0 offen offset:{1152*j} nt")
    for j in range(4): a(f"buffer_load_dwordx4 v[{W+4*j}:{W+4*j+3}], v9, s[32:35], 0 offen offset:{16*j}")
    for j in range(4): a(f"buffer_load_dwordx4 v[{Q+4*j}:{Q+4*j+3}], v5, s[28:31], 0 offen offset:{1152*j} nt")
    a("v_lshlrev_b32 v10, 11, v6")
    a("v_lshlrev_b32 v11, 1, v4")
    a("v_add_u32 v12, v10, v11")
    a("v_sub_u32 v13, v10, v11")
    a("v_add_u32 v13, 4088, v13")
    a("v_mov_b32 v14, 0xffff0000")
    KU = 100; VU = 116; WU = 120; U = 128; O = 136
    a("s_waitcnt vmcnt(4)")
    for cp in range(4):
        d0, d1, d2, d3 = W+4*cp, W+4*cp+1, W+4*cp+2, W+4*cp+3
        a(f"v_lshlrev_b32 v{WU+0}, 16, v{d0}"); a(f"v_lshlrev_b32 v{WU+1}, 16, v{d2}")
        a(f"v_and_b32 v{WU+2}, v14, v{d0}");    a(f"v_and_b32 v{WU+3}, v14, v{d2}")
        a(f"v_lshlrev_b32 v{WU+4}, 16, v{d1}"); a(f"v_lshlrev_b32 v{WU+5}, 16, v{d3}")
        a(f"v_and_b32 v{WU+6}, v14, v{d1}");    a(f"v_and_b32 v{WU+7}, v14, v{d3}")
        for j in range(7):
            a(f"v_lshlrev_b32 v{KU+2*j}, 16, v{K+4*j+cp}")
            a(f"v_and_b32 v{KU+2*j+1}, v14, v{K+4*j+cp}")
        for r in range(4):
            u = U + 2*r
            a(f"v_pk_mul_f32 v[{u}:{u+1}], v[{KU+2*r}:{KU+2*r+1}], v[{WU+6}:{WU+7}]")
            a(f"v_lshlrev_b32 v{VU}, 16, v{V+4*r+cp}")
            a(f"v_pk_fma_f32 v[{u}:{u+1}], v[{KU+2*(r+1)}:{KU+2*(r+1)+1}], v[{WU+4}:{WU+5}], v[{u}:{u+1}]")
            a(f"v_and_b32 v{VU+1}, v14, v{V+4*r+cp}")
            a(f"v_pk_fma_f32 v[{u}:{u+1}], v[{KU+2*(r+2)}:{KU+2*(r+2)+1}], v[{WU+2}:{WU+3}], v[{u}:{u+1}]")
            a(f"v_pk_fma_f32 v[{u}:{u+1}], v[{KU+2*(r+3)}:{KU+2*(r+3)+1}], v[{WU+0}:{WU+1}], v[{u}:{u+1}]")
            a(f"v_pk_mul_f32 v[{u}:{u+1}], v[{u}:{u+1}], v[{VU}:{VU+1}]")
        for half in range(2):
            o = O + 2*((2*cp+half) % 4)
            for j in range(2):
                a(f"v_cvt_pk_bf16_f32 v{o+j}, v{U+2*(3-2*j)+half}, v{U+2*(2-2*j)+half}")
            a(f"s_mov_b32 s39, {WS_UT + (2*cp+half)*4096}")
            a(f"buffer_store_dwordx2 v[{o}:{o+1}], v13, s[12:15], s39 offen{sc}")
    a("s_waitcnt vmcnt(8)")
    a("s_mov_b32 s36, 0x05040100")
    a("s_mov_b32 s37, 0x07060302")
    for cp in range(4):
        for half in range(2):
            o = O + 8 + 2*((2*cp+half) % 4)
            sel = "s36" if half == 0 else "s37"
            for j in range(2):
                a(f"v_perm_b32 v{o+j}, v{Q+4*(2*j+1)+cp}, v{Q+4*(2*j)+cp}, {sel}")
            a(f"s_mov_b32 s39, {WS_QT + (2*cp+half)*4096}")
            a(f"buffer_store_dwordx2 v[{o}:{o+1}], v12, s[12:15], s39 offen{sc}")
```

```python
import sys
from common import *
from g1 import *
from prep import *
from conv import *
from g2 import *
NAME = "concat_heads__linear_attn_block__ssm_conv_h3__prompt"
LDS = 143360

def kd(a, name, vgpr, sgpr=102, acc=None):
    a.raw(f".amdhsa_kernel {name}")
    a.raw(f"  .amdhsa_next_free_vgpr {vgpr}")
    a.raw(f"  .amdhsa_next_free_sgpr {sgpr}")
    a.raw(f"  .amdhsa_accum_offset {acc or vgpr}")
    a.raw("  .amdhsa_group_segment_fixed_size 0")
    a.raw("  .amdhsa_kernarg_size 96")
    a.raw("  .amdhsa_user_sgpr_count 2")
    a.raw("  .amdhsa_user_sgpr_kernarg_segment_ptr 1")
    a.raw("  .amdhsa_system_sgpr_workgroup_id_x 1")
    a.raw(".end_amdhsa_kernel")

def phase1_ids(a):
    a(f"s_cmp_ge_u32 s2, {ID_B}")
    a("s_cbranch_scc1 L_roleB")
    a(f"s_cmp_ge_u32 s2, {ID_Q}")
    a("s_cbranch_scc1 L_roleQ")

def k1(a, diag, nskv, nsq):
    name = "k1_kernel"
    entry(a, name, ID_Z + 1)
    stamp(a, 0, diag)
    phase1_ids(a)
    a("s_and_b32 s20, s2, 7"); a("s_lshr_b32 s21, s2, 3")
    a("s_lshr_b32 s22, s20, 1"); a("s_lshl_b32 s22, s22, 2"); a("s_and_b32 s23, s21, 3"); a("s_add_u32 s22, s22, s23")
    a("s_and_b32 s23, s20, 1"); a("s_lshl_b32 s23, s23, 2"); a("s_lshr_b32 s24, s21, 2"); a("s_add_u32 s23, s23, s24")
    g1_role(a, False, nskv, "", diag, lambda k: a("s_endpgm"))
    a.label("L_roleQ")
    a("s_and_b32 s20, s2, 7"); a(f"s_sub_u32 s21, s2, {ID_Q}"); a("s_lshr_b32 s21, s21, 3")
    a("s_lshl_b32 s22, s20, 1"); a("s_and_b32 s23, s21, 1"); a("s_add_u32 s22, s22, s23")
    a("s_lshr_b32 s23, s21, 1")
    g1_role(a, True, nsq, "", diag, lambda k: a("s_endpgm"))
    a.label("L_roleB")
    a(f"s_cmp_eq_u32 s2, {ID_Z}")
    a("s_cbranch_scc1 L_roleZ")
    a(f"s_sub_u32 s20, s2, {ID_B}")
    prep_role(a, "", diag)
    stamp(a, 3, diag)
    a("s_endpgm")
    a.label("L_roleZ")
    z_role(a, diag)
    a.label(f"L_{name}_exit")
    a("s_endpgm")

def k2(a, diag):
    name = "k2_kernel"
    entry(a, name, ID_Z)
    stamp(a, 4, diag)
    a(f"s_cmp_ge_u32 s2, {ID_B}")
    a("s_cbranch_scc1 L_k2_conv")
    a("s_cmp_lt_u32 s2, 96")
    a("s_cbranch_scc1 L_k2_lo")
    a(f"s_cmp_lt_u32 s2, {ID_Q}")
    a(f"s_cbranch_scc1 L_{name}_exit")
    a("s_sub_u32 s20, s2, 32")
    a("s_branch L_k2_g2")
    a.label("L_k2_lo")
    a("s_mov_b32 s20, s2")
    a.label("L_k2_g2")
    g2_role(a, "", diag, lambda: None, lambda: None)
    if diag: a("s_waitcnt vmcnt(0)")
    stamp(a, 8, diag)
    a("s_endpgm")
    a.label("L_k2_conv")
    a(f"s_sub_u32 s20, s2, {ID_B}")
    conv_role(a, "", diag, lambda: None)
    if diag: a("s_waitcnt vmcnt(0)")
    stamp(a, 8, diag)
    a.label(f"L_{name}_exit")
    a("s_endpgm")

def main(out, diag, opts):
    a = A()
    a.raw(f"; @launch kernel=k1_kernel grid=({ID_Z+1},1,1) block=(512,1,1) lds={LDS}")
    a.raw(f"; @launch kernel=k2_kernel grid=({ID_Z},1,1) block=(512,1,1) lds={LDS}")
    a.raw('.amdgcn_target "amdgcn-amd-amdhsa--gfx950"')
    a.raw(".text")
    k1(a, diag, opts.get("nskv", 4), opts.get("nsq", 3))
    k2(a, diag)
    a.raw('.section .rodata,"a"')
    a.raw(".p2align 6")
    kd(a, "k1_kernel", 256)
    a.raw(".p2align 6")
    kd(a, "k2_kernel", 256)
    open(out, "w").write(a.text())

if __name__ == "__main__":
    out = sys.argv[1]; diag = "diag" in sys.argv
    opts = {k: int(v) for k, v in (x.split("=") for x in sys.argv[2:] if "=" in x)}
    main(out, diag, opts)
```

```python
from common import *

G2_WO = 0
G2_KVB = 590*128
G2_ZT = G2_KVB + 590*48
G2_ZZ = G2_ZT + 32*288
G2_LDS = G2_ZZ + 288

def g2_role(a, sc, diag, wait_kv, wait_pq, opts={}):
    a.c("==== G2: out = (pq/den) @ (blockdiag(kv) @ wo) ====")
    a("s_and_b32 s22, s20, 15")
    a("s_lshr_b32 s23, s20, 4")
    srd(a, 12, S_WS, S_WS+1, WS_SRD_BYTES)
    srd(a, 16, S_WO, S_WO+1, 576*1152)
    a("v_lshrrev_b32 v2, 3, v1")
    a("v_and_b32 v3, 7, v1")
    a("v_bfe_u32 v4, v1, 4, 1")
    a("v_lshlrev_b32 v4, 1, v4")
    a("v_xor_b32 v3, v3, v4")
    a("v_lshlrev_b32 v3, 4, v3")
    a("v_mul_u32_u24 v2, 1152, v2")
    a("v_add_u32 v2, v2, v3")
    a("v_xor_b32 v3, 64, v2")
    a("s_lshl_b32 s24, s23, 7")
    for i in range(9):
        a(f"s_add_u32 s25, s3, {8*i}")
        a("s_mul_i32 s26, s25, 3641")
        a("s_lshr_b32 s26, s26, 16")
        a("s_add_u32 s26, s26, s25")
        a("s_and_b32 s26, s26, 1")
        a("s_lshl_b32 m0, s25, 10")
        a("s_mul_i32 s25, s25, 9216")
        a("s_add_u32 s25, s25, s24")
        a("s_cmp_eq_u32 s26, 0")
        lab = a.newlabel("wo")
        a(f"s_cbranch_scc1 {lab}_0")
        a("buffer_load_dwordx4 v3, s[16:19], s25 offen lds")
        a(f"s_branch {lab}_1")
        a.label(f"{lab}_0")
        a("buffer_load_dwordx4 v2, s[16:19], s25 offen lds")
        a.label(f"{lab}_1")
    for i in range(4): a(f"v_mov_b32 v{4+i}, 0")
    a("v_lshlrev_b32 v8, 4, v0")
    a("v_cmp_gt_u32 vcc, 112, v0")
    a("s_and_saveexec_b64 s[26:27], vcc")
    a(f"v_add_u32 v11, {576*128}, v8")
    a("ds_write_b128 v11, v[4:7]")
    a("s_mov_b64 exec, -1")
    a(f"v_add_u32 v11, {G2_ZT}, v8")
    a("ds_write_b128 v11, v[4:7]")
    a("v_cmp_gt_u32 vcc, 82, v0")
    a("s_and_saveexec_b64 s[26:27], vcc")
    a("ds_write_b128 v11, v[4:7] offset:8192")
    a("s_mov_b64 exec, -1")
    a("v_and_b32 v9, 15, v1")
    a("v_lshrrev_b32 v10, 4, v1")
    wait_kv()
    a(f"s_mov_b32 s28, s{S_WS}"); a(f"s_and_b32 s29, s{S_WS+1}, 0xffff")
    a(f"s_mov_b32 s30, {WS_KVS + KVS_BYTES}"); a("s_mov_b32 s31, 0x20000")
    KV = 64
    for i in range(6):
        a(f"s_mov_b32 s25, {WS_KVS + i*8192}")
        a(f"buffer_load_dwordx4 v[{KV+4*i}:{KV+4*i+3}], v8, s[28:31], s25 offen{sc}")
    wait_pq()
    PQ = 128
    a("s_lshl_b32 s25, s22, 3")
    a("s_add_u32 s25, s25, s3")
    a("s_mul_i32 s25, s25, 18432")
    a(f"s_add_u32 s25, s25, {WS_PQ}")
    a("v_lshlrev_b32 v11, 4, v1")
    for ks in range(18):
        if ks in (4, 8, 12, 16): a("s_add_u32 s25, s25, 4096")
        a(f"buffer_load_dwordx4 v[{PQ+4*ks}:{PQ+4*ks+3}], v11, s[12:15], s25 offen offset:{1024*(ks % 4)}{sc}")
    a("s_waitcnt lgkmcnt(0)")
    a("s_barrier")
    for i in range(6):
        k = KV + 4*i
        a(f"v_add_u32 v12, {512*i}, v0")
        a("v_mul_u32_u24 v13, 13108, v12")
        a("v_lshrrev_b32 v13, 16, v13")
        a("v_mul_u32_u24 v14, 5, v13")
        a("v_sub_u32 v14, v12, v14")
        a("v_mul_u32_u24 v15, 48, v13")
        a("v_lshl_add_u32 v15, v14, 3, v15")
        a(f"v_add_u32 v15, {G2_KVB}, v15")
        a(f"s_waitcnt vmcnt({18+5-i})")
        a(f"v_cvt_pk_bf16_f32 v{k}, v{k}, v{k+1}")
        a(f"v_cvt_pk_bf16_f32 v{k+1}, v{k+2}, v{k+3}")
        a("v_cmp_eq_u32 vcc, 4, v14")
        if i == 5:
            a("s_movk_i32 s38, 576")
            a("v_cmp_gt_u32 s[26:27], s38, v13")
            a("s_mov_b64 exec, s[26:27]")
        a(f"v_mov_b32 v18, v{k}")
        a("s_nop 0")
        a(f"v_cndmask_b32_e64 v19, v{k+1}, 0, vcc")
        a("ds_write_b64 v15, v[18:19]")
        a("s_and_b64 exec, exec, vcc")
        a("ds_write_b64 v15, v[4:5] offset:8")
        a("v_mul_u32_u24 v16, 3641, v13")
        a("v_lshrrev_b32 v16, 16, v16")
        a("v_mul_u32_u24 v17, 18, v16")
        a("v_sub_u32 v17, v13, v17")
        a("v_and_b32 v18, 7, v16")
        a("v_mul_u32_u24 v18, 18, v18")
        a("v_add_u32 v17, v17, v18")
        a("v_mul_u32_u24 v16, 144, v16")
        a("v_add_u32 v17, v17, v16")
        a("v_lshlrev_b32 v17, 1, v17")
        a(f"v_add_u32 v17, {G2_ZT}, v17")
        a(f"ds_write_b16 v17, v{k+1}")
        a("s_mov_b64 exec, -1")
    a("s_waitcnt vmcnt(0) lgkmcnt(0)")
    a("s_barrier")
    stamp(a, 5, diag)
    a("v_lshrrev_b32 v12, 2, v9")
    a("v_and_b32 v13, 3, v9")
    a("v_lshl_add_u32 v13, v12, 3, v13")
    a("v_mul_u32_u24 v13, 288, v13")
    a(f"v_add_u32 v13, {G2_ZT}, v13")
    a(f"v_add_u32 v14, {4*288}, v13")
    a(f"v_mov_b32 v15, {G2_ZZ}")
    a("v_cmp_eq_u32 vcc, v12, v10")
    a("s_nop 1")
    a("v_cndmask_b32 v13, v15, v13, vcc")
    a("v_cndmask_b32 v14, v15, v14, vcc")
    ZF = 64
    DEN = 100
    for th in range(2):
        for k in range(9): a(f"ds_read_b128 v[{ZF+4*k}:{ZF+4*k+3}], v{13+th} offset:{16*(9*th+k)}")
        for k in range(9):
            a(f"s_waitcnt lgkmcnt({8-k})")
            ks = 9*th + k
            c = f"v[{DEN+4*th}:{DEN+4*th+3}]" if k else "0"
            a(f"v_mfma_f32_16x16x32_bf16 v[{DEN+4*th}:{DEN+4*th+3}], v[{ZF+4*k}:{ZF+4*k+3}], v[{PQ+4*ks}:{PQ+4*ks+3}], {c}")
    a("v_bfe_u32 v12, v1, 2, 2")
    a("v_and_b32 v13, 3, v1")
    a("v_lshl_add_u32 v20, v10, 3, v12")
    a("v_lshlrev_b32 v21, 3, v13")
    a("v_lshlrev_b32 v22, 3, v10")
    a("v_mul_u32_u24 v23, 48, v9")
    a("v_lshl_add_u32 v23, v10, 4, v23")
    a(f"v_add_u32 v23, {G2_KVB}, v23")
    a("v_cmp_eq_u32 s[34:35], 3, v10")
    a("v_cmp_gt_u32 s[36:37], 2, v9")
    def fswz(dst, row, tmp):
        a(f"v_mul_u32_u24 v{tmp}, 3641, v{row}")
        a(f"v_lshrrev_b32 v{tmp}, 19, v{tmp}")
        a(f"v_lshrrev_b32 v{dst}, 3, v{row}")
        a(f"v_add_u32 v{tmp}, v{tmp}, v{dst}")
        a(f"v_and_b32 v{tmp}, 1, v{tmp}")
        a(f"v_bfe_u32 v{dst}, v{row}, 1, 1")
        a(f"v_lshl_or_b32 v{tmp}, v{tmp}, 1, v{dst}")
        a(f"v_lshlrev_b32 v{dst}, 7, v{row}")
        a(f"v_lshl_or_b32 v{dst}, v{tmp}, 5, v{dst}")
    AF = 32
    BF = 48
    MO = 64
    a("s_lshl_b32 s24, s3, 2")
    a("s_mov_b32 s25, 0")
    a.label("L_g2_fold")
    a("s_add_u32 s26, s24, s25")
    a("s_mul_i32 s27, s26, 18")
    a("s_mul_i32 s28, s26, 864")
    a("v_add_u32 v24, s28, v23")
    a(f"v_mov_b32 v25, {G2_ZZ}")
    a("v_cndmask_b32 v24, v24, v25, s[34:35]")
    a(f"v_add_u32 v26, {16*48}, v24")
    a("v_cndmask_b32 v26, v26, v25, s[34:35]")
    a(f"ds_read_b128 v[{BF}:{BF+3}], v24")
    a(f"ds_read_b128 v[{BF+4}:{BF+7}], v26")
    a("v_add_u32 v24, s27, v20")
    fswz(26, 24, 27)
    a("v_add_u32 v26, v26, v21")
    a("v_add_u32 v24, 4, v24")
    fswz(28, 24, 27)
    a("v_add_u32 v28, v28, v21")
    for ft in range(4):
        a(f"v_xor_b32 v29, {32*ft}, v26")
        a(f"v_xor_b32 v30, {32*ft}, v28")
        a(f"ds_read_b64_tr_b16 v[{AF+4*ft}:{AF+4*ft+1}], v29")
        a(f"ds_read_b64_tr_b16 v[{AF+4*ft+2}:{AF+4*ft+3}], v30")
    a("v_add_u32 v24, s27, v9")
    fswz(26, 24, 27)
    a("v_add_u32 v26, v26, v22")
    a("v_add_u32 v24, 16, v24")
    fswz(28, 24, 27)
    a("v_add_u32 v28, v28, v22")
    a("s_waitcnt lgkmcnt(0)")
    for dt in range(2):
        for ft in range(4):
            r = MO + 16*dt + 4*ft
            a(f"v_mfma_f32_16x16x32_bf16 v[{r}:{r+3}], v[{AF+4*ft}:{AF+4*ft+3}], v[{BF+4*dt}:{BF+4*dt+3}], 0")
    a("s_nop 4")
    for dt in range(2):
        if dt == 1: a("s_mov_b64 exec, s[36:37]")
        for ft in range(4):
            r = MO + 16*dt + 4*ft
            if dt == 0 and ft == 0: a("s_nop 3")
            a(f"v_cvt_pk_bf16_f32 v{r}, v{r}, v{r+1}")
            a(f"v_cvt_pk_bf16_f32 v{r+1}, v{r+2}, v{r+3}")
            a(f"v_xor_b32 v29, {32*ft}, v{26 + 2*dt}")
            a(f"ds_write_b64 v29, v[{r}:{r+1}]")
    a("s_mov_b64 exec, -1")
    a("s_add_u32 s25, s25, 1")
    a("s_cmp_lt_u32 s25, 4")
    a("s_cbranch_scc1 L_g2_fold")
    RD = 108
    for x in range(8):
        a(f"v_add_f32 v{RD+x}, {hex(EPS)}, v{DEN+x}")
        a(f"v_rcp_f32 v{RD+x}, v{RD+x}")
    a("s_waitcnt lgkmcnt(0)")
    a("s_barrier")
    stamp(a, 6, diag)
    a("v_mul_u32_u24 v12, 144, v10")
    a("v_bfe_u32 v13, v1, 2, 2")
    a("v_add_u32 v12, v12, v13")
    a("v_lshlrev_b32 v12, 7, v12")
    a("v_add_u32 v12, v12, v21")
    a("v_lshrrev_b32 v13, 1, v13")
    a("v_and_b32 v14, 1, v10")
    a("v_lshl_or_b32 v15, v14, 1, v13")
    a("v_xor_b32 v16, 2, v15")
    MA = 32
    for par in range(2):
        for ft in range(4):
            a(f"v_xor_b32 v17, {ft}, v{15+par}")
            a(f"v_lshl_add_u32 v{MA+4*par+ft}, v17, 5, v12")
    OUT = 16
    MF = [64, 80]
    NP = [96, 100]
    TMP = 40
    a("v_mov_b32 v14, 0xffff0000")
    def mreads(ks):
        s = ks & 1
        for ft in range(4):
            for hh in range(2):
                r = MF[s] + 4*ft + 2*hh
                a(f"ds_read_b64_tr_b16 v[{r}:{r+1}], v{MA+4*(ks&1)+ft} offset:{(8*ks+4*hh)*128}")
    def norm_ops(ks):
        s = ks & 1
        ops = []
        for p in range(4):
            x = (8*ks + 2*p)//18
            src = PQ + 4*ks + p; t = TMP + 2*p
            rd = RD + x
            o = [f"v_lshlrev_b32 v{t}, 16, v{src}", f"v_and_b32 v{t+1}, v14, v{src}"]
            if opts.get("nopk"):
                o += [f"v_mul_f32 v{t}, v{t}, v{rd}", f"v_mul_f32 v{t+1}, v{t+1}, v{rd}"]
            elif rd % 2 == 0: o += [f"v_pk_mul_f32 v[{t}:{t+1}], v[{t}:{t+1}], v[{rd}:{rd+1}] op_sel_hi:[1,0]"]
            else:           o += [f"v_pk_mul_f32 v[{t}:{t+1}], v[{t}:{t+1}], v[{rd-1}:{rd}] op_sel:[0,1] op_sel_hi:[1,1]"]
            o += [f"v_cvt_pk_bf16_f32 v{NP[s]+p}, v{t}, v{t+1}"]
            ops.append(o)
        return ops
    def mread_ops(ks):
        s = ks & 1
        return [f"ds_read_b64_tr_b16 v[{MF[s]+4*ft+2*hh}:{MF[s]+4*ft+2*hh+1}], v{MA+4*(ks&1)+ft} offset:{(8*ks+4*hh)*128}" for ft in range(4) for hh in range(2)]
    for r in mread_ops(0): a(r)
    for o in norm_ops(0):
        for x in o: a(x)
    a("s_nop 0")
    mode = opts.get("g2mode", 0)
    for ks in range(18):
        s = ks & 1
        a("s_waitcnt lgkmcnt(0)")
        rd = mread_ops(ks + 1) if ks + 1 < 18 and not opts.get("nord") else []
        nm = norm_ops(ks + 1) if ks + 1 < 18 and not opts.get("nonorm") else [[], [], [], []]
        def mf(ft):
            c = f"v[{OUT+4*ft}:{OUT+4*ft+3}]" if ks else "0"
            a(f"v_mfma_f32_16x16x32_bf16 v[{OUT+4*ft}:{OUT+4*ft+3}], v[{MF[s]+4*ft}:{MF[s]+4*ft+3}], v[{NP[s]}:{NP[s]+3}], {c}")
        if mode == 0:
            for r in rd: a(r)
            for ft in range(4): mf(ft)
            for o in nm:
                for x in o: a(x)
        else:
            for ft in range(4):
                mf(ft)
                for r in rd[2*ft:2*ft+2]: a(r)
                for x in nm[ft]: a(x)
        a("s_nop 0")
    stamp(a, 7, diag)
    srd(a, 16, S_OUT, S_OUT+1, 2048*2304)
    a("s_lshl_b32 s25, s22, 7")
    a("s_lshl_b32 s26, s3, 4")
    a("s_add_u32 s25, s25, s26")
    a("s_mul_i32 s25, s25, 2304")
    a("s_lshl_b32 s26, s23, 7")
    a("s_add_u32 s25, s25, s26")
    a("v_mul_u32_u24 v4, 2304, v9")
    a("v_lshl_add_u32 v4, v10, 4, v4")
    a("s_nop 4")
    for pr in range(2):
        A_ = OUT + 8*pr; B_ = A_ + 4; p = 64 + 4*pr
        a(f"v_cvt_pk_bf16_f32 v{p}, v{A_}, v{A_+1}")
        a(f"v_cvt_pk_bf16_f32 v{p+1}, v{A_+2}, v{A_+3}")
        a(f"v_cvt_pk_bf16_f32 v{p+2}, v{B_}, v{B_+1}")
        a(f"v_cvt_pk_bf16_f32 v{p+3}, v{B_+2}, v{B_+3}")
        a("s_nop 1")
        a(f"v_permlane32_swap_b32 v{p}, v{p+2}")
        a(f"v_permlane32_swap_b32 v{p+1}, v{p+3}")
        a("s_nop 1")
        a(f"v_permlane16_swap_b32 v{p}, v{p+2}")
        a(f"v_permlane16_swap_b32 v{p+1}, v{p+3}")
        a("s_nop 1")
        a(f"buffer_store_dwordx4 v[{p}:{p+3}], v4, s[16:19], s25 offen offset:{64*pr}")
```

```python
import sys
from common import *
from g1 import *
from prep import *
from conv import *
from g2 import *
NAME = "concat_heads__linear_attn_block__ssm_conv_h3__prompt"
LDS = 143360

def kd(a, name, vgpr, sgpr=102, acc=None):
    a.raw(f".amdhsa_kernel {name}")
    a.raw(f"  .amdhsa_next_free_vgpr {vgpr}")
    a.raw(f"  .amdhsa_next_free_sgpr {sgpr}")
    a.raw(f"  .amdhsa_accum_offset {acc or vgpr}")
    a.raw("  .amdhsa_group_segment_fixed_size 0")
    a.raw("  .amdhsa_kernarg_size 96")
    a.raw("  .amdhsa_user_sgpr_count 2")
    a.raw("  .amdhsa_user_sgpr_kernarg_segment_ptr 1")
    a.raw("  .amdhsa_system_sgpr_workgroup_id_x 1")
    a.raw(".end_amdhsa_kernel")

def phase1_ids(a):
    a(f"s_cmp_ge_u32 s2, {ID_B}")
    a("s_cbranch_scc1 L_roleB")
    a(f"s_cmp_ge_u32 s2, {ID_Q}")
    a("s_cbranch_scc1 L_roleQ")

def k1(a, diag, nskv, nsq):
    name = "k1_kernel"
    entry(a, name, ID_Z + 1)
    stamp(a, 0, diag)
    phase1_ids(a)
    a("s_and_b32 s20, s2, 7"); a("s_lshr_b32 s21, s2, 3")
    a("s_lshr_b32 s22, s20, 1"); a("s_lshl_b32 s22, s22, 2"); a("s_and_b32 s23, s21, 3"); a("s_add_u32 s22, s22, s23")
    a("s_and_b32 s23, s20, 1"); a("s_lshl_b32 s23, s23, 2"); a("s_lshr_b32 s24, s21, 2"); a("s_add_u32 s23, s23, s24")
    g1_role(a, False, nskv, "", diag, lambda k: a("s_endpgm"))
    a.label("L_roleQ")
    a("s_and_b32 s20, s2, 7"); a(f"s_sub_u32 s21, s2, {ID_Q}"); a("s_lshr_b32 s21, s21, 3")
    a("s_lshl_b32 s22, s20, 1"); a("s_and_b32 s23, s21, 1"); a("s_add_u32 s22, s22, s23")
    a("s_lshr_b32 s23, s21, 1")
    g1_role(a, True, nsq, "", diag, lambda k: a("s_endpgm"))
    a.label("L_roleB")
    a(f"s_cmp_eq_u32 s2, {ID_Z}")
    a("s_cbranch_scc1 L_roleZ")
    a(f"s_sub_u32 s20, s2, {ID_B}")
    prep_role(a, "", diag)
    stamp(a, 3, diag)
    a("s_endpgm")
    a.label("L_roleZ")
    z_role(a, diag)
    a.label(f"L_{name}_exit")
    a("s_endpgm")

def k2(a, diag, opts):
    name = "k2_kernel"
    entry(a, name, ID_Z)
    stamp(a, 4, diag)
    a(f"s_cmp_ge_u32 s2, {ID_B}")
    a("s_cbranch_scc1 L_k2_conv")
    a("s_cmp_lt_u32 s2, 96")
    a("s_cbranch_scc1 L_k2_lo")
    a(f"s_cmp_lt_u32 s2, {ID_Q}")
    a(f"s_cbranch_scc1 L_{name}_exit")
    a("s_sub_u32 s20, s2, 32")
    a("s_branch L_k2_g2")
    a.label("L_k2_lo")
    a("s_mov_b32 s20, s2")
    a.label("L_k2_g2")
    g2_role(a, "", diag, lambda: None, lambda: None, opts)
    if diag: a("s_waitcnt vmcnt(0)")
    stamp(a, 8, diag)
    a("s_endpgm")
    a.label("L_k2_conv")
    a(f"s_sub_u32 s20, s2, {ID_B}")
    conv_role(a, "", diag, lambda: None)
    if diag: a("s_waitcnt vmcnt(0)")
    stamp(a, 8, diag)
    a.label(f"L_{name}_exit")
    a("s_endpgm")

def k3(a, sel):
    name = "k3_kernel"
    entry(a, name, 1)
    a("s_cmp_eq_u32 s3, 0")
    a(f"s_cbranch_scc0 L_{name}_exit")
    a(f"v_mov_b32 v2, {WS_STAMP}")
    a(f"global_load_dword v3, v2, s[{S_WS}:{S_WS+1}] sc0 sc1")
    a("v_mov_b32 v4, 0")
    for i, (wg, idx) in enumerate(sel):
        a(f"v_cmp_eq_u32 vcc, {i}, v1")
        a(f"v_mov_b32 v5, {WS_STAMP + wg*128 + idx*8}")
        a("s_nop 0")
        a("v_cndmask_b32 v4, v4, v5, vcc")
    a("v_cmp_gt_u32 vcc, 16, v1")
    a("s_and_saveexec_b64 s[20:21], vcc")
    a(f"global_load_dword v6, v4, s[{S_WS}:{S_WS+1}] sc0 sc1")
    a("s_waitcnt vmcnt(0)")
    a("v_sub_u32 v6, v6, v3")
    a("v_lshlrev_b32 v7, 2, v1")
    a(f"global_store_dword v7, v6, s[{S_DBG}:{S_DBG+1}]")
    a.label(f"L_{name}_exit")
    a("s_endpgm")

def main(out, diag, opts):
    a = A()
    a.raw(f"; @launch kernel=k1_kernel grid=({ID_Z+1},1,1) block=(512,1,1) lds={LDS}")
    a.raw(f"; @launch kernel=k2_kernel grid=({ID_Z},1,1) block=(512,1,1) lds={LDS}")
    if opts.get("k3"): a.raw("; @launch kernel=k3_kernel grid=(1,1,1) block=(64,1,1) lds=0")
    a.raw('.amdgcn_target "amdgcn-amd-amdhsa--gfx950"')
    a.raw(".text")
    k1(a, diag, opts.get("nskv", 4), opts.get("nsq", 3))
    k2(a, diag, opts)
    if opts.get("k3"):
        k3(a, [(0,1),(0,2),(0,3),(130,2),(130,3),(180,3),(0,4),(0,5),(0,6),(0,7),(0,8),(180,4),(180,5),(180,6),(180,8),(247,8)])
    a.raw('.section .rodata,"a"')
    a.raw(".p2align 6")
    kd(a, "k1_kernel", 256)
    a.raw(".p2align 6")
    kd(a, "k2_kernel", 256)
    if opts.get("k3"):
        a.raw(".p2align 6")
        kd(a, "k3_kernel", 256)
    open(out, "w").write(a.text())

if __name__ == "__main__":
    out = sys.argv[1]; diag = "diag" in sys.argv
    opts = {k: int(v) for k, v in (x.split("=") for x in sys.argv[2:] if "=" in x)}
    main(out, diag, opts)
```

```python
from asmlib import *

WS_UT  = 0x000000
WS_QT  = 0x240000
WS_PQ  = 0x480000
WS_KVS = 0x6C0000
KVS_BYTES = 576*24*4
WS_Z = WS_KVS + KVS_BYTES
WS_FLAG = 0x6D0000
WS_STAMP = 0x800000
WS_SRD_BYTES = 0x800000

LOG2E = 0x3fb8aa3b
EPS = 0x358637bd
ONE_EPS = 0x3f800008

S_X, S_W, S_WO, S_Q, S_K, S_V, S_SH, S_H = 40, 42, 44, 46, 48, 50, 52, 54
S_D, S_OUT, S_DBG, S_WS = 56, 58, 60, 62

N_KV, N_Q, N_B = 128, 48, 72
ID_Q, ID_B, ID_Z = 128, 176, 248

def stamp(a, idx, on):
    if not on: return
    a("s_memrealtime s[96:97]")
    a("s_waitcnt lgkmcnt(0)")
    a("v_mov_b32 v250, s96")
    a("v_mov_b32 v251, s97")
    a("s_lshl_b32 s98, s2, 7")
    a(f"s_add_u32 s98, s98, {WS_STAMP + idx*8}")
    a("v_mov_b32 v252, s98")
    a("s_mov_b64 s[96:97], exec")
    a("s_mov_b64 exec, 1")
    a(f"global_store_dwordx2 v252, v[250:251], s[{S_WS}:{S_WS+1}]")
    a("s_mov_b64 exec, s[96:97]")

def entry(a, name, nwg):
    a.raw(f".globl {name}")
    a.raw(".p2align 8")
    a.raw(f".type {name},@function")
    a.label(name)
    a(f"s_cmp_ge_u32 s2, {nwg}")
    a(f"s_cbranch_scc1 L_{name}_exit")
    a("s_load_dwordx16 s[40:55], s[0:1], 0")
    a("s_load_dwordx8 s[56:63], s[0:1], 64")
    a("v_lshrrev_b32 v1, 6, v0")
    a("s_nop 0")
    a("v_readfirstlane_b32 s3, v1")
    a("v_and_b32 v1, 63, v0")
    a("s_waitcnt lgkmcnt(0)")

def phi4(a, r, t, consts):
    cl, c1, ce = consts
    a(f"v_pk_mul_f32 v[{t}:{t+1}], v[{r}:{r+1}], v[{cl}:{cl+1}]")
    a(f"v_pk_mul_f32 v[{t+2}:{t+3}], v[{r+2}:{r+3}], v[{cl}:{cl+1}]")
    for i in range(4): a(f"v_exp_f32_e64 v{t+i}, v{t+i} clamp")
    a(f"v_pk_add_f32 v[{r}:{r+1}], v[{r}:{r+1}], v[{c1}:{c1+1}]")
    a(f"v_pk_add_f32 v[{r+2}:{r+3}], v[{r+2}:{r+3}], v[{c1}:{c1+1}]")
    a(f"v_pk_add_f32 v[{t}:{t+1}], v[{t}:{t+1}], v[{ce}:{ce+1}]")
    a(f"v_pk_add_f32 v[{t+2}:{t+3}], v[{t+2}:{t+3}], v[{ce}:{ce+1}]")
    for i in range(4): a(f"v_max_f32 v{r+i}, v{r+i}, v{t+i}")

def load_phi_consts(a, base):
    for i, c in enumerate((LOG2E, LOG2E, ONE_EPS, ONE_EPS, EPS, EPS)):
        a(f"v_mov_b32 v{base+i}, {hex(c)}")
    return (base, base+2, base+4)

def code_prefetch(a, start, end, tag):
    a("s_getpc_b64 s[20:21]")
    a.label(f"L_pf_{tag}")
    a(f"s_sub_u32 s20, s20, L_pf_{tag}-{start}")
    a("s_subb_u32 s21, s21, 0")
    a("s_lshr_b32 s22, s2, 3")
    a("s_and_b32 s22, s22, 31")
    a(f"s_mul_i32 s22, s22, (({end}-{start}+4095)/4096)")
    a("v_add_u32 v2, s22, v1")
    a("v_lshlrev_b32 v2, 7, v2")
    a(f"v_cmp_gt_u32 vcc, (({end}-{start}+4095)/4096), v1")
    a("s_and_saveexec_b64 s[22:23], vcc")
    a("global_load_dword v255, v2, s[20:21]")
    a("s_mov_b64 exec, -1")

def data_prefetch(a, nwg):
    for ptr, nbytes, dst in ((S_W, 576*3456, 253), (S_X, 2048*1152, 254), (S_WO, 576*1152, 255)):
        lines = nbytes // 128
        per = -(-lines // nwg)
        a(f"s_mul_i32 s20, s2, {per}")
        for k in range(-(-per // 64)):
            a(f"v_add_u32 v2, s20, v1")
            if k: a(f"v_add_u32 v2, {64*k}, v2")
            a(f"s_add_u32 s21, s20, {per}")
            a(f"s_min_u32 s21, s21, {lines}")
            a("v_cmp_gt_u32 vcc, s21, v2")
            a("v_lshlrev_b32 v2, 7, v2")
            a("s_and_saveexec_b64 s[22:23], vcc")
            L = a.newlabel("dpf")
            a(f"s_cbranch_execz {L}")
            a(f"global_load_dword v{dst}, v2, s[{ptr}:{ptr+1}]")
            a.label(L)
            a("s_mov_b64 exec, -1")

def code_prefetch_all(a, start, end, tag, dst=255):
    a("s_getpc_b64 s[26:27]")
    a.label(f"L_pfa_{tag}")
    a(f"s_sub_u32 s26, s26, L_pfa_{tag}-{start}")
    a("s_subb_u32 s27, s27, 0")
    a("v_lshlrev_b32 v252, 7, v1")
    a(f"global_load_dword v{dst}, v252, s[26:27]")
    a(f"global_load_dword v{dst}, v252, s[26:27] offset:64")
    a("v_add_u32 v252, 8192, v252")
    a(f"v_cmp_gt_u32 vcc, ({end}-{start}), v252")
    a("s_and_saveexec_b64 s[28:29], vcc")
    a(f"s_cbranch_execz L_pfa_{tag}_x")
    a(f"global_load_dword v{dst}, v252, s[26:27]")
    a.label(f"L_pfa_{tag}_x")
    a("s_mov_b64 exec, -1")
```

```python
from common import *

CV_HE, CV_HO, CV_U = 0, 4160, 8320
CV_WAVE = 13056
CV_Y = 8*CV_WAVE
CV_LDS = CV_Y + 8*4096

def conv_ids(a):
    a("s_and_b32 s21, s20, 7")
    a("s_mul_i32 s21, s21, 9")
    a("s_lshr_b32 s22, s20, 3")
    a("s_add_u32 s21, s21, s22")
    a("s_lshl_b32 s22, s21, 3")
    a("s_add_u32 s22, s22, s3")
    a(f"s_mul_i32 s23, s3, {CV_WAVE}")
    a("s_lshl_b32 s24, s22, 12")

CV_H = 208
def conv_hload(a):
    conv_ids(a)
    srd(a, 16, S_H, S_H+1, 576*4096)
    a("v_lshlrev_b32 v2, 4, v1")
    for j in range(4):
        a(f"buffer_load_dwordx4 v[{CV_H+8*j}:{CV_H+8*j+3}], v2, s[16:19], s24 offen offset:{1024*j} nt")
        a(f"buffer_load_dword v{CV_H+8*j+4}, v2, s[16:19], s24 offen offset:{1024*j+16} nt")
    a("s_lshr_b32 s25, s22, 1")
    a("s_lshl_b32 s25, s25, 2")
    a(f"s_load_dword s64, s[{S_D}:{S_D+1}], s25")

def conv_pre(a, diag):
    a.c("==== conv (pre): Toeplitz copies of the filter, address registers ====")
    conv_ids(a)
    H = CV_H
    a("v_lshlrev_b32 v2, 4, v1")
    a("v_mov_b32 v4, 0"); a("v_mov_b32 v5, 0"); a("v_mov_b32 v6, 0"); a("v_mov_b32 v7, 0")
    a("v_add_u32 v3, s23, v2")
    a("s_mov_b32 exec_lo, -1"); a("s_mov_b32 exec_hi, 0")
    a(f"ds_write_b128 v3, v[4:7] offset:{CV_U+4096}")
    a("s_mov_b64 exec, 3")
    a(f"ds_write_b128 v3, v[4:7] offset:{CV_HE}")
    a(f"ds_write_b128 v3, v[4:7] offset:{CV_HO}")
    a("s_mov_b64 exec, -1")
    a("v_and_b32 v8, 15, v1")
    a("v_lshrrev_b32 v9, 4, v1")
    a("v_lshrrev_b32 v10, 1, v9")
    a("v_and_b32 v11, 1, v9")
    a("v_lshlrev_b32 v12, 4, v10")
    a("v_lshl_add_u32 v12, v11, 3, v12")
    a("v_add_u32 v12, v12, v8")
    a("v_and_b32 v13, 1, v8")
    a("v_add_u32 v12, v12, v13")
    a("v_lshlrev_b32 v12, 1, v12")
    a("v_cmp_eq_u32 vcc, 0, v13")
    a(f"v_mov_b32 v14, {CV_HO}")
    a("v_add_u32 v12, s23, v12")
    a("v_cndmask_b32 v14, 0, v14, vcc")
    a("v_add_u32 v16, v12, v14")
    for t in range(1, 4): a(f"v_add_u32 v{16+t}, {1024*t}, v16")
    a("v_sub_u32 v20, v10, v8")
    a("v_lshlrev_b32 v20, 5, v20")
    a("v_lshl_add_u32 v20, v11, 4, v20")
    a(f"v_add_u32 v20, {CV_U + 32*127 - 3584}, v20")
    a("v_add_u32 v20, s23, v20")
    a("s_waitcnt vmcnt(0)")
    for j in range(4):
        h = H + 8*j
        a(f"ds_write_b128 v3, v[{h}:{h+3}] offset:{CV_HE + 32 + 1024*j}")
        t = 96 + 4*(j & 1)
        for i in range(4): a(f"v_alignbit_b32 v{t+i}, v{h+i+1}, v{h+i}, 16")
        a(f"ds_write_b128 v3, v[{t}:{t+3}] offset:{CV_HO + 32 + 1024*j}")
    a(f"v_lshlrev_b32 v4, 16, v{H}")
    a("s_mov_b64 exec, 1")
    a(f"ds_write_b32 v3, v4 offset:{CV_HO + 28}")
    a("s_mov_b64 exec, -1")
    AD = 24
    a("s_waitcnt lgkmcnt(0)")
    a("s_and_b32 s25, s22, 1")
    a("s_lshl_b32 s25, s25, 4")
    a("s_lshr_b32 s26, s64, s25")
    a("s_and_b32 s26, s26, 0xffff")
    a("v_sub_u32 v4, 15, v8")
    a("v_lshrrev_b32 v5, 3, v4")
    a("v_and_b32 v4, 7, v4")
    a("v_and_b32 v6, 1, v4")
    a("v_lshlrev_b32 v6, 4, v6")
    a("v_mov_b32 v7, s26")
    a("v_lshlrev_b32 v7, v6, v7")
    a("v_lshrrev_b32 v4, 1, v4")
    a("v_cmp_eq_u32 vcc, v5, v9")
    a("s_nop 1")
    a("v_cndmask_b32 v7, 0, v7, vcc")
    for j in range(4):
        a(f"v_cmp_eq_u32 vcc, {j}, v4")
        a("s_nop 1")
        a(f"v_cndmask_b32 v{AD+j}, 0, v7, vcc")

def conv_post(a, sc, diag, wait_inputs):
    a.c("==== conv (post): long causal convolution via Toeplitz MFMA ====")
    AD = 24
    srd(a, 12, S_WS, S_WS+1, WS_SRD_BYTES)
    wait_inputs()
    UU = 64
    for j in range(4):
        a(f"buffer_load_dwordx4 v[{UU+4*j}:{UU+4*j+3}], v2, s[12:15], s24 offen offset:{1024*j}{sc}")
    QQ = 224
    a("v_lshlrev_b32 v4, 5, v8")
    a("v_lshl_add_u32 v4, v9, 3, v4")
    a(f"s_add_u32 s27, s24, {WS_QT}")
    for t in range(8):
        a(f"buffer_load_dwordx2 v[{QQ+2*t}:{QQ+2*t+1}], v4, s[12:15], s27 offen offset:{512*t}{sc}")
    a("s_waitcnt vmcnt(8)")
    for j in range(4):
        a(f"ds_write_b128 v3, v[{UU+4*j}:{UU+4*j+3}] offset:{CV_U + 1024*j}")
    a("s_waitcnt lgkmcnt(0)")
    stamp(a, 5, diag)
    ACCV = 32
    SA = [64, 128]; SB = [96, 160]
    def reads(s):
        out = []
        for j in range(8):
            b = 16 + (j >> 1); o = 128*(j & 1); r = SA[s] + 4*j
            out.append(f"ds_read2_b32 v[{r}:{r+1}], v{b} offset0:{o} offset1:{o+1}")
            out.append(f"ds_read2_b32 v[{r+2}:{r+3}], v{b} offset0:{o+2} offset1:{o+3}")
        B = [f"ds_read_b128 v[{SB[s]+4*i}:{SB[s]+4*i+3}], v20 offset:{512*(7-i)}" for i in range(8)]
        seq = []
        for k in range(8):
            seq += [B[k], out[2*k], out[2*k+1]]
        return seq
    def adv():
        for t in range(4): a(f"v_add_u32 v{16+t}, 64, v{16+t}")
        a("v_add_u32 v20, 64, v20")
    for r in reads(0): a(r)
    adv()
    a("s_waitcnt lgkmcnt(0)")
    for t in range(8):
        a(f"v_mfma_f32_16x16x32_bf16 v[{ACCV+4*t}:{ACCV+4*t+3}], v[{AD}:{AD+3}], v[{SB[0]+4*t}:{SB[0]+4*t+3}], 0")
    pairs = sorted([(i, j) for i in range(8) for j in range(8) if i + j <= 7], key=lambda p: (max(p), p[0]+p[1]))
    def body(s, nxt):
        rs = reads(1 - s) if nxt else []
        k = 0
        for idx, (i, j) in enumerate(pairs):
            if k < len(rs): a(rs[k]); k += 1
            t = i + j
            a(f"v_mfma_f32_16x16x32_bf16 v[{ACCV+4*t}:{ACCV+4*t+3}], v[{SA[s]+4*j}:{SA[s]+4*j+3}], v[{SB[s]+4*i}:{SB[s]+4*i+3}], v[{ACCV+4*t}:{ACCV+4*t+3}]")
        if nxt:
            adv()
            a("s_waitcnt lgkmcnt(0)")
    a("s_mov_b32 s28, 0")
    a.label("L_conv_loop")
    body(0, True)
    body(1, True)
    a("s_add_u32 s28, s28, 1")
    a("s_cmp_lt_u32 s28, 3")
    a("s_cbranch_scc1 L_conv_loop")
    body(0, True)
    body(1, False)
    stamp(a, 6, diag)
    a("s_waitcnt vmcnt(0)")
    a("v_mov_b32 v14, 0xffff0000")
    a("v_lshrrev_b32 v5, 2, v8")
    a("v_xor_b32 v5, v5, v9")
    a("v_lshlrev_b32 v4, 2, v8")
    a("v_add_u32 v4, v4, v5")
    a("v_lshlrev_b32 v4, 3, v4")
    a("s_lshl_b32 s25, s3, 12")
    a(f"s_add_u32 s25, s25, {CV_Y}")
    a("v_add_u32 v4, s25, v4")
    for t in range(8):
        r = ACCV + 4*t; q = QQ + 2*t; u = 64 + 4*(t & 1)
        a(f"v_lshlrev_b32 v{u}, 16, v{q}");   a(f"v_and_b32 v{u+1}, v14, v{q}")
        a(f"v_lshlrev_b32 v{u+2}, 16, v{q+1}"); a(f"v_and_b32 v{u+3}, v14, v{q+1}")
        a(f"v_pk_mul_f32 v[{r}:{r+1}], v[{r}:{r+1}], v[{u}:{u+1}]")
        a(f"v_pk_mul_f32 v[{r+2}:{r+3}], v[{r+2}:{r+3}], v[{u+2}:{u+3}]")
        a(f"v_cvt_pk_bf16_f32 v{u}, v{r}, v{r+1}")
        a(f"v_cvt_pk_bf16_f32 v{u+1}, v{r+2}, v{r+3}")
        a(f"ds_write_b64 v4, v[{u}:{u+1}] offset:{512*t}")
    a("s_waitcnt lgkmcnt(0)")
    a("s_barrier")
    a("v_bfe_u32 v5, v0, 4, 2")
    a("v_xor_b32 v4, v5, v0")
    a("v_lshlrev_b32 v4, 3, v4")
    a(f"v_add_u32 v4, {CV_Y}, v4")
    Y = 64
    for ch in range(8): a(f"ds_read_b64 v[{Y+2*ch}:{Y+2*ch+1}], v4 offset:{4096*ch}")
    srd(a, 16, S_OUT, S_OUT+1, 2048*2304)
    a("v_mul_u32_u24 v5, 9216, v0")
    a("s_lshl_b32 s25, s21, 4")
    a("s_add_u32 s25, s25, 1152")
    a("s_mov_b32 s36, 0x05040100")
    a("s_mov_b32 s37, 0x07060302")
    a("s_waitcnt lgkmcnt(0)")
    for row in range(4):
        d = row >> 1; sel = "s36" if (row & 1) == 0 else "s37"
        o = 96 + 4*row
        for k in range(4):
            a(f"v_perm_b32 v{o+k}, v{Y+2*(2*k+1)+d}, v{Y+2*(2*k)+d}, {sel}")
        so = "s25"
        if row == 0: a(f"buffer_store_dwordx4 v[{o}:{o+3}], v5, s[16:19], s25 offen")
        elif row == 1: a(f"buffer_store_dwordx4 v[{o}:{o+3}], v5, s[16:19], s25 offen offset:2304")
        else:
            if row == 2: a("s_add_u32 s25, s25, 4608")
            a(f"buffer_store_dwordx4 v[{o}:{o+3}], v5, s[16:19], s25 offen offset:{2304*(row-2)}")

def conv_role(a, sc, diag, wait_inputs):
    conv_hload(a)
    conv_pre(a, diag)
    conv_post(a, sc, diag, wait_inputs)
```

```python
from common import *

class G1Cfg:
    def __init__(self, q, ns):
        self.q = q
        self.lab = "q" if q else "kv"
        self.NT = 12 if q else 9
        self.WB = 384 if q else 288
        self.CH = self.WB // 16
        self.NS = ns
        self.SLOT = 16384 + 64*self.WB
        self.NWI = self.CH

def g1_loader(a, c, diag):
    L = c.lab
    srd(a, 12, S_X, S_X+1, 2048*1152)
    srd(a, 16, S_W, S_W+1, 576*3456)
    a("v_lshrrev_b32 v2, 3, v1")
    a("v_and_b32 v3, 7, v1")
    a("v_xor_b32 v3, v3, v2")
    a("v_lshlrev_b32 v3, 4, v3")
    a("v_mul_u32_u24 v2, 1152, v2")
    a("v_add_u32 v2, v2, v3")
    a("s_lshl_b32 s26, s22, 7")
    a("s_lshl_b32 s27, s25, 3")
    a("s_add_u32 s26, s26, s27")
    a("s_mul_i32 s26, s26, 1152")
    a("s_lshl_b32 s29, s25, 10")
    def issue_x():
        for mm in range(4):
            a(f"s_add_u32 m0, s29, {mm*4096}")
            a(f"s_add_u32 s31, s26, {mm*36864}")
            a("buffer_load_dwordx4 v2, s[12:15], s31 offen lds")
    def issue_w(n):
        for mm in range(n):
            a(f"s_add_u32 m0, s29, {16384 + mm*4096}")
            a("s_nop 0")
            a(f"buffer_load_dwordx4 v{4+mm}, s[16:19], s28 offen lds")
    def advance():
        a("s_add_u32 s26, s26, 128")
        a(f"s_add_u32 s28, s28, {64*3456}")
        a(f"s_add_u32 s29, s29, {c.SLOT}")
        a(f"s_cmp_ge_u32 s29, {c.SLOT*c.NS}")
        a(f"s_cselect_b32 s37, {c.SLOT*c.NS}, 0")
        a("s_sub_u32 s29, s29, s37")
    issue_x()
    nmm = (c.NWI + 3)//4
    a("s_lshl_b32 s30, s25, 6")
    if c.q:
        a("s_mul_i32 s34, s23, 384")
        for mm in range(nmm):
            a("v_add_u32 v12, s30, v1")
            if mm: a(f"v_add_u32 v12, {256*mm}, v12")
            a("v_mul_u32_u24 v13, 2731, v12")
            a("v_lshrrev_b32 v13, 16, v13")
            a("v_mul_u32_u24 v14, 24, v13")
            a("v_sub_u32 v12, v12, v14")
            a("v_bfe_u32 v14, v13, 1, 1")
            a("v_bfe_u32 v11, v13, 3, 1")
            a("v_lshl_or_b32 v14, v11, 1, v14")
            a("v_lshlrev_b32 v14, 1, v14")
            a("v_xor_b32 v12, v12, v14")
            a("v_mul_u32_u24 v13, 3456, v13")
            a("v_lshl_add_u32 v13, v12, 4, v13")
            a(f"v_add_u32 v{4+mm}, s34, v13")
    else:
        a("s_mul_i32 s33, s23, 144")
        a("s_add_u32 s34, s33, 1152")
        a("s_add_u32 s35, s33, 2160")
        a("v_mov_b32 v10, s34")
        a("v_mov_b32 v11, s35")
        for mm in range(nmm):
            a("v_add_u32 v12, s30, v1")
            if mm: a(f"v_add_u32 v12, {256*mm}, v12")
            a("v_mul_u32_u24 v13, 3641, v12")
            a("v_lshrrev_b32 v13, 16, v13")
            a("v_mul_u32_u24 v14, 18, v13")
            a("v_sub_u32 v12, v12, v14")
            a("v_and_b32 v14, 8, v13")
            a("v_xor_b32 v14, v14, v12")
            a("v_cmp_gt_u32 vcc, 16, v12")
            a("v_mul_u32_u24 v13, 3456, v13")
            a("s_nop 0")
            a("v_cndmask_b32 v12, v12, v14, vcc")
            a("v_cmp_gt_u32 vcc, 9, v12")
            a("v_lshl_add_u32 v13, v12, 4, v13")
            a("s_nop 0")
            a("v_cndmask_b32 v12, v11, v10, vcc")
            a(f"v_add_u32 v{4+mm}, v12, v13")
    a("s_mov_b32 s28, 0")
    variants = [(nmm, None)] if c.NWI % 4 == 0 else [(nmm, "hi"), (nmm-1, "lo")]
    for nw, tag in variants:
        if tag == "hi":
            a(f"s_cmp_lt_u32 s25, {c.NWI % 4}")
            a(f"s_cbranch_scc0 L_ld_{L}_lo")
        if tag == "lo": a.label(f"L_ld_{L}_lo")
        n = 4 + nw
        issue_w(nw)
        advance(); issue_x(); issue_w(nw)
        a(f"s_waitcnt vmcnt({n})")
        a("s_barrier")
        for _ in range(c.NS - 2):
            advance(); issue_x(); issue_w(nw)
        a(f"s_mov_b32 s36, {c.NS}")
        a.label(f"L_ld_{L}_{tag}_loop")
        a(f"s_waitcnt vmcnt({(c.NS-2)*n})")
        a("s_barrier")
        advance(); issue_x(); issue_w(nw)
        a("s_add_u32 s36, s36, 1")
        a("s_cmp_lt_u32 s36, 9")
        a(f"s_cbranch_scc1 L_ld_{L}_{tag}_loop")
        for k in range(c.NS - 1):
            a(f"s_waitcnt vmcnt({(c.NS-2-k)*n})")
            a("s_barrier")
        a(f"s_branch L_ld_{L}_done")
    a.label(f"L_ld_{L}_done")

ACC = 64
KV_T_BASE = 113408
def g1_compute(a, c, diag):
    L = c.lab
    XF, WF, NW = 16, 32, 8
    a("v_and_b32 v2, 15, v1")
    a("v_lshrrev_b32 v3, 4, v1")
    a("s_lshl_b32 s24, s3, 12")
    a("v_and_b32 v4, 7, v2")
    a("v_xor_b32 v4, v4, v3")
    a("v_lshlrev_b32 v5, 7, v2")
    a("v_lshl_add_u32 v5, v4, 4, v5")
    a("v_add_u32 v6, s24, v5")
    a("v_xor_b32 v7, 64, v6")
    a("v_bfe_u32 v4, v1, 2, 2")
    a("v_lshl_add_u32 v5, v3, 3, v4")
    a(f"v_mul_u32_u24 v5, {c.WB}, v5")
    a("v_and_b32 v8, 3, v1")
    a("v_lshl_add_u32 v5, v8, 3, v5")
    a("v_add_u32 v5, 16384, v5")
    if c.q:
        a("v_lshrrev_b32 v4, 1, v4")
        a("v_and_b32 v8, 1, v3")
        a("v_lshl_or_b32 v4, v8, 1, v4")
        for t in range(4):
            a(f"v_xor_b32 v{8+t}, {t}, v4")
            a(f"v_lshl_add_u32 v{8+t}, v{8+t}, 5, v5")
        nb = 4
    else:
        a("v_and_b32 v4, 1, v3")
        a("v_lshlrev_b32 v4, 7, v4")
        a("v_add_u32 v8, v5, v4")
        a("v_sub_u32 v9, v5, v4")
        a("v_mov_b32 v10, v5")
        nb = 3
    NACC = 2*c.NT*4
    for i in range(NACC): a(f"v_mov_b32 v{ACC+i}, 0")
    a("s_mov_b32 s24, 0")
    a("s_mov_b32 s25, 0")
    AX0, AX1, AW = 12, 13, 236
    def wread(i):
        ks, tau = divmod(i, c.NT)
        if c.q:
            b = AW + (tau & 3); off = 128*(tau >> 2)
        else:
            b = AW + (0 if tau < 4 else (1 if tau < 8 else 2)); off = 32*tau
        r = WF + (i % NW)*4
        off += 32*ks*c.WB
        a(f"ds_read_b64_tr_b16 v[{r}:{r+1}], v{b} offset:{off}")
        a(f"ds_read_b64_tr_b16 v[{r+2}:{r+3}], v{b} offset:{off + 4*c.WB}")
    a.label(f"L_g1{L}_loop")
    a("s_barrier")
    if diag:
        a("s_cmp_eq_u32 s24, 0")
        a(f"s_cbranch_scc0 L_nost_{L}")
        stamp(a, 1, diag)
        a.label(f"L_nost_{L}")
    a(f"v_add_u32 v{AX0}, s25, v6")
    a(f"v_add_u32 v{AX1}, s25, v7")
    for t in range(nb): a(f"v_add_u32 v{AW+t}, s25, v{8+t}")
    a(f"ds_read_b128 v[{XF}:{XF+3}], v{AX0}")
    wread(0)
    a(f"ds_read_b128 v[{XF+4}:{XF+7}], v{AX0} offset:2048")
    D = 5
    for i in range(1, D): wread(i)
    pend = ["x0", "w0", "w0", "x1"] + [f"w{i}" for i in range(1, D) for _ in range(2)]
    def wait_for(names):
        last = max(idx for idx, t in enumerate(pend) if t in names)
        a(f"s_waitcnt lgkmcnt({len(pend) - 1 - last})")
        del pend[:last+1]
    NST = 2*c.NT
    for i in range(NST):
        ks, tau = divmod(i, c.NT)
        if i + D < NST:
            wread(i + D); pend.extend([f"w{i+D}"]*2)
        if i == 2:
            a(f"ds_read_b128 v[{XF+8}:{XF+11}], v{AX1}"); pend.append("y0")
            a(f"ds_read_b128 v[{XF+12}:{XF+15}], v{AX1} offset:2048"); pend.append("y1")
        need = [f"w{i}"]
        if i == 0: need += ["x0"]
        if i == c.NT: need += ["y0", "y1"]
        if any(t in pend for t in need): wait_for([t for t in need if t in pend])
        w = WF + (i % NW)*4
        for st in range(2):
            if i == 0 and st == 1: wait_for(["x1"])
            x = XF + ks*8 + st*4
            acc = ACC + (st*c.NT + tau)*4
            if c.q: a(f"v_mfma_f32_16x16x32_bf16 v[{acc}:{acc+3}], v[{w}:{w+3}], v[{x}:{x+3}], v[{acc}:{acc+3}]")
            else:   a(f"v_mfma_f32_16x16x32_bf16 v[{acc}:{acc+3}], v[{x}:{x+3}], v[{w}:{w+3}], v[{acc}:{acc+3}]")
    a(f"s_add_u32 s25, s25, {c.SLOT}")
    a(f"s_cmp_ge_u32 s25, {c.SLOT*c.NS}")
    a(f"s_cselect_b32 s37, {c.SLOT*c.NS}, 0")
    a("s_sub_u32 s25, s25, s37")
    a("s_add_u32 s24, s24, 1")
    a("s_cmp_lt_u32 s24, 9")
    a(f"s_cbranch_scc1 L_g1{L}_loop")

def q_compute(a, c, diag):
    XF = [16, 32]; WF, NW = 160, 6
    a("v_and_b32 v2, 15, v1")
    a("v_lshrrev_b32 v3, 4, v1")
    a("s_lshr_b32 s30, s3, 1")
    a("s_and_b32 s31, s3, 1")
    a("s_lshl_b32 s24, s30, 13")
    a("v_and_b32 v4, 7, v2")
    a("v_xor_b32 v4, v4, v3")
    a("v_lshlrev_b32 v5, 7, v2")
    a("v_lshl_add_u32 v5, v4, 4, v5")
    a("v_add_u32 v6, s24, v5")
    a("v_xor_b32 v7, 64, v6")
    a("v_bfe_u32 v4, v1, 2, 2")
    a("v_lshl_add_u32 v5, v3, 3, v4")
    a(f"v_mul_u32_u24 v5, {c.WB}, v5")
    a("v_and_b32 v8, 3, v1")
    a("v_lshl_add_u32 v5, v8, 3, v5")
    a("v_add_u32 v5, 16384, v5")
    a("v_lshrrev_b32 v4, 1, v4")
    a("v_and_b32 v8, 1, v3")
    a("v_lshl_or_b32 v4, v8, 1, v4")
    a("s_mul_i32 s32, s31, 6")
    for t in range(6):
        a(f"s_add_u32 s33, s32, {t}")
        a("s_and_b32 s34, s33, 3")
        a("s_lshr_b32 s33, s33, 2")
        a("s_lshl_b32 s33, s33, 7")
        a(f"v_xor_b32 v14, s34, v4")
        a(f"v_lshl_add_u32 v14, v14, 5, v5")
        a(f"v_add_u32 v{8+t}, s33, v14")
    for i in range(96): a(f"v_mov_b32 v{ACC+i}, 0")
    a("s_mov_b32 s24, 0")
    a("s_mov_b32 s25, 0")
    AX0, AX1, AW = 14, 15, 236
    def wread(i):
        ks, t = divmod(i, 6)
        r = WF + (i % NW)*4
        off = 32*ks*c.WB
        a(f"ds_read_b64_tr_b16 v[{r}:{r+1}], v{AW+t} offset:{off}")
        a(f"ds_read_b64_tr_b16 v[{r+2}:{r+3}], v{AW+t} offset:{off + 4*c.WB}")
    a.label("L_g1q_loop")
    a("s_barrier")
    if diag:
        a("s_cmp_eq_u32 s24, 0")
        a("s_cbranch_scc0 L_nost_q")
        stamp(a, 1, diag)
        a.label("L_nost_q")
    a(f"v_add_u32 v{AX0}, s25, v6")
    a(f"v_add_u32 v{AX1}, s25, v7")
    for t in range(6): a(f"v_add_u32 v{AW+t}, s25, v{8+t}")
    pend = []
    def xread(ks, st):
        a(f"ds_read_b128 v[{XF[ks]+4*st}:{XF[ks]+4*st+3}], v{AX0+ks} offset:{2048*st}"); pend.append(f"x{ks}{st}")
    def wr(i): wread(i); pend.extend([f"w{i}"]*2)
    def wait_for(names):
        names = [n for n in names if n in pend]
        if not names: return
        last = max(idx for idx, t in enumerate(pend) if t in names)
        a(f"s_waitcnt lgkmcnt({len(pend) - 1 - last})")
        del pend[:last+1]
    xread(0, 0); wr(0); xread(0, 1); xread(0, 2); xread(0, 3); wr(1); wr(2); wr(3)
    D = 4
    for i in range(12):
        ks, t = divmod(i, 6)
        w = WF + (i % NW)*4
        for st in range(4):
            wait_for([f"w{i}", f"x{ks}{st}"])
            x = XF[ks] + 4*st
            acc = ACC + (st*6 + t)*4
            a(f"v_mfma_f32_16x16x32_bf16 v[{acc}:{acc+3}], v[{w}:{w+3}], v[{x}:{x+3}], v[{acc}:{acc+3}]")
            if st == 1 and i + D < 12: wr(i + D)
            if i in (1, 2, 3, 4) and st == 3: xread(1, i - 1)
    a(f"s_add_u32 s25, s25, {c.SLOT}")
    a(f"s_cmp_ge_u32 s25, {c.SLOT*c.NS}")
    a(f"s_cselect_b32 s37, {c.SLOT*c.NS}, 0")
    a("s_sub_u32 s25, s25, s37")
    a("s_add_u32 s24, s24, 1")
    a("s_cmp_lt_u32 s24, 9")
    a("s_cbranch_scc1 L_g1q_loop")

def q_epilogue(a, c, sc, diag):
    a.c("-- Q epilogue --")
    a("s_barrier")
    cs = load_phi_consts(a, 16)
    T = 24
    srd(a, 12, S_WS, S_WS+1, WS_SRD_BYTES)
    a("v_and_b32 v5, 1, v3")
    a("v_lshlrev_b32 v4, 10, v5")
    a("v_lshl_add_u32 v4, v2, 4, v4")
    a("v_cmp_gt_u32 s[34:35], 2, v3")
    a("s_lshl_b32 s25, s22, 3")
    a("s_lshl_b32 s26, s30, 2")
    a("s_add_u32 s25, s25, s26")
    a("s_mul_i32 s25, s25, 18432")
    a(f"s_add_u32 s25, s25, {WS_PQ}")
    a("s_mul_i32 s27, s23, 12")
    a("s_mul_i32 s26, s31, 6")
    a("s_add_u32 s27, s27, s26")
    P = 32
    grp = 0
    def tile_off(dst, tau):
        a(f"s_add_u32 s28, s27, {tau}")
        a("s_mul_i32 s29, s28, 7282")
        a("s_lshr_b32 s29, s29, 16")
        a("s_mul_i32 s36, s29, 9")
        a("s_sub_u32 s36, s28, s36")
        a("s_lshl_b32 s36, s36, 11")
        a("s_lshl_b32 s29, s29, 8")
        a(f"s_add_u32 {dst}, s29, s36")
    for tp in range(3):
        tile_off("s32", 2*tp); tile_off("s33", 2*tp+1)
        a("v_mov_b32 v6, s33")
        a("v_mov_b32 v7, s32")
        a("v_cndmask_b32 v6, v6, v7, s[34:35]")
        a("v_add_u32 v6, v6, v4")
        for st in range(4):
            p = P + 4*(grp % 4); grp += 1
            accA = ACC + (st*6 + 2*tp)*4; accB = accA + 4
            phi4(a, accA, T, cs); phi4(a, accB, T+4, cs)
            a(f"v_cvt_pk_bf16_f32 v{p}, v{accA}, v{accA+1}")
            a(f"v_cvt_pk_bf16_f32 v{p+1}, v{accA+2}, v{accA+3}")
            a(f"v_cvt_pk_bf16_f32 v{p+2}, v{accB}, v{accB+1}")
            a(f"v_cvt_pk_bf16_f32 v{p+3}, v{accB+2}, v{accB+3}")
            a(f"s_add_u32 s26, s25, {st*18432}")
            a("s_nop 0")
            a(f"v_permlane32_swap_b32 v{p}, v{p+2}")
            a(f"v_permlane32_swap_b32 v{p+1}, v{p+3}")
            a("s_nop 1")
            a(f"v_permlane16_swap_b32 v{p}, v{p+2}")
            a(f"v_permlane16_swap_b32 v{p+1}, v{p+3}")
            a("s_nop 1")
            a(f"buffer_store_dwordx4 v[{p}:{p+3}], v6, s[12:15], s26 offen{sc}")

def kv_epilogue(a, c, sc, diag):
    a.c("-- KV epilogue: phi(K), V -> LDS T[col][s]; kv/z via MFMA; atomics --")
    TS = 272
    TB = KV_T_BASE
    cs = load_phi_consts(a, 16)
    T = 24
    a("v_mov_b32 v5, 0")
    a(f"global_load_dword v60, v5, s[{S_DBG}:{S_DBG+1}] sc0 sc1")
    a("s_barrier")
    a(f"v_mul_u32_u24 v4, {TS}, v2")
    a("v_lshl_add_u32 v4, v3, 3, v4")
    a("s_lshl_b32 s24, s3, 6")
    a(f"s_add_u32 s24, s24, {TB}")
    a("v_add_u32 v4, s24, v4")
    a("v_mov_b32 v6, 0x3f803f80")
    a("v_lshlrev_b32 v7, 2, v1")
    a(f"v_add_u32 v7, {TB}, v7")
    a(f"ds_write_b32 v7, v6 offset:{160*TS}")

    a("v_cmp_gt_u32 s[26:27], 8, v2")
    for tau in range(9):
        for st in range(2):
            r = ACC + (st*9 + tau)*4
            if tau < 4:
                phi4(a, r, T, cs)
            elif tau == 4:
                for i in range(4): a(f"v_mov_b32 v{T+4+i}, v{r+i}")
                phi4(a, r, T, cs)
                for i in range(4): a(f"v_cndmask_b32 v{r+i}, v{T+4+i}, v{r+i}, s[26:27]")
            p = 32 + 2*((tau*2+st) % 8)
            a(f"v_cvt_pk_bf16_f32 v{p}, v{r}, v{r+1}")
            a(f"v_cvt_pk_bf16_f32 v{p+1}, v{r+2}, v{r+3}")
            a(f"ds_write_b64 v4, v[{p}:{p+1}] offset:{16*tau*TS + st*32}")
    a("s_waitcnt lgkmcnt(0)")
    a("s_barrier")
    stamp(a, 10, diag)
    a("s_mul_i32 s24, s3, 18")
    a("v_add_u32 v4, s24, v2")
    a(f"v_mul_u32_u24 v4, {TS}, v4")
    a("v_lshl_add_u32 v4, v3, 4, v4")
    a(f"v_add_u32 v4, {TB}, v4")
    a(f"v_add_u32 v5, {72*TS}, v4")
    a(f"v_add_u32 v6, {16*TS}, v5")
    a("v_lshlrev_b32 v7, 4, v3")
    a(f"v_add_u32 v7, {TB + 160*TS}, v7")
    a("v_cmp_eq_u32 vcc, 2, v2")
    a("s_nop 1")
    a("v_cndmask_b32 v6, v6, v7, vcc")
    F = 64
    def rd(ks):
        a(f"ds_read_b128 v[{F+ks*16}:{F+ks*16+3}], v4 offset:{64*ks}")
        a(f"ds_read_b128 v[{F+ks*16+8}:{F+ks*16+11}], v5 offset:{64*ks}")
        a(f"ds_read_b128 v[{F+ks*16+4}:{F+ks*16+7}], v4 offset:{64*ks + 16*TS}")
        a(f"ds_read_b128 v[{F+ks*16+12}:{F+ks*16+15}], v6 offset:{64*ks}")
    for ks in range(3): rd(ks)
    R = 32
    for ks in range(4):
        a(f"s_waitcnt lgkmcnt({[8, 8, 4, 0][ks]})")
        for dt in range(2):
            for et in range(2):
                r = R + (dt*2+et)*4
                A_ = F + ks*16 + dt*4; B_ = F + ks*16 + 8 + et*4
                cc = f"v[{r}:{r+3}]" if ks else "0"
                a(f"v_mfma_f32_16x16x32_bf16 v[{r}:{r+3}], v[{A_}:{A_+3}], v[{B_}:{B_+3}], {cc}")
        if ks == 0: rd(3)
    SCR = 0
    a(f"s_mul_i32 s27, s3, {18*TS}")
    a(f"s_add_u32 s27, s27, {TB}")
    for i in range(4): a(f"v_mov_b32 v{8+i}, 0")
    a("v_lshlrev_b32 v7, 4, v1")
    a("v_add_u32 v7, s27, v7")
    a("ds_write_b128 v7, v[8:11]")
    a("s_mov_b32 exec_lo, -1"); a("s_mov_b32 exec_hi, 0xffff")
    a("ds_write_b128 v7, v[8:11] offset:1024")
    a("s_mov_b64 exec, -1")
    a("v_mul_u32_u24 v4, 384, v3")
    a("v_lshl_add_u32 v5, v2, 2, v4")
    a("v_add_u32 v5, s27, v5")
    a("v_cmp_eq_u32 vcc, 2, v2")
    a("v_add_u32 v6, 64, v5")
    a("v_add_u32 v7, 8, v6")
    a("v_cndmask_b32 v6, v6, v7, vcc")
    a("s_nop 4")
    for i in range(4): a(f"ds_write_b32 v5, v{R+i} offset:{SCR + 96*i}")
    a("s_mov_b32 exec_lo, 0x00070007")
    a("s_mov_b32 exec_hi, 0x00070007")
    for i in range(4): a(f"ds_write_b32 v6, v{R+4+i} offset:{SCR + 96*i}")
    a("s_mov_b64 exec, 0xffff")
    for i in range(2): a(f"ds_write_b32 v5, v{R+8+i} offset:{SCR + 96*i + 1536}")
    a("s_mov_b64 exec, 7")
    for i in range(2): a(f"ds_write_b32 v6, v{R+12+i} offset:{SCR + 96*i + 1536}")
    a("s_mov_b64 exec, -1")
    a("v_lshlrev_b32 v4, 2, v1")
    a("v_add_u32 v5, s27, v4")
    a("s_waitcnt lgkmcnt(0)")
    for i in range(7): a(f"ds_read_b32 v{64+i}, v5 offset:{SCR + 256*i}")
    srd(a, 12, S_WS, S_WS+1, WS_SRD_BYTES)
    a("s_lshl_b32 s24, s23, 2")
    a("s_add_u32 s24, s24, s3")
    a("s_mul_i32 s24, s24, 1728")
    a(f"s_add_u32 s24, s24, {WS_KVS}")
    a("s_mov_b32 s38, 0")
    a.label("L_kv_flag")
    a("s_waitcnt vmcnt(0)")
    a("v_readfirstlane_b32 s25, v60")
    a("s_cmp_lg_u32 s25, 0")
    a("s_cbranch_scc1 L_kv_go")
    a("s_add_u32 s38, s38, 1")
    a("s_cmp_ge_u32 s38, 100000")
    a("s_cbranch_scc1 L_kv_go")
    a("s_sleep 1")
    a("v_mov_b32 v7, 0")
    a(f"global_load_dword v60, v7, s[{S_DBG}:{S_DBG+1}] sc0 sc1")
    a("s_branch L_kv_flag")
    a.label("L_kv_go")
    stamp(a, 11, diag)
    a("s_waitcnt lgkmcnt(0)")
    for i in range(7):
        if i == 6:
            a("s_mov_b32 exec_lo, -1")
            a("s_mov_b32 exec_hi, 0xffff")
        a(f"buffer_atomic_add_f32 v{64+i}, v4, s[12:15], s24 offen offset:{256*i}")
    a("s_mov_b64 exec, -1")
    stamp(a, 12, diag)

def g1_role(a, q, ns, sc, diag, after):
    c = G1Cfg(q, ns)
    a(f"s_cmp_ge_u32 s3, 4")
    a(f"s_cbranch_scc0 L_g1{c.lab}_compute")
    a("s_sub_u32 s25, s3, 4")
    g1_loader(a, c, diag)
    after("loader")
    a.label(f"L_g1{c.lab}_compute")
    if q: q_compute(a, c, diag)
    else: g1_compute(a, c, diag)
    stamp(a, 2, diag)
    if q: q_epilogue(a, c, sc, diag)
    else: kv_epilogue(a, c, sc, diag)
    after("compute")
```

```python
from common import *

G2_WO = 0
G2_KVB = 590*128
G2_ZT = G2_KVB + 590*48
G2_ZZ = G2_ZT + 32*288
G2_LDS = G2_ZZ + 288

V_L15, V_G, V_T16 = 9, 10, 8
TA, OA, OB, KB0, KB1 = 200, 208, 212, 216, 220
KW = 224
ZD = 233
MA = 236
PQ = 128

def swz(a, dst, row, cu, t1, t2, block=True):
    a(f"v_lshrrev_b32 v{t1}, 3, v{row}")
    if block:
        a(f"v_mul_u32_u24 v{t2}, 3641, v{row}")
        a(f"v_lshrrev_b32 v{t2}, 19, v{t2}")
        a(f"v_add_u32 v{t1}, v{t1}, v{t2}")
    a(f"v_and_b32 v{t1}, 1, v{t1}")
    a(f"v_and_b32 v{t2}, 3, v{row}")
    a(f"v_lshl_or_b32 v{t1}, v{t1}, 2, v{t2}")
    a(f"v_lshrrev_b32 v{t2}, 1, v{cu}")
    a(f"v_xor_b32 v{t1}, v{t1}, v{t2}")
    a(f"v_lshlrev_b32 v{dst}, 7, v{row}")
    a(f"v_lshl_add_u32 v{dst}, v{t1}, 4, v{dst}")
    a(f"v_and_b32 v{t2}, 1, v{cu}")
    a(f"v_lshl_add_u32 v{dst}, v{t2}, 3, v{dst}")

def g2_ids(a):
    a("s_and_b32 s22, s20, 15")
    a("s_lshr_b32 s23, s20, 4")

def g2_dma(a, first_wave, nwaves):
    a.c("==== G2 (dma): wo slice -> LDS, zero fills ====")
    g2_ids(a)
    srd(a, 16, S_WO, S_WO+1, 576*1152)
    a("v_lshrrev_b32 v2, 3, v1")
    a("v_and_b32 v3, 7, v1")
    a("v_and_b32 v4, 3, v2")
    a("v_xor_b32 v3, v3, v4")
    a("v_lshlrev_b32 v3, 4, v3")
    a("v_mul_u32_u24 v2, 1152, v2")
    a("v_add_u32 v2, v2, v3")
    a("s_lshl_b32 s24, s23, 7")
    a(f"s_sub_u32 s27, s3, {first_wave}")
    L = a.newlabel("g2wo")
    a.label(L)
    a("s_mul_i32 s26, s27, 3641")
    a("s_lshr_b32 s26, s26, 16")
    a("s_add_u32 s26, s26, s27")
    a("s_and_b32 s26, s26, 1")
    a("s_lshl_b32 s26, s26, 6")
    a("v_xor_b32 v3, s26, v2")
    a("s_lshl_b32 m0, s27, 10")
    a("s_mul_i32 s25, s27, 9216")
    a("s_add_u32 s25, s25, s24")
    a("buffer_load_dwordx4 v3, s[16:19], s25 offen lds")
    a(f"s_add_u32 s27, s27, {nwaves}")
    a("s_cmp_lt_u32 s27, 72")
    a(f"s_cbranch_scc1 {L}")
    for i in range(4): a(f"v_mov_b32 v{4+i}, 0")
    a(f"v_subrev_u32 v12, {64*first_wave}, v0")
    a("v_lshlrev_b32 v13, 4, v12")
    nthr = 64*nwaves
    a("v_cmp_gt_u32 vcc, 112, v12")
    a("s_and_saveexec_b64 s[26:27], vcc")
    a(f"v_add_u32 v11, {576*128}, v13")
    a("ds_write_b128 v11, v[4:7]")
    a("s_mov_b64 exec, -1")
    a(f"v_add_u32 v11, {G2_KVB}, v13")
    n16 = (590*48 + 9504) // 16
    k = 0
    while k*nthr < n16:
        rem = n16 - k*nthr
        if rem < nthr:
            a(f"s_movk_i32 s38, {rem}")
            a("v_cmp_gt_u32 vcc, s38, v12")
            a("s_and_saveexec_b64 s[26:27], vcc")
        a(f"ds_write_b128 v11, v[4:7] offset:{k*nthr*16}")
        k += 1
    a("s_mov_b64 exec, -1")

def g2_addr(a, diag):
    a.c("==== G2 (addr) ====")
    g2_ids(a)
    a(f"v_lshlrev_b32 v{V_T16}, 4, v0")
    a(f"v_and_b32 v{V_L15}, 15, v1")
    a(f"v_lshrrev_b32 v{V_G}, 4, v1")
    a(f"v_lshrrev_b32 v12, 2, v{V_L15}")
    a(f"v_and_b32 v13, 3, v{V_L15}")
    a("v_lshl_add_u32 v13, v12, 3, v13")
    a("v_mul_u32_u24 v13, 288, v13")
    a(f"v_add_u32 v13, {G2_ZT}, v13")
    a(f"v_add_u32 v14, {4*288}, v13")
    a(f"v_mov_b32 v15, {G2_ZZ}")
    a(f"v_cmp_eq_u32 vcc, v12, v{V_G}")
    a("s_nop 1")
    a(f"v_cndmask_b32 v{ZD}, v15, v13, vcc")
    a(f"v_cndmask_b32 v{ZD+1}, v15, v14, vcc")
    a("s_mul_i32 s24, s3, 18")
    a("v_bfe_u32 v12, v1, 2, 2")
    a("v_and_b32 v21, 3, v1")
    a(f"v_lshl_add_u32 v20, v{V_G}, 3, v12")
    a("v_add_u32 v20, s24, v20")
    for hh in range(2):
        if hh: a("v_add_u32 v20, 4, v20")
        swz(a, 23, 20, 21, 24, 25, block=False)
        for t in range(4): a(f"v_xor_b32 v{TA+4*hh+t}, {32*t}, v23")
    a(f"v_add_u32 v20, s24, v{V_L15}")
    swz(a, 23, 20, V_G, 24, 25, block=False)
    for t in range(4): a(f"v_xor_b32 v{OA+t}, {32*t}, v23")
    a(f"v_lshrrev_b32 v24, 1, v{V_L15}")
    a("v_and_b32 v24, 3, v24")
    a(f"v_and_b32 v25, 1, v{V_L15}")
    a("v_mul_u32_u24 v26, 144, v24")
    a("v_add_u32 v26, v26, v25")
    a("s_add_u32 s25, s24, 16")
    a("v_add_u32 v26, s25, v26")
    swz(a, 27, 26, V_G, 28, 29)
    for t in range(4): a(f"v_xor_b32 v{OB+t}, {32*t}, v27")
    a(f"v_mul_u32_u24 v22, 48, v20")
    a(f"v_lshl_add_u32 v22, v{V_G}, 4, v22")
    a(f"v_add_u32 v22, {G2_KVB}, v22")
    a(f"v_mov_b32 v15, {G2_ZZ}")
    a(f"v_cmp_eq_u32 s[34:35], 3, v{V_G}")
    a("v_add_u32 v23, s25, v25")
    a("v_mul_u32_u24 v23, 48, v23")
    a(f"v_lshl_add_u32 v23, v{V_G}, 4, v23")
    a(f"v_add_u32 v23, {G2_KVB}, v23")
    for g in range(4):
        a(f"v_add_u32 v28, {6912*g}, v22")
        a(f"v_cndmask_b32 v{KB0+g}, v28, v15, s[34:35]")
        a(f"v_lshrrev_b32 v28, 1, v{V_L15}")
        a(f"v_cmp_eq_u32 vcc, {g}, v28")
        a(f"s_andn2_b64 s[36:37], vcc, s[34:35]")
        a(f"v_add_u32 v28, {6912*g}, v23")
        a("s_nop 0")
        a(f"v_cndmask_b32 v{KB1+g}, v15, v28, s[36:37]")
    for i in range(7):
        a(f"v_add_u32 v12, {512*i}, v0")
        a("v_mul_u32_u24 v13, 10923, v12")
        a("v_lshrrev_b32 v13, 16, v13")
        a("v_mul_u32_u24 v14, 6, v13")
        a("v_sub_u32 v14, v12, v14")
        a(f"v_cmp_eq_u32 s[{68+2*i}:{69+2*i}], 5, v14")
        a("v_mul_u32_u24 v14, 3641, v13")
        a("v_lshrrev_b32 v15, 16, v14")
        a("v_lshrrev_b32 v14, 19, v14")
        a("v_mul_u32_u24 v14, 144, v14")
        a("v_sub_u32 v14, v13, v14")
        a("v_mul_u32_u24 v15, 288, v15")
        a("v_lshl_add_u32 v14, v14, 1, v15")
        a(f"v_add_u32 v14, {G2_ZT}, v14")
        a("v_lshlrev_b32 v12, 3, v12")
        a(f"v_add_u32 v12, {G2_KVB}, v12")
        a(f"v_cndmask_b32 v{KW+i}, v12, v14, s[{68+2*i}:{69+2*i}]")
    a(f"v_mul_u32_u24 v12, 144, v{V_G}")
    a("v_bfe_u32 v13, v1, 2, 2")
    a("v_add_u32 v12, v12, v13")
    a("v_lshlrev_b32 v12, 7, v12")
    a("v_and_b32 v14, 3, v1")
    a("v_and_b32 v15, 1, v14")
    a("v_lshl_add_u32 v12, v15, 3, v12")
    a("v_lshrrev_b32 v14, 1, v14")
    a("v_xor_b32 v14, v14, v13")
    a(f"v_and_b32 v15, 1, v{V_G}")
    a("v_lshl_or_b32 v14, v15, 2, v14")
    a("v_lshl_add_u32 v12, v14, 4, v12")
    for par in range(2):
        for ft in range(4):
            a(f"v_xor_b32 v{MA+4*par+ft}, {(32*ft) ^ (64*par)}, v12")

def g2_post(a, sc, diag, wait_kv, wait_pq, opts={}):
    a.c("==== G2 (post): tables, den, fold, normalise, main GEMM ====")
    srd(a, 12, S_WS, S_WS+1, WS_SRD_BYTES)
    a(f"s_mov_b32 s28, s{S_WS}"); a(f"s_and_b32 s29, s{S_WS+1}, 0xffff")
    a(f"s_mov_b32 s30, {WS_KVS + KVS_BYTES}"); a("s_mov_b32 s31, 0x20000")
    a("s_lshl_b32 s25, s22, 3")
    a("s_add_u32 s25, s25, s3")
    a("s_mul_i32 s25, s25, 18432")
    a(f"s_add_u32 s25, s25, {WS_PQ}")
    a("v_lshlrev_b32 v11, 4, v1")
    def pq_loads():
        for ks in range(18):
            a(f"buffer_load_dwordx4 v[{PQ+4*ks}:{PQ+4*ks+3}], v11, s[12:15], s25 offen offset:{1024*(ks % 4)}{sc}")
            if ks % 4 == 3: a("s_add_u32 s25, s25, 4096")
    KV = 64
    def kv_loads():
        for i in range(7):
            a(f"s_mov_b32 s26, {WS_KVS + i*8192}")
            a(f"buffer_load_dwordx4 v[{KV+4*i}:{KV+4*i+3}], v{V_T16}, s[28:31], s26 offen{sc}")
    def tables(after):
        for i in range(7):
            k = KV + 4*i
            a(f"s_waitcnt vmcnt({after + 6 - i})")
            a(f"v_cvt_pk_bf16_f32 v{k}, v{k}, v{k+1}")
            a(f"v_cvt_pk_bf16_f32 v{k+1}, v{k+2}, v{k+3}")
            if i == 6:
                a("s_movk_i32 s38, 384")
                a("v_cmp_gt_u32 vcc, s38, v0")
                a("s_nop 0")
                a(f"s_and_b64 s[26:27], vcc, s[{68+2*i}:{69+2*i}]")
                a(f"s_andn2_b64 exec, vcc, s[{68+2*i}:{69+2*i}]")
                a(f"ds_write_b64 v{KW+i}, v[{k}:{k+1}]")
                a("s_mov_b64 exec, s[26:27]")
            else:
                a(f"s_andn2_b64 exec, -1, s[{68+2*i}:{69+2*i}]")
                a(f"ds_write_b64 v{KW+i}, v[{k}:{k+1}]")
                a(f"s_mov_b64 exec, s[{68+2*i}:{69+2*i}]")
            a(f"ds_write_b16 v{KW+i}, v{k}")
            a("s_mov_b64 exec, -1")
    if wait_pq is not None:
        a("s_cmp_eq_u32 s3, 7")
        a("s_cbranch_scc0 L_g2_nopoll")
        wait_pq(); wait_kv()
        a.label("L_g2_nopoll")
    a("s_waitcnt lgkmcnt(0)")
    a("s_barrier")
    stamp(a, 13, diag)
    if opts.get("pq_late"):
        kv_loads(); tables(0)
    else:
        kv_loads(); pq_loads()
        tables(18)
    a("s_waitcnt lgkmcnt(0)")
    a("s_barrier")
    stamp(a, 5, diag)
    if opts.get("delay5"):
        for _ in range(opts["delay5"]): a("s_sleep 8")
        stamp(a, 10, diag)
    AF = [32, 48]; BF = [64, 72]; MO = 80; M1 = 112
    def fold_reads(g):
        s = g & 1
        a(f"ds_read_b128 v[{BF[s]}:{BF[s]+3}], v{KB0+g}")
        a(f"ds_read_b128 v[{BF[s]+4}:{BF[s]+7}], v{KB1+g}")
        for ft in range(4):
            t = ft ^ (2*(g & 1))
            for hh in range(2):
                r = AF[s] + 4*ft + 2*hh
                a(f"ds_read_b64_tr_b16 v[{r}:{r+1}], v{TA+4*hh+t} offset:{18432*g}")
    def fold_out(g):
        for ft in range(4):
            r = MO + 16*(g & 1) + 4*ft
            t = ft ^ (2*(g & 1))
            a(f"v_cvt_pk_bf16_f32 v{r}, v{r}, v{r+1}")
            a(f"v_cvt_pk_bf16_f32 v{r+1}, v{r+2}, v{r+3}")
            if not opts.get("fnow"): a(f"ds_write_b64 v{OA+t}, v[{r}:{r+1}] offset:{18432*g}")
    fold_reads(0)
    for g in range(4):
        s = g & 1
        a("s_waitcnt lgkmcnt(0)")
        if opts.get("fst") and g > 0: stamp(a, 13 + g, diag)
        if g + 1 < 4: fold_reads(g + 1)
        for ft in range(4):
            r = MO + 16*s + 4*ft
            a(f"v_mfma_f32_16x16x32_bf16 v[{r}:{r+3}], v[{AF[s]+4*ft}:{AF[s]+4*ft+3}], v[{BF[s]}:{BF[s]+3}], 0")
        for ft in range(4):
            r = M1 + 4*ft
            c = f"v[{r}:{r+3}]" if g else "0"
            a(f"v_mfma_f32_16x16x32_bf16 v[{r}:{r+3}], v[{AF[s]+4*ft}:{AF[s]+4*ft+3}], v[{BF[s]+4}:{BF[s]+7}], {c}")
        if g > 0: fold_out(g - 1)
    a("s_nop 1")
    fold_out(3)
    a(f"v_cmp_gt_u32 vcc, 8, v{V_L15}")
    a("s_and_saveexec_b64 s[26:27], vcc")
    for ft in range(4):
        r = M1 + 4*ft
        a(f"v_cvt_pk_bf16_f32 v{r}, v{r}, v{r+1}")
        a(f"v_cvt_pk_bf16_f32 v{r+1}, v{r+2}, v{r+3}")
        a(f"ds_write_b64 v{OB+ft}, v[{r}:{r+1}]")
    a("s_mov_b64 exec, -1")
    stamp(a, 11, diag)
    if opts.get("pq_late"): pq_loads()
    a("s_waitcnt vmcnt(0) lgkmcnt(0)")
    stamp(a, 12, diag)
    ZF = 32; DEN = 16; RD = 24
    zp = []
    def zread(i):
        th, k = divmod(i, 9)
        r = ZF + 4*(i % 12)
        a(f"ds_read_b128 v[{r}:{r+3}], v{ZD+th} offset:{16*i}"); zp.append(i)
    order = [x for k in range(9) for x in (k, 9 + k)]
    for i in order[:9]: zread2 = None
    ZF2 = {i: ZF + 4*(n % 9) for n, i in enumerate(order)}
    def zr(n):
        i = order[n]; th = i // 9
        a(f"ds_read_b128 v[{ZF2[i]}:{ZF2[i]+3}], v{ZD+th} offset:{16*i}")
    for n in range(8): zr(n)
    for n in range(18):
        i = order[n]; th, k = divmod(i, 9)
        outstanding = min(18, n + 8) - n - 1
        a(f"s_waitcnt lgkmcnt({outstanding})")
        c = f"v[{DEN+4*th}:{DEN+4*th+3}]" if k else "0"
        a(f"v_mfma_f32_16x16x32_bf16 v[{DEN+4*th}:{DEN+4*th+3}], v[{ZF2[i]}:{ZF2[i]+3}], v[{PQ+4*i}:{PQ+4*i+3}], {c}")
        if n + 8 < 18: zr(n + 8)
    a("s_nop 7")
    for x in range(8):
        a(f"v_add_f32 v{RD+x}, {hex(EPS)}, v{DEN+x}")
    for x in range(8):
        a(f"v_rcp_f32 v{RD+x}, v{RD+x}")
    a("v_mov_b32 v14, 0xffff0000")
    def norm(ks):
        for p in range(4):
            x = (8*ks + 2*p)//18
            src = PQ + 4*ks + p; t = 32 + 2*p
            rd = RD + x
            a(f"v_lshlrev_b32 v{t}, 16, v{src}")
            a(f"v_and_b32 v{t+1}, v14, v{src}")
            if rd % 2 == 0: a(f"v_pk_mul_f32 v[{t}:{t+1}], v[{t}:{t+1}], v[{rd}:{rd+1}] op_sel_hi:[1,0]")
            else:           a(f"v_pk_mul_f32 v[{t}:{t+1}], v[{t}:{t+1}], v[{rd-1}:{rd}] op_sel:[0,1] op_sel_hi:[1,1]")
        for p in range(4):
            a(f"v_cvt_pk_bf16_f32 v{PQ+4*ks+p}, v{32+2*p}, v{32+2*p+1}")
    if not opts.get("nonorm"):
        for ks in range(18): norm(ks)
    stamp(a, 9, diag)
    a("s_waitcnt lgkmcnt(0)")
    a("s_barrier")
    stamp(a, 6, diag)
    OUT = 16; NSET = 3; MF = [64, 80, 96]
    def mread_ops(ks):
        s = ks % NSET
        return [f"ds_read_b64_tr_b16 v[{MF[s]+4*ft+2*hh}:{MF[s]+4*ft+2*hh+1}], v{MA+4*(ks&1)+ft} offset:{(8*ks+4*hh)*128}" for ft in range(4) for hh in range(2)]
    pend = []
    def issue(ks, lo, hi):
        for idx, r in enumerate(mread_ops(ks)[lo:hi]):
            a(r); pend.append((ks, (lo+idx)//2))
    issue(0, 0, 8); issue(1, 0, 4)
    for ks in range(18):
        s = ks % NSET
        for ft in range(4):
            last = max(i for i, t in enumerate(pend) if t == (ks, ft))
            a(f"s_waitcnt lgkmcnt({len(pend)-1-last})")
            del pend[:last+1]
            c = f"v[{OUT+4*ft}:{OUT+4*ft+3}]" if ks else "0"
            a(f"v_mfma_f32_16x16x32_bf16 v[{OUT+4*ft}:{OUT+4*ft+3}], v[{MF[s]+4*ft}:{MF[s]+4*ft+3}], v[{PQ+4*ks}:{PQ+4*ks+3}], {c}")
            if ft < 2:
                if ks + 1 < 18: issue(ks + 1, 4 + 2*ft, 6 + 2*ft)
            else:
                if ks + 2 < 18: issue(ks + 2, 2*(ft-2), 2*(ft-2) + 2)
    stamp(a, 7, diag)
    srd(a, 16, S_OUT, S_OUT+1, 2048*2304)
    a("s_lshl_b32 s25, s22, 7")
    a("s_lshl_b32 s26, s3, 4")
    a("s_add_u32 s25, s25, s26")
    a("s_mul_i32 s25, s25, 2304")
    a("s_lshl_b32 s26, s23, 7")
    a("s_add_u32 s25, s25, s26")
    a(f"v_mul_u32_u24 v4, 2304, v{V_L15}")
    a(f"v_lshl_add_u32 v4, v{V_G}, 4, v4")
    for pr in range(2):
        A_ = OUT + 8*pr; B_ = A_ + 4; p = 64 + 4*pr
        a(f"v_cvt_pk_bf16_f32 v{p}, v{A_}, v{A_+1}")
        a(f"v_cvt_pk_bf16_f32 v{p+1}, v{A_+2}, v{A_+3}")
        a(f"v_cvt_pk_bf16_f32 v{p+2}, v{B_}, v{B_+1}")
        a(f"v_cvt_pk_bf16_f32 v{p+3}, v{B_+2}, v{B_+3}")
        a("s_nop 1")
        a(f"v_permlane32_swap_b32 v{p}, v{p+2}")
        a(f"v_permlane32_swap_b32 v{p+1}, v{p+3}")
        a("s_nop 1")
        a(f"v_permlane16_swap_b32 v{p}, v{p+2}")
        a(f"v_permlane16_swap_b32 v{p+1}, v{p+3}")
        a("s_nop 1")
        a(f"buffer_store_dwordx4 v[{p}:{p+3}], v4, s[16:19], s25 offen offset:{64*pr}")

def g2_role(a, sc, diag, wait_kv, wait_pq, opts={}):
    g2_dma(a, 0, 8)
    g2_addr(a, diag)
    g2_post(a, sc, diag, wait_kv, wait_pq, opts)
```

```python
from common import *

def z_role(a, diag):
    a.c("==== Z: zero-init ====")
    for i in range(4): a(f"v_mov_b32 v{4+i}, 0")
    a("v_lshlrev_b32 v2, 4, v0")
    a(f"s_mov_b32 s16, s{S_WS}"); a(f"s_and_b32 s17, s{S_WS+1}, 0xffff")
    a(f"s_mov_b32 s18, {WS_FLAG + 0x4000}"); a("s_mov_b32 s19, 0x20000")
    n = (WS_FLAG + 0x4000 - WS_KVS) // 8192
    for i in range(n):
        if (i*8192 >= KVS_BYTES + 2304) and (WS_KVS + (i+1)*8192 <= WS_FLAG): continue
        a(f"s_mov_b32 s21, {WS_KVS + i*8192}")
        a("buffer_store_dwordx4 v[4:7], v2, s[16:19], s21 offen sc0 sc1")
    a("s_waitcnt vmcnt(0)")
    a("s_barrier")
    a("s_cmp_eq_u32 s3, 0")
    a("s_cbranch_scc0 L_z_done")
    a("v_mov_b32 v4, 1")
    a("v_mov_b32 v5, 0")
    a("s_mov_b64 exec, 1")
    a(f"global_store_dword v5, v4, s[{S_DBG}:{S_DBG+1}] sc0 sc1")
    a("s_mov_b64 exec, -1")
    a.label("L_z_done")

def prep_role(a, sc, diag):
    a.c("==== prep: uT (reversed) = (shiftconv(k)*v)^T, qT = q^T ====")
    srd(a, 16, S_K, S_K+1, 2048*1152)
    srd(a, 24, S_V, S_V+1, 2048*1152)
    a("s_lshr_b32 s23, s20, 3")
    a("s_and_b32 s22, s20, 7")
    a("s_lshl_b32 s22, s22, 8")
    a("s_lshl_b32 s21, s3, 6")
    a("s_add_u32 s22, s22, s21")
    a("v_and_b32 v2, 7, v1")
    a("v_lshrrev_b32 v3, 3, v1")
    a("v_lshl_add_u32 v4, v3, 3, s22")
    a("v_mul_u32_u24 v5, 1152, v4")
    a("s_lshl_b32 s37, s23, 7")
    a("v_lshl_add_u32 v6, v2, 4, s37")
    a("v_add_u32 v5, v5, v6")
    a("v_subrev_u32 v7, 3456, v5")
    a("v_cmp_eq_u32 vcc, 0, v4")
    a("v_mov_b32 v8, 0x40000000")
    a("s_movk_i32 s38, 4608")
    a("v_cndmask_b32 v7, v7, v8, vcc")
    K = 16; V = 60; Q = 92; W = 124
    for j in range(3): a(f"buffer_load_dwordx4 v[{K+4*j}:{K+4*j+3}], v7, s[16:19], 0 offen offset:{1152*j} nt")
    for j in range(8):
        so = "0" if j < 4 else "s38"
        a(f"buffer_load_dwordx4 v[{K+12+4*j}:{K+12+4*j+3}], v5, s[16:19], {so} offen offset:{1152*(j%4)} nt")
    for j in range(8):
        so = "0" if j < 4 else "s38"
        a(f"buffer_load_dwordx4 v[{V+4*j}:{V+4*j+3}], v5, s[24:27], {so} offen offset:{1152*(j%4)} nt")
    srd(a, 32, S_SH, S_SH+1, 576*8)
    a("v_lshlrev_b32 v9, 2, v6")
    for j in range(4): a(f"buffer_load_dwordx4 v[{W+4*j}:{W+4*j+3}], v9, s[32:35], 0 offen offset:{16*j}")
    srd(a, 28, S_Q, S_Q+1, 2048*1152)
    for j in range(8):
        so = "0" if j < 4 else "s38"
        a(f"buffer_load_dwordx4 v[{Q+4*j}:{Q+4*j+3}], v5, s[28:31], {so} offen offset:{1152*(j%4)} nt")
    srd(a, 12, S_WS, S_WS+1, WS_SRD_BYTES)
    a("v_lshlrev_b32 v10, 11, v6")
    a("v_lshlrev_b32 v11, 1, v4")
    a("v_add_u32 v12, v10, v11")
    a("v_sub_u32 v13, v10, v11")
    a("v_add_u32 v13, 4080, v13")
    a("v_mov_b32 v14, 0xffff0000")
    KU = 140; VU = 162; WU = 164; U = 172; O = 188
    a("s_waitcnt vmcnt(8)")
    stamp(a, 10, diag)
    for cp in range(4):
        d0, d1, d2, d3 = W+4*cp, W+4*cp+1, W+4*cp+2, W+4*cp+3
        a(f"v_lshlrev_b32 v{WU+0}, 16, v{d0}"); a(f"v_lshlrev_b32 v{WU+1}, 16, v{d2}")
        a(f"v_and_b32 v{WU+2}, v14, v{d0}");    a(f"v_and_b32 v{WU+3}, v14, v{d2}")
        a(f"v_lshlrev_b32 v{WU+4}, 16, v{d1}"); a(f"v_lshlrev_b32 v{WU+5}, 16, v{d3}")
        a(f"v_and_b32 v{WU+6}, v14, v{d1}");    a(f"v_and_b32 v{WU+7}, v14, v{d3}")
        for j in range(11):
            a(f"v_lshlrev_b32 v{KU+2*j}, 16, v{K+4*j+cp}")
            a(f"v_and_b32 v{KU+2*j+1}, v14, v{K+4*j+cp}")
        for r in range(8):
            a(f"v_pk_mul_f32 v[{U+2*r}:{U+2*r+1}], v[{KU+2*r}:{KU+2*r+1}], v[{WU+6}:{WU+7}]")
        for m, w in ((1, 4), (2, 2), (3, 0)):
            for r in range(8):
                u = U + 2*r
                a(f"v_pk_fma_f32 v[{u}:{u+1}], v[{KU+2*(r+m)}:{KU+2*(r+m)+1}], v[{WU+w}:{WU+w+1}], v[{u}:{u+1}]")
        for r in range(8):
            t = KU + 2*r
            a(f"v_lshlrev_b32 v{t}, 16, v{V+4*r+cp}")
            a(f"v_and_b32 v{t+1}, v14, v{V+4*r+cp}")
        for r in range(8):
            a(f"v_pk_mul_f32 v[{U+2*r}:{U+2*r+1}], v[{U+2*r}:{U+2*r+1}], v[{KU+2*r}:{KU+2*r+1}]")
        for half in range(2):
            o = O + 4*half + 8*(cp & 1)
            for j in range(4):
                a(f"v_cvt_pk_bf16_f32 v{o+j}, v{U+2*(7-2*j)+half}, v{U+2*(6-2*j)+half}")
            a(f"s_mov_b32 s39, {WS_UT + (2*cp+half)*4096}")
            a(f"buffer_store_dwordx4 v[{o}:{o+3}], v13, s[12:15], s39 offen{sc}")
    a("s_waitcnt vmcnt(8)")
    stamp(a, 11, diag)
    a("s_mov_b32 s36, 0x05040100")
    a("s_mov_b32 s37, 0x07060302")
    for cp in range(4):
        for half in range(2):
            o = 16 + 4*(2*cp + half)
            sel = "s36" if half == 0 else "s37"
            for j in range(4):
                a(f"v_perm_b32 v{o+j}, v{Q+4*(2*j+1)+cp}, v{Q+4*(2*j)+cp}, {sel}")
            a(f"s_mov_b32 s39, {WS_QT + (2*cp+half)*4096}")
            a(f"buffer_store_dwordx4 v[{o}:{o+3}], v12, s[12:15], s39 offen{sc}")
```

```python
from common import *

FLAG_STRIDE = 64
FL_PREP, FL_Q, FL_KV = 0, 80, 128

SPIN_MAX = 100000
_uid = [0]
def _lab(n):
    _uid[0] += 1
    return f"L_{n}_{_uid[0]}"

def wait_dbg(a):
    L = _lab("wdbg")
    a("v_mov_b32 v244, 0")
    a("s_mov_b32 s67, 0")
    a.label(L)
    a(f"global_load_dword v245, v244, s[{S_DBG}:{S_DBG+1}] sc0 sc1")
    a("s_waitcnt vmcnt(0)")
    a("v_readfirstlane_b32 s66, v245")
    a("s_cmp_lg_u32 s66, 0")
    a(f"s_cbranch_scc1 {L}_ok")
    a("s_sleep 1")
    a("s_add_u32 s67, s67, 1")
    a(f"s_cmp_lt_u32 s67, {SPIN_MAX}")
    a(f"s_cbranch_scc1 {L}")
    a.label(f"{L}_ok")

def flag_store(a, idx_sgpr):
    a(f"s_lshl_b32 s66, {idx_sgpr}, 6")
    a(f"s_add_u32 s66, s66, {WS_FLAG}")
    a("v_mov_b32 v244, s66")
    a("v_mov_b32 v245, 1")
    a("s_mov_b64 exec, 1")
    a(f"global_store_dword v244, v245, s[{S_WS}:{S_WS+1}] sc0 sc1")
    a("s_mov_b64 exec, -1")

def poll(a, addr_regs):
    L = _lab("poll")
    a("s_mov_b32 s67, 0")
    a.label(L)
    for i, r in enumerate(addr_regs):
        a(f"global_load_dword v{246+i}, v{r}, s[{S_WS}:{S_WS+1}] sc0 sc1")
    a("s_waitcnt vmcnt(0)")
    for i in range(1, len(addr_regs)): a(f"v_and_b32 v246, v246, v{246+i}")
    a("v_cmp_eq_u32 vcc, 0, v246")
    a("s_nop 1")
    a("s_cmp_eq_u64 vcc, 0")
    a(f"s_cbranch_scc1 {L}_ok")
    a("s_sleep 1")
    a("s_add_u32 s67, s67, 1")
    a(f"s_cmp_lt_u32 s67, {SPIN_MAX}")
    a(f"s_cbranch_scc1 {L}")
    a.label(f"{L}_ok")
```

```python
import sys
from common import *
from g1 import *
from prep import *
from conv import *
from g2 import *
from sync import *
NAME = "concat_heads__linear_attn_block__ssm_conv_h3__prompt"
LDS = 163840

def kd(a, name, vgpr, sgpr=102, acc=None):
    a.raw(f".amdhsa_kernel {name}")
    a.raw(f"  .amdhsa_next_free_vgpr {vgpr}")
    a.raw(f"  .amdhsa_next_free_sgpr {sgpr}")
    a.raw(f"  .amdhsa_accum_offset {acc or vgpr}")
    a.raw("  .amdhsa_group_segment_fixed_size 0")
    a.raw("  .amdhsa_kernarg_size 96")
    a.raw("  .amdhsa_user_sgpr_count 2")
    a.raw("  .amdhsa_user_sgpr_kernarg_segment_ptr 1")
    a.raw("  .amdhsa_system_sgpr_workgroup_id_x 1")
    a.raw(".end_amdhsa_kernel")

def phase1_ids(a):
    a(f"s_cmp_ge_u32 s2, {ID_B}")
    a("s_cbranch_scc1 L_roleB")
    a(f"s_cmp_ge_u32 s2, {ID_Q}")
    a("s_cbranch_scc1 L_roleQ")

def k1(a, diag, nskv, nsq, opts):
    name = "k1_kernel"
    entry(a, name, ID_Z + 1)
    if opts.get("pf"):
        a("s_cmp_eq_u32 s3, 3")
        a("s_cbranch_scc0 L_k1_nopf")
        code_prefetch(a, name, f"L_{name}_exit", "k1")
        a.label("L_k1_nopf")
    stamp(a, 0, diag)
    phase1_ids(a)
    a("s_and_b32 s20, s2, 7"); a("s_lshr_b32 s21, s2, 3")
    a("s_lshr_b32 s22, s20, 1"); a("s_lshl_b32 s22, s22, 2"); a("s_and_b32 s23, s21, 3"); a("s_add_u32 s22, s22, s23")
    a("s_and_b32 s23, s20, 1"); a("s_lshl_b32 s23, s23, 2"); a("s_lshr_b32 s24, s21, 2"); a("s_add_u32 s23, s23, s24")
    g1_role(a, False, nskv, "", diag, lambda k: a("s_endpgm"))
    a.label("L_roleQ")
    a("s_and_b32 s20, s2, 7"); a(f"s_sub_u32 s21, s2, {ID_Q}"); a("s_lshr_b32 s21, s21, 3")
    a("s_lshl_b32 s22, s20, 1"); a("s_and_b32 s23, s21, 1"); a("s_add_u32 s22, s22, s23")
    a("s_lshr_b32 s23, s21, 1")
    g1_role(a, True, nsq, "", diag, lambda k: a("s_endpgm"))
    a.label("L_roleB")
    a(f"s_cmp_eq_u32 s2, {ID_Z}")
    a("s_cbranch_scc1 L_roleZ")
    a(f"s_sub_u32 s20, s2, {ID_B}")
    a("s_cmp_ge_u32 s3, 4")
    a("s_cbranch_scc1 L_k1_kernel_exit")
    prep_role(a, "", diag)
    if diag: a("s_waitcnt vmcnt(0)")
    stamp(a, 3, diag)
    a("s_endpgm")
    a.label("L_roleZ")
    z_role(a, diag)
    a.label(f"L_{name}_exit")
    a("s_endpgm")

def k2(a, diag, opts):
    name = "k2_kernel"
    entry(a, name, ID_Z)
    if opts.get("pf"):
        a("s_cmp_eq_u32 s3, 3")
        a("s_cbranch_scc0 L_k2_nopf")
        code_prefetch(a, name, f"L_{name}_exit", "k2")
        a.label("L_k2_nopf")
    stamp(a, 4, diag)
    a(f"s_cmp_ge_u32 s2, {ID_B}")
    a("s_cbranch_scc1 L_k2_conv")
    a("s_cmp_lt_u32 s2, 96")
    a("s_cbranch_scc1 L_k2_lo")
    a(f"s_cmp_lt_u32 s2, {ID_Q}")
    a(f"s_cbranch_scc1 L_{name}_exit")
    a("s_sub_u32 s20, s2, 32")
    a("s_branch L_k2_g2")
    a.label("L_k2_lo")
    a("s_mov_b32 s20, s2")
    a.label("L_k2_g2")
    g2_role(a, "", diag, None, None, opts)
    if diag: a("s_waitcnt vmcnt(0)")
    stamp(a, 8, diag)
    a("s_endpgm")
    a.label("L_k2_conv")
    a(f"s_sub_u32 s20, s2, {ID_B}")
    conv_role(a, "", diag, lambda: None)
    if diag: a("s_waitcnt vmcnt(0)")
    stamp(a, 8, diag)
    a.label(f"L_{name}_exit")
    a("s_endpgm")

def k3(a, sel):
    name = "k3_kernel"
    entry(a, name, 1)
    a("s_cmp_eq_u32 s3, 0")
    a(f"s_cbranch_scc0 L_{name}_exit")
    a(f"v_mov_b32 v2, {WS_STAMP}")
    a(f"global_load_dword v3, v2, s[{S_WS}:{S_WS+1}] sc0 sc1")
    a("v_mov_b32 v4, 0")
    for i, (wg, idx) in enumerate(sel):
        a(f"v_cmp_eq_u32 vcc, {i}, v1")
        a(f"v_mov_b32 v5, {WS_STAMP + wg*128 + idx*8}")
        a("s_nop 0")
        a("v_cndmask_b32 v4, v4, v5, vcc")
    a("v_cmp_gt_u32 vcc, 16, v1")
    a("s_and_saveexec_b64 s[20:21], vcc")
    a(f"global_load_dword v6, v4, s[{S_WS}:{S_WS+1}] sc0 sc1")
    a("s_waitcnt vmcnt(0)")
    a("v_sub_u32 v6, v6, v3")
    a("v_lshlrev_b32 v7, 2, v1")
    a(f"global_store_dword v7, v6, s[{S_DBG}:{S_DBG+1}]")
    a.label(f"L_{name}_exit")
    a("s_endpgm")

def fused(a, diag, opts):
    name = NAME + "_kernel"
    sc = {0: " sc0 sc1", 1: " sc1", 2: ""}[opts.get("sc", 1)]
    entry(a, name, ID_Z + 1)
    if opts.get("pf", 1):
        a("s_cmp_eq_u32 s3, 3")
        a("s_cbranch_scc0 L_nopf")
        code_prefetch(a, name, f"L_{name}_exit", "k")
        a.label("L_nopf")
    if opts.get("dpf", 1):
        a("s_cmp_eq_u32 s3, 2")
        a("s_cbranch_scc0 L_nodpf")
        data_prefetch(a, ID_Z + 1)
        a.label("L_nodpf")
    stamp(a, 0, diag)
    phase1_ids(a)
    def g2_index():
        a("s_sub_u32 s20, s2, 32")
        a(f"s_cmp_ge_u32 s2, {ID_Q}")
        a("s_cselect_b32 s20, s20, s2")
        a("s_cmp_ge_u32 s20, 96")
        a("s_cselect_b32 s21, 1, 0")
        a(f"s_cmp_ge_u32 s2, {ID_Q}")
        a("s_cselect_b32 s21, 0, s21")
        a("s_cmp_eq_u32 s21, 1")
    def after_g1(q):
        def f(kind):
            L = "q" if q else "kv"
            if kind == "loader":
                def dma():
                    g2_index()
                    a(f"s_cbranch_scc1 L_{L}_nodma")
                    g2_dma(a, 4, 4)
                    a.label(f"L_{L}_nodma")
                a("s_barrier")
                early = opts.get("dma_early", 1) and not q
                if not q: a("s_barrier")
                if early: dma()
                a("s_barrier")
                if not early: dma()
                a("s_branch L_A_join")
            else:
                a("s_waitcnt vmcnt(0)")
                a("s_barrier")
                a("s_cmp_eq_u32 s3, 0")
                a("s_cbranch_scc0 L_A_join")
                if q:
                    wait_dbg(a)
                    a(f"s_sub_u32 s20, s2, {ID_Q - FL_Q}")
                else:
                    a(f"s_add_u32 s20, s2, {FL_KV}")
                flag_store(a, "s20")
                a("s_branch L_A_join")
        return f
    a("s_and_b32 s20, s2, 7"); a("s_lshr_b32 s21, s2, 3")
    a("s_lshr_b32 s22, s20, 1"); a("s_lshl_b32 s22, s22, 2"); a("s_and_b32 s23, s21, 3"); a("s_add_u32 s22, s22, s23")
    a("s_and_b32 s23, s20, 1"); a("s_lshl_b32 s23, s23, 2"); a("s_lshr_b32 s24, s21, 2"); a("s_add_u32 s23, s23, s24")
    g1_role(a, False, opts.get("nskv", 4), sc, diag, after_g1(False))
    a.label("L_roleQ")
    a("s_and_b32 s20, s2, 7"); a(f"s_sub_u32 s21, s2, {ID_Q}"); a("s_lshr_b32 s21, s21, 3")
    a("s_lshl_b32 s22, s20, 1"); a("s_and_b32 s23, s21, 1"); a("s_add_u32 s22, s22, s23")
    a("s_lshr_b32 s23, s21, 1")
    g1_role(a, True, opts.get("nsq", 3), sc, diag, after_g1(True))
    a.label("L_A_join")
    stamp(a, 4, diag)
    g2_index()
    a(f"s_cbranch_scc1 L_{name}_exit")
    if opts.get("pf2"):
        a("s_cmp_eq_u32 s3, 6")
        a("s_cbranch_scc0 L_nopf2")
        code_prefetch_all(a, "L_A_join", "L_roleB", "g2")
        a.label("L_nopf2")
    g2_addr(a, diag)
    def wait_pq():
        wait_dbg(a)
        a("v_min_u32 v248, 2, v1")
        a("v_lshlrev_b32 v248, 4, v248")
        a("s_and_b32 s66, s22, 1")
        a("s_lshl_b32 s66, s66, 3")
        a("s_lshr_b32 s67, s22, 1")
        a("s_add_u32 s66, s66, s67")
        a(f"s_add_u32 s66, s66, {FL_Q}")
        a("v_add_u32 v248, s66, v248")
        a("v_lshlrev_b32 v248, 6, v248")
        a(f"v_add_u32 v248, {WS_FLAG}, v248")
        poll(a, [248])
    def wait_kv():
        a("v_lshlrev_b32 v248, 6, v1")
        a(f"v_add_u32 v249, {WS_FLAG + (FL_KV+64)*64}, v248")
        a(f"v_add_u32 v248, {WS_FLAG + FL_KV*64}, v248")
        poll(a, [248, 249])
    g2_post(a, sc, diag, wait_kv, wait_pq, opts)
    if diag: a("s_waitcnt vmcnt(0)")
    stamp(a, 8, diag)
    a("s_endpgm")
    a.label("L_roleB")
    a(f"s_cmp_eq_u32 s2, {ID_Z}")
    a("s_cbranch_scc1 L_roleZ")
    a(f"s_sub_u32 s20, s2, {ID_B}")
    conv_hload(a)
    a("s_cmp_ge_u32 s3, 4")
    a("s_cbranch_scc1 L_B_noprep")
    prep_role(a, sc, diag)
    a.label("L_B_noprep")
    conv_pre(a, diag)
    stamp(a, 3, diag)
    a("s_barrier")
    a("s_cmp_eq_u32 s3, 7")
    a("s_cbranch_scc0 L_B_wait")
    wait_dbg(a)
    flag_store(a, "s20")
    a("s_lshr_b32 s66, s21, 3")
    a("s_lshl_b32 s66, s66, 3")
    a("v_and_b32 v248, 7, v1")
    a("v_add_u32 v248, s66, v248")
    a("v_lshlrev_b32 v248, 6, v248")
    a(f"v_add_u32 v248, {WS_FLAG + FL_PREP*64}, v248")
    poll(a, [248])
    a.label("L_B_wait")
    a("s_barrier")
    stamp(a, 4, diag)
    conv_post(a, sc, diag, lambda: None)
    if diag: a("s_waitcnt vmcnt(0)")
    stamp(a, 8, diag)
    a("s_endpgm")
    a.label("L_roleZ")
    z_role(a, diag)
    a.label(f"L_{name}_exit")
    a("s_endpgm")
    a.raw(".fill 1024, 4, 0xbf810000")

def main_fused(out, diag, opts):
    a = A()
    a.raw(f"; @launch grid=({ID_Z+1},1,1) block=(512,1,1) lds={LDS}")
    a.raw('.amdgcn_target "amdgcn-amd-amdhsa--gfx950"')
    a.raw(".text")
    fused(a, diag, opts)
    a.raw('.section .rodata,"a"')
    a.raw(".p2align 6")
    kd(a, NAME + "_kernel", 256)
    open(out, "w").write(a.text())

def main(out, diag, opts):
    a = A()
    a.raw(f"; @launch kernel=k1_kernel grid=({ID_Z+1},1,1) block=(512,1,1) lds={LDS}")
    a.raw(f"; @launch kernel=k2_kernel grid=({ID_Z},1,1) block=(512,1,1) lds={LDS}")
    if opts.get("k3"): a.raw("; @launch kernel=k3_kernel grid=(1,1,1) block=(64,1,1) lds=0")
    a.raw('.amdgcn_target "amdgcn-amd-amdhsa--gfx950"')
    a.raw(".text")
    k1(a, diag, opts.get("nskv", 4), opts.get("nsq", 3), opts)
    k2(a, diag, opts)
    if opts.get("k3"):
        k3(a, [(0,1),(0,2),(0,3),(130,2),(130,3),(180,3),(0,4),(0,5),(0,6),(0,7),(0,8),(180,4),(180,5),(180,6),(180,8),(247,8)])
    a.raw('.section .rodata,"a"')
    a.raw(".p2align 6")
    kd(a, "k1_kernel", 256)
    a.raw(".p2align 6")
    kd(a, "k2_kernel", 256)
    if opts.get("k3"):
        a.raw(".p2align 6")
        kd(a, "k3_kernel", 256)
    open(out, "w").write(a.text())

if __name__ == "__main__":
    out = sys.argv[1]; diag = "diag" in sys.argv
    opts = {k: int(v) for k, v in (x.split("=") for x in sys.argv[2:] if "=" in x)}
    (main if opts.get('multi') else main_fused)(out, diag, opts)
```

```python
from common import *

CV_HE, CV_HO, CV_U = 0, 4160, 8320
CV_WAVE = 13056
CV_Y = 8*CV_WAVE
CV_LDS = CV_Y + 8*4096

def conv_ids(a):
    a("s_and_b32 s21, s20, 7")
    a("s_mul_i32 s21, s21, 9")
    a("s_lshr_b32 s22, s20, 3")
    a("s_add_u32 s21, s21, s22")
    a("s_lshl_b32 s22, s21, 3")
    a("s_add_u32 s22, s22, s3")
    a(f"s_mul_i32 s23, s3, {CV_WAVE}")
    a("s_lshl_b32 s24, s22, 12")

CV_H = 208
def conv_hload(a):
    conv_ids(a)
    srd(a, 16, S_H, S_H+1, 576*4096)
    a("v_lshlrev_b32 v2, 4, v1")
    for j in range(4):
        a(f"buffer_load_dwordx4 v[{CV_H+8*j}:{CV_H+8*j+3}], v2, s[16:19], s24 offen offset:{1024*j} nt")
        a(f"buffer_load_dword v{CV_H+8*j+4}, v2, s[16:19], s24 offen offset:{1024*j+16} nt")
    a("s_lshr_b32 s25, s22, 1")
    a("s_lshl_b32 s25, s25, 2")
    a(f"s_load_dword s64, s[{S_D}:{S_D+1}], s25")

def conv_pre(a, diag):
    a.c("==== conv (pre): Toeplitz copies of the filter, address registers ====")
    conv_ids(a)
    H = CV_H
    a("v_lshlrev_b32 v2, 4, v1")
    a("v_mov_b32 v4, 0"); a("v_mov_b32 v5, 0"); a("v_mov_b32 v6, 0"); a("v_mov_b32 v7, 0")
    a("v_add_u32 v3, s23, v2")
    a("s_mov_b32 exec_lo, -1"); a("s_mov_b32 exec_hi, 0")
    a(f"ds_write_b128 v3, v[4:7] offset:{CV_U+4096}")
    a("s_mov_b64 exec, 3")
    a(f"ds_write_b128 v3, v[4:7] offset:{CV_HE}")
    a(f"ds_write_b128 v3, v[4:7] offset:{CV_HO}")
    a("s_mov_b64 exec, -1")
    a("v_and_b32 v8, 15, v1")
    a("v_lshrrev_b32 v9, 4, v1")
    a("v_lshrrev_b32 v10, 1, v9")
    a("v_and_b32 v11, 1, v9")
    a("v_lshlrev_b32 v12, 4, v10")
    a("v_lshl_add_u32 v12, v11, 3, v12")
    a("v_add_u32 v12, v12, v8")
    a("v_and_b32 v13, 1, v8")
    a("v_add_u32 v12, v12, v13")
    a("v_lshlrev_b32 v12, 1, v12")
    a("v_cmp_eq_u32 vcc, 0, v13")
    a(f"v_mov_b32 v14, {CV_HO}")
    a("v_add_u32 v12, s23, v12")
    a("v_cndmask_b32 v14, 0, v14, vcc")
    a("v_add_u32 v16, v12, v14")
    for t in range(1, 4): a(f"v_add_u32 v{16+t}, {1024*t}, v16")
    a("v_sub_u32 v20, v10, v8")
    a("v_lshlrev_b32 v20, 5, v20")
    a("v_lshl_add_u32 v20, v11, 4, v20")
    a(f"v_add_u32 v20, {CV_U + 32*127 - 3584}, v20")
    a("v_add_u32 v20, s23, v20")
    a("s_waitcnt vmcnt(0)")
    for j in range(4):
        h = H + 8*j
        a(f"ds_write_b128 v3, v[{h}:{h+3}] offset:{CV_HE + 32 + 1024*j}")
        t = 96 + 4*(j & 1)
        for i in range(4): a(f"v_alignbit_b32 v{t+i}, v{h+i+1}, v{h+i}, 16")
        a(f"ds_write_b128 v3, v[{t}:{t+3}] offset:{CV_HO + 32 + 1024*j}")
    a(f"v_lshlrev_b32 v4, 16, v{H}")
    a("s_mov_b64 exec, 1")
    a(f"ds_write_b32 v3, v4 offset:{CV_HO + 28}")
    a("s_mov_b64 exec, -1")
    AD = 24
    a("s_waitcnt lgkmcnt(0)")
    a("s_and_b32 s25, s22, 1")
    a("s_lshl_b32 s25, s25, 4")
    a("s_lshr_b32 s26, s64, s25")
    a("s_and_b32 s26, s26, 0xffff")
    a("v_sub_u32 v4, 15, v8")
    a("v_lshrrev_b32 v5, 3, v4")
    a("v_and_b32 v4, 7, v4")
    a("v_and_b32 v6, 1, v4")
    a("v_lshlrev_b32 v6, 4, v6")
    a("v_mov_b32 v7, s26")
    a("v_lshlrev_b32 v7, v6, v7")
    a("v_lshrrev_b32 v4, 1, v4")
    a("v_cmp_eq_u32 vcc, v5, v9")
    a("s_nop 1")
    a("v_cndmask_b32 v7, 0, v7, vcc")
    for j in range(4):
        a(f"v_cmp_eq_u32 vcc, {j}, v4")
        a("s_nop 1")
        a(f"v_cndmask_b32 v{AD+j}, 0, v7, vcc")

def conv_post(a, sc, diag, wait_inputs, osc=''):
    a.c("==== conv (post): long causal convolution via Toeplitz MFMA ====")
    AD = 24
    srd(a, 12, S_WS, S_WS+1, WS_SRD_BYTES)
    wait_inputs()
    UU = 64
    for j in range(4):
        a(f"buffer_load_dwordx4 v[{UU+4*j}:{UU+4*j+3}], v2, s[12:15], s24 offen offset:{1024*j}{sc}")
    QQ = 224
    a("v_lshlrev_b32 v4, 5, v8")
    a("v_lshl_add_u32 v4, v9, 3, v4")
    a(f"s_add_u32 s27, s24, {WS_QT}")
    for t in range(8):
        a(f"buffer_load_dwordx2 v[{QQ+2*t}:{QQ+2*t+1}], v4, s[12:15], s27 offen offset:{512*t}{sc}")
    a("s_waitcnt vmcnt(8)")
    for j in range(4):
        a(f"ds_write_b128 v3, v[{UU+4*j}:{UU+4*j+3}] offset:{CV_U + 1024*j}")
    a("s_waitcnt lgkmcnt(0)")
    stamp(a, 5, diag)
    ACCV = 32
    SA = [64, 128]; SB = [96, 160]
    def reads(s):
        out = []
        for j in range(8):
            b = 16 + (j >> 1); o = 128*(j & 1); r = SA[s] + 4*j
            out.append(f"ds_read2_b32 v[{r}:{r+1}], v{b} offset0:{o} offset1:{o+1}")
            out.append(f"ds_read2_b32 v[{r+2}:{r+3}], v{b} offset0:{o+2} offset1:{o+3}")
        B = [f"ds_read_b128 v[{SB[s]+4*i}:{SB[s]+4*i+3}], v20 offset:{512*(7-i)}" for i in range(8)]
        seq = []
        for k in range(8):
            seq += [B[k], out[2*k], out[2*k+1]]
        return seq
    def adv():
        for t in range(4): a(f"v_add_u32 v{16+t}, 64, v{16+t}")
        a("v_add_u32 v20, 64, v20")
    for r in reads(0): a(r)
    adv()
    a("s_waitcnt lgkmcnt(0)")
    for t in range(8):
        a(f"v_mfma_f32_16x16x32_bf16 v[{ACCV+4*t}:{ACCV+4*t+3}], v[{AD}:{AD+3}], v[{SB[0]+4*t}:{SB[0]+4*t+3}], 0")
    pairs = sorted([(i, j) for i in range(8) for j in range(8) if i + j <= 7], key=lambda p: (max(p), p[0]+p[1]))
    def body(s, nxt):
        rs = reads(1 - s) if nxt else []
        k = 0
        for idx, (i, j) in enumerate(pairs):
            if k < len(rs): a(rs[k]); k += 1
            t = i + j
            a(f"v_mfma_f32_16x16x32_bf16 v[{ACCV+4*t}:{ACCV+4*t+3}], v[{SA[s]+4*j}:{SA[s]+4*j+3}], v[{SB[s]+4*i}:{SB[s]+4*i+3}], v[{ACCV+4*t}:{ACCV+4*t+3}]")
        if nxt:
            adv()
            a("s_waitcnt lgkmcnt(0)")
    a("s_mov_b32 s28, 0")
    a.label("L_conv_loop")
    body(0, True)
    body(1, True)
    a("s_add_u32 s28, s28, 1")
    a("s_cmp_lt_u32 s28, 3")
    a("s_cbranch_scc1 L_conv_loop")
    body(0, True)
    body(1, False)
    stamp(a, 6, diag)
    a("s_waitcnt vmcnt(0)")
    a("v_mov_b32 v14, 0xffff0000")
    a("v_lshrrev_b32 v5, 2, v8")
    a("v_xor_b32 v5, v5, v9")
    a("v_lshlrev_b32 v4, 2, v8")
    a("v_add_u32 v4, v4, v5")
    a("v_lshlrev_b32 v4, 3, v4")
    a("s_lshl_b32 s25, s3, 12")
    a(f"s_add_u32 s25, s25, {CV_Y}")
    a("v_add_u32 v4, s25, v4")
    for t in range(8):
        r = ACCV + 4*t; q = QQ + 2*t; u = 64 + 4*(t & 1)
        a(f"v_lshlrev_b32 v{u}, 16, v{q}");   a(f"v_and_b32 v{u+1}, v14, v{q}")
        a(f"v_lshlrev_b32 v{u+2}, 16, v{q+1}"); a(f"v_and_b32 v{u+3}, v14, v{q+1}")
        a(f"v_pk_mul_f32 v[{r}:{r+1}], v[{r}:{r+1}], v[{u}:{u+1}]")
        a(f"v_pk_mul_f32 v[{r+2}:{r+3}], v[{r+2}:{r+3}], v[{u+2}:{u+3}]")
        a(f"v_cvt_pk_bf16_f32 v{u}, v{r}, v{r+1}")
        a(f"v_cvt_pk_bf16_f32 v{u+1}, v{r+2}, v{r+3}")
        a(f"ds_write_b64 v4, v[{u}:{u+1}] offset:{512*t}")
    a("s_waitcnt lgkmcnt(0)")
    a("s_barrier")
    a("v_bfe_u32 v5, v0, 4, 2")
    a("v_xor_b32 v4, v5, v0")
    a("v_lshlrev_b32 v4, 3, v4")
    a(f"v_add_u32 v4, {CV_Y}, v4")
    Y = 64
    for ch in range(8): a(f"ds_read_b64 v[{Y+2*ch}:{Y+2*ch+1}], v4 offset:{4096*ch}")
    srd(a, 16, S_OUT, S_OUT+1, 2048*2304)
    a("v_mul_u32_u24 v5, 9216, v0")
    a("s_lshl_b32 s25, s21, 4")
    a("s_add_u32 s25, s25, 1152")
    a("s_mov_b32 s36, 0x05040100")
    a("s_mov_b32 s37, 0x07060302")
    a("s_waitcnt lgkmcnt(0)")
    for row in range(4):
        d = row >> 1; sel = "s36" if (row & 1) == 0 else "s37"
        o = 96 + 4*row
        for k in range(4):
            a(f"v_perm_b32 v{o+k}, v{Y+2*(2*k+1)+d}, v{Y+2*(2*k)+d}, {sel}")
        so = "s25"
        if row == 0: a(f"buffer_store_dwordx4 v[{o}:{o+3}], v5, s[16:19], s25 offen{osc}")
        elif row == 1: a(f"buffer_store_dwordx4 v[{o}:{o+3}], v5, s[16:19], s25 offen offset:2304{osc}")
        else:
            if row == 2: a("s_add_u32 s25, s25, 4608")
            a(f"buffer_store_dwordx4 v[{o}:{o+3}], v5, s[16:19], s25 offen offset:{2304*(row-2)}{osc}")

def conv_role(a, sc, diag, wait_inputs):
    conv_hload(a)
    conv_pre(a, diag)
    conv_post(a, sc, diag, wait_inputs)
```

```python
from common import *

G2_WO = 0
G2_KVB = 590*128
G2_ZT = G2_KVB + 590*48
G2_ZZ = G2_ZT + 32*288
G2_LDS = G2_ZZ + 288

V_L15, V_G, V_T16 = 9, 10, 8
TA, OA, OB, KB0, KB1 = 200, 208, 212, 216, 220
KW = 224
ZD = 233
MA = 236
PQ = 128

def swz(a, dst, row, cu, t1, t2, block=True):
    a(f"v_lshrrev_b32 v{t1}, 3, v{row}")
    if block:
        a(f"v_mul_u32_u24 v{t2}, 3641, v{row}")
        a(f"v_lshrrev_b32 v{t2}, 19, v{t2}")
        a(f"v_add_u32 v{t1}, v{t1}, v{t2}")
    a(f"v_and_b32 v{t1}, 1, v{t1}")
    a(f"v_and_b32 v{t2}, 3, v{row}")
    a(f"v_lshl_or_b32 v{t1}, v{t1}, 2, v{t2}")
    a(f"v_lshrrev_b32 v{t2}, 1, v{cu}")
    a(f"v_xor_b32 v{t1}, v{t1}, v{t2}")
    a(f"v_lshlrev_b32 v{dst}, 7, v{row}")
    a(f"v_lshl_add_u32 v{dst}, v{t1}, 4, v{dst}")
    a(f"v_and_b32 v{t2}, 1, v{cu}")
    a(f"v_lshl_add_u32 v{dst}, v{t2}, 3, v{dst}")

def g2_ids(a):
    a("s_and_b32 s22, s20, 15")
    a("s_lshr_b32 s23, s20, 4")

def g2_dma(a, first_wave, nwaves):
    a.c("==== G2 (dma): wo slice -> LDS, zero fills ====")
    g2_ids(a)
    srd(a, 16, S_WO, S_WO+1, 576*1152)
    a("v_lshrrev_b32 v2, 3, v1")
    a("v_and_b32 v3, 7, v1")
    a("v_and_b32 v4, 3, v2")
    a("v_xor_b32 v3, v3, v4")
    a("v_lshlrev_b32 v3, 4, v3")
    a("v_mul_u32_u24 v2, 1152, v2")
    a("v_add_u32 v2, v2, v3")
    a("s_lshl_b32 s24, s23, 7")
    a(f"s_sub_u32 s27, s3, {first_wave}")
    L = a.newlabel("g2wo")
    a.label(L)
    a("s_mul_i32 s26, s27, 3641")
    a("s_lshr_b32 s26, s26, 16")
    a("s_add_u32 s26, s26, s27")
    a("s_and_b32 s26, s26, 1")
    a("s_lshl_b32 s26, s26, 6")
    a("v_xor_b32 v3, s26, v2")
    a("s_lshl_b32 m0, s27, 10")
    a("s_mul_i32 s25, s27, 9216")
    a("s_add_u32 s25, s25, s24")
    a("buffer_load_dwordx4 v3, s[16:19], s25 offen lds")
    a(f"s_add_u32 s27, s27, {nwaves}")
    a("s_cmp_lt_u32 s27, 72")
    a(f"s_cbranch_scc1 {L}")
    for i in range(4): a(f"v_mov_b32 v{4+i}, 0")
    a(f"v_subrev_u32 v12, {64*first_wave}, v0")
    a("v_lshlrev_b32 v13, 4, v12")
    nthr = 64*nwaves
    a("v_cmp_gt_u32 vcc, 112, v12")
    a("s_and_saveexec_b64 s[26:27], vcc")
    a(f"v_add_u32 v11, {576*128}, v13")
    a("ds_write_b128 v11, v[4:7]")
    a("s_mov_b64 exec, -1")
    a(f"v_add_u32 v11, {G2_KVB}, v13")
    n16 = (590*48 + 9504) // 16
    k = 0
    while k*nthr < n16:
        rem = n16 - k*nthr
        if rem < nthr:
            a(f"s_movk_i32 s38, {rem}")
            a("v_cmp_gt_u32 vcc, s38, v12")
            a("s_and_saveexec_b64 s[26:27], vcc")
        a(f"ds_write_b128 v11, v[4:7] offset:{k*nthr*16}")
        k += 1
    a("s_mov_b64 exec, -1")

def g2_addr(a, diag):
    a.c("==== G2 (addr) ====")
    g2_ids(a)
    a(f"v_lshlrev_b32 v{V_T16}, 4, v0")
    a(f"v_and_b32 v{V_L15}, 15, v1")
    a(f"v_lshrrev_b32 v{V_G}, 4, v1")
    a(f"v_lshrrev_b32 v12, 2, v{V_L15}")
    a(f"v_and_b32 v13, 3, v{V_L15}")
    a("v_lshl_add_u32 v13, v12, 3, v13")
    a("v_mul_u32_u24 v13, 288, v13")
    a(f"v_add_u32 v13, {G2_ZT}, v13")
    a(f"v_add_u32 v14, {4*288}, v13")
    a(f"v_mov_b32 v15, {G2_ZZ}")
    a(f"v_cmp_eq_u32 vcc, v12, v{V_G}")
    a("s_nop 1")
    a(f"v_cndmask_b32 v{ZD}, v15, v13, vcc")
    a(f"v_cndmask_b32 v{ZD+1}, v15, v14, vcc")
    a("s_mul_i32 s24, s3, 18")
    a("v_bfe_u32 v12, v1, 2, 2")
    a("v_and_b32 v21, 3, v1")
    a(f"v_lshl_add_u32 v20, v{V_G}, 3, v12")
    a("v_add_u32 v20, s24, v20")
    for hh in range(2):
        if hh: a("v_add_u32 v20, 4, v20")
        swz(a, 23, 20, 21, 24, 25, block=False)
        for t in range(4): a(f"v_xor_b32 v{TA+4*hh+t}, {32*t}, v23")
    a(f"v_add_u32 v20, s24, v{V_L15}")
    swz(a, 23, 20, V_G, 24, 25, block=False)
    for t in range(4): a(f"v_xor_b32 v{OA+t}, {32*t}, v23")
    a(f"v_lshrrev_b32 v24, 1, v{V_L15}")
    a("v_and_b32 v24, 3, v24")
    a(f"v_and_b32 v25, 1, v{V_L15}")
    a("v_mul_u32_u24 v26, 144, v24")
    a("v_add_u32 v26, v26, v25")
    a("s_add_u32 s25, s24, 16")
    a("v_add_u32 v26, s25, v26")
    swz(a, 27, 26, V_G, 28, 29)
    for t in range(4): a(f"v_xor_b32 v{OB+t}, {32*t}, v27")
    a(f"v_mul_u32_u24 v22, 48, v20")
    a(f"v_lshl_add_u32 v22, v{V_G}, 4, v22")
    a(f"v_add_u32 v22, {G2_KVB}, v22")
    a(f"v_mov_b32 v15, {G2_ZZ}")
    a(f"v_cmp_eq_u32 s[34:35], 3, v{V_G}")
    a("v_add_u32 v23, s25, v25")
    a("v_mul_u32_u24 v23, 48, v23")
    a(f"v_lshl_add_u32 v23, v{V_G}, 4, v23")
    a(f"v_add_u32 v23, {G2_KVB}, v23")
    for g in range(4):
        a(f"v_add_u32 v28, {6912*g}, v22")
        a(f"v_cndmask_b32 v{KB0+g}, v28, v15, s[34:35]")
        a(f"v_lshrrev_b32 v28, 1, v{V_L15}")
        a(f"v_cmp_eq_u32 vcc, {g}, v28")
        a(f"s_andn2_b64 s[36:37], vcc, s[34:35]")
        a(f"v_add_u32 v28, {6912*g}, v23")
        a("s_nop 0")
        a(f"v_cndmask_b32 v{KB1+g}, v15, v28, s[36:37]")
    for i in range(7):
        a(f"v_add_u32 v12, {512*i}, v0")
        a("v_mul_u32_u24 v13, 10923, v12")
        a("v_lshrrev_b32 v13, 16, v13")
        a("v_mul_u32_u24 v14, 6, v13")
        a("v_sub_u32 v14, v12, v14")
        a(f"v_cmp_eq_u32 s[{68+2*i}:{69+2*i}], 5, v14")
        a("v_mul_u32_u24 v14, 3641, v13")
        a("v_lshrrev_b32 v15, 16, v14")
        a("v_lshrrev_b32 v14, 19, v14")
        a("v_mul_u32_u24 v14, 144, v14")
        a("v_sub_u32 v14, v13, v14")
        a("v_mul_u32_u24 v15, 288, v15")
        a("v_lshl_add_u32 v14, v14, 1, v15")
        a(f"v_add_u32 v14, {G2_ZT}, v14")
        a("v_lshlrev_b32 v12, 3, v12")
        a(f"v_add_u32 v12, {G2_KVB}, v12")
        a(f"v_cndmask_b32 v{KW+i}, v12, v14, s[{68+2*i}:{69+2*i}]")
    a(f"v_mul_u32_u24 v12, 144, v{V_G}")
    a("v_bfe_u32 v13, v1, 2, 2")
    a("v_add_u32 v12, v12, v13")
    a("v_lshlrev_b32 v12, 7, v12")
    a("v_and_b32 v14, 3, v1")
    a("v_and_b32 v15, 1, v14")
    a("v_lshl_add_u32 v12, v15, 3, v12")
    a("v_lshrrev_b32 v14, 1, v14")
    a("v_xor_b32 v14, v14, v13")
    a(f"v_and_b32 v15, 1, v{V_G}")
    a("v_lshl_or_b32 v14, v15, 2, v14")
    a("v_lshl_add_u32 v12, v14, 4, v12")
    for par in range(2):
        for ft in range(4):
            a(f"v_xor_b32 v{MA+4*par+ft}, {(32*ft) ^ (64*par)}, v12")

def g2_post(a, sc, diag, wait_kv, wait_pq, opts={}):
    a.c("==== G2 (post): tables, den, fold, normalise, main GEMM ====")
    srd(a, 12, S_WS, S_WS+1, WS_SRD_BYTES)
    a(f"s_mov_b32 s28, s{S_WS}"); a(f"s_and_b32 s29, s{S_WS+1}, 0xffff")
    a(f"s_mov_b32 s30, {WS_KVS + KVS_BYTES}"); a("s_mov_b32 s31, 0x20000")
    a("s_lshl_b32 s25, s22, 3")
    a("s_add_u32 s25, s25, s3")
    a("s_mul_i32 s25, s25, 18432")
    a(f"s_add_u32 s25, s25, {WS_PQ}")
    a("v_lshlrev_b32 v11, 4, v1")
    pq_list = []
    for ks in range(18):
        pq_list.append((f"buffer_load_dwordx4 v[{PQ+4*ks}:{PQ+4*ks+3}], v11, s[12:15], s25 offen offset:{1024*(ks % 4)}{sc}", ks % 4 == 3))
    issued = [0]
    def pq_issue(n):
        for ins, adv in pq_list[issued[0]:issued[0]+n]:
            a(ins)
            if adv: a("s_add_u32 s25, s25, 4096")
        issued[0] = min(18, issued[0] + n)
    def pq_loads(): pq_issue(18)
    KV = 64
    def kv_loads():
        for i in range(7):
            a(f"s_mov_b32 s26, {WS_KVS + i*8192}")
            a(f"buffer_load_dwordx4 v[{KV+4*i}:{KV+4*i+3}], v{V_T16}, s[28:31], s26 offen{sc}")
    def tables(per_step):
        for i in range(7):
            k = KV + 4*i
            a(f"s_waitcnt vmcnt({issued[0] + 6 - i})")
            a(f"v_cvt_pk_bf16_f32 v{k}, v{k}, v{k+1}")
            a(f"v_cvt_pk_bf16_f32 v{k+1}, v{k+2}, v{k+3}")
            if i == 6:
                a("s_movk_i32 s38, 384")
                a("v_cmp_gt_u32 vcc, s38, v0")
                a("s_nop 0")
                a(f"s_and_b64 s[26:27], vcc, s[{68+2*i}:{69+2*i}]")
                a(f"s_andn2_b64 exec, vcc, s[{68+2*i}:{69+2*i}]")
                a(f"ds_write_b64 v{KW+i}, v[{k}:{k+1}]")
                a("s_mov_b64 exec, s[26:27]")
            else:
                a(f"s_andn2_b64 exec, -1, s[{68+2*i}:{69+2*i}]")
                a(f"ds_write_b64 v{KW+i}, v[{k}:{k+1}]")
                a(f"s_mov_b64 exec, s[{68+2*i}:{69+2*i}]")
            a(f"ds_write_b16 v{KW+i}, v{k}")
            a("s_mov_b64 exec, -1")
            pq_issue(per_step)
    if wait_pq is not None:
        a("s_cmp_eq_u32 s3, 7")
        a("s_cbranch_scc0 L_g2_nopoll")
        wait_pq(); wait_kv()
        a.label("L_g2_nopoll")
    a("s_waitcnt lgkmcnt(0)")
    a("s_barrier")
    stamp(a, 13, diag)
    kv_loads()
    pq_issue(opts.get("pq0", 2))
    tables(opts.get("pq1", 1))
    a("s_waitcnt lgkmcnt(0)")
    a("s_barrier")
    stamp(a, 5, diag)
    if opts.get("delay5"):
        for _ in range(opts["delay5"]): a("s_sleep 8")
        stamp(a, 10, diag)
    AF = [32, 48]; BF = [64, 72]; MO = 80; M1 = 112
    def fold_reads(g):
        s = g & 1
        a(f"ds_read_b128 v[{BF[s]}:{BF[s]+3}], v{KB0+g}")
        a(f"ds_read_b128 v[{BF[s]+4}:{BF[s]+7}], v{KB1+g}")
        for ft in range(4):
            t = ft ^ (2*(g & 1))
            for hh in range(2):
                r = AF[s] + 4*ft + 2*hh
                a(f"ds_read_b64_tr_b16 v[{r}:{r+1}], v{TA+4*hh+t} offset:{18432*g}")
    def fold_out(g):
        for ft in range(4):
            r = MO + 16*(g & 1) + 4*ft
            t = ft ^ (2*(g & 1))
            a(f"v_cvt_pk_bf16_f32 v{r}, v{r}, v{r+1}")
            a(f"v_cvt_pk_bf16_f32 v{r+1}, v{r+2}, v{r+3}")
            if not opts.get("fnow"): a(f"ds_write_b64 v{OA+t}, v[{r}:{r+1}] offset:{18432*g}")
    fold_reads(0)
    for g in range(4):
        s = g & 1
        a("s_waitcnt lgkmcnt(0)")
        pq_issue(opts.get("pq2", 3))
        if g + 1 < 4: fold_reads(g + 1)
        for ft in range(4):
            r = MO + 16*s + 4*ft
            a(f"v_mfma_f32_16x16x32_bf16 v[{r}:{r+3}], v[{AF[s]+4*ft}:{AF[s]+4*ft+3}], v[{BF[s]}:{BF[s]+3}], 0")
        for ft in range(4):
            r = M1 + 4*ft
            c = f"v[{r}:{r+3}]" if g else "0"
            a(f"v_mfma_f32_16x16x32_bf16 v[{r}:{r+3}], v[{AF[s]+4*ft}:{AF[s]+4*ft+3}], v[{BF[s]+4}:{BF[s]+7}], {c}")
        if g > 0: fold_out(g - 1)
    a("s_nop 1")
    fold_out(3)
    a(f"v_cmp_gt_u32 vcc, 8, v{V_L15}")
    a("s_and_saveexec_b64 s[26:27], vcc")
    for ft in range(4):
        r = M1 + 4*ft
        a(f"v_cvt_pk_bf16_f32 v{r}, v{r}, v{r+1}")
        a(f"v_cvt_pk_bf16_f32 v{r+1}, v{r+2}, v{r+3}")
        a(f"ds_write_b64 v{OB+ft}, v[{r}:{r+1}]")
    a("s_mov_b64 exec, -1")
    stamp(a, 11, diag)
    pq_issue(18)
    a("s_waitcnt vmcnt(0) lgkmcnt(0)")
    stamp(a, 12, diag)
    ZF = 32; DEN = 16; RD = 24
    zp = []
    def zread(i):
        th, k = divmod(i, 9)
        r = ZF + 4*(i % 12)
        a(f"ds_read_b128 v[{r}:{r+3}], v{ZD+th} offset:{16*i}"); zp.append(i)
    order = [x for k in range(9) for x in (k, 9 + k)]
    for i in order[:9]: zread2 = None
    ZF2 = {i: ZF + 4*(n % 9) for n, i in enumerate(order)}
    def zr(n):
        i = order[n]; th = i // 9
        a(f"ds_read_b128 v[{ZF2[i]}:{ZF2[i]+3}], v{ZD+th} offset:{16*i}")
    for n in range(8): zr(n)
    for n in range(18):
        i = order[n]; th, k = divmod(i, 9)
        outstanding = min(18, n + 8) - n - 1
        a(f"s_waitcnt lgkmcnt({outstanding})")
        c = f"v[{DEN+4*th}:{DEN+4*th+3}]" if k else "0"
        a(f"v_mfma_f32_16x16x32_bf16 v[{DEN+4*th}:{DEN+4*th+3}], v[{ZF2[i]}:{ZF2[i]+3}], v[{PQ+4*i}:{PQ+4*i+3}], {c}")
        if n + 8 < 18: zr(n + 8)
    a("s_nop 7")
    for x in range(8):
        a(f"v_add_f32 v{RD+x}, {hex(EPS)}, v{DEN+x}")
    for x in range(8):
        a(f"v_rcp_f32 v{RD+x}, v{RD+x}")
    a("v_mov_b32 v14, 0xffff0000")
    def norm(ks):
        for p in range(4):
            x = (8*ks + 2*p)//18
            src = PQ + 4*ks + p; t = 32 + 2*p
            rd = RD + x
            a(f"v_lshlrev_b32 v{t}, 16, v{src}")
            a(f"v_and_b32 v{t+1}, v14, v{src}")
            if rd % 2 == 0: a(f"v_pk_mul_f32 v[{t}:{t+1}], v[{t}:{t+1}], v[{rd}:{rd+1}] op_sel_hi:[1,0]")
            else:           a(f"v_pk_mul_f32 v[{t}:{t+1}], v[{t}:{t+1}], v[{rd-1}:{rd}] op_sel:[0,1] op_sel_hi:[1,1]")
        for p in range(4):
            a(f"v_cvt_pk_bf16_f32 v{PQ+4*ks+p}, v{32+2*p}, v{32+2*p+1}")
    if not opts.get("nonorm"):
        for ks in range(18): norm(ks)
    stamp(a, 9, diag)
    a("s_waitcnt lgkmcnt(0)")
    a("s_barrier")
    stamp(a, 6, diag)
    OUT = 16; NSET = 3; MF = [64, 80, 96]
    def mread_ops(ks):
        s = ks % NSET
        return [f"ds_read_b64_tr_b16 v[{MF[s]+4*ft+2*hh}:{MF[s]+4*ft+2*hh+1}], v{MA+4*(ks&1)+ft} offset:{(8*ks+4*hh)*128}" for ft in range(4) for hh in range(2)]
    pend = []
    def issue(ks, lo, hi):
        for idx, r in enumerate(mread_ops(ks)[lo:hi]):
            a(r); pend.append((ks, (lo+idx)//2))
    issue(0, 0, 8); issue(1, 0, 4)
    for ks in range(18):
        s = ks % NSET
        for ft in range(4):
            if ft % 2 == 0:
                last = max(i for i, t in enumerate(pend) if t == (ks, ft + 1))
                a(f"s_waitcnt lgkmcnt({len(pend)-1-last})")
                del pend[:last+1]
            c = f"v[{OUT+4*ft}:{OUT+4*ft+3}]" if ks else "0"
            a(f"v_mfma_f32_16x16x32_bf16 v[{OUT+4*ft}:{OUT+4*ft+3}], v[{MF[s]+4*ft}:{MF[s]+4*ft+3}], v[{PQ+4*ks}:{PQ+4*ks+3}], {c}")
            if ft < 2:
                if ks + 1 < 18: issue(ks + 1, 4 + 2*ft, 6 + 2*ft)
            else:
                if ks + 2 < 18: issue(ks + 2, 2*(ft-2), 2*(ft-2) + 2)
    stamp(a, 7, diag)
    srd(a, 16, S_OUT, S_OUT+1, 2048*2304)
    a("s_lshl_b32 s25, s22, 7")
    a("s_lshl_b32 s26, s3, 4")
    a("s_add_u32 s25, s25, s26")
    a("s_mul_i32 s25, s25, 2304")
    a("s_lshl_b32 s26, s23, 7")
    a("s_add_u32 s25, s25, s26")
    a(f"v_mul_u32_u24 v4, 2304, v{V_L15}")
    a(f"v_lshl_add_u32 v4, v{V_G}, 4, v4")
    for pr in range(2):
        A_ = OUT + 8*pr; B_ = A_ + 4; p = 64 + 4*pr
        a(f"v_cvt_pk_bf16_f32 v{p}, v{A_}, v{A_+1}")
        a(f"v_cvt_pk_bf16_f32 v{p+1}, v{A_+2}, v{A_+3}")
        a(f"v_cvt_pk_bf16_f32 v{p+2}, v{B_}, v{B_+1}")
        a(f"v_cvt_pk_bf16_f32 v{p+3}, v{B_+2}, v{B_+3}")
        a("s_nop 1")
        a(f"v_permlane32_swap_b32 v{p}, v{p+2}")
        a(f"v_permlane32_swap_b32 v{p+1}, v{p+3}")
        a("s_nop 1")
        a(f"v_permlane16_swap_b32 v{p}, v{p+2}")
        a(f"v_permlane16_swap_b32 v{p+1}, v{p+3}")
        a("s_nop 1")
        a(f"buffer_store_dwordx4 v[{p}:{p+3}], v4, s[16:19], s25 offen offset:{64*pr}{opts.get('osc_a', '')}")

def g2_role(a, sc, diag, wait_kv, wait_pq, opts={}):
    g2_dma(a, 0, 8)
    g2_addr(a, diag)
    g2_post(a, sc, diag, wait_kv, wait_pq, opts)
```

```python
import sys
from common import *
from g1 import *
from prep import *
from conv import *
from g2 import *
from sync import *
NAME = "concat_heads__linear_attn_block__ssm_conv_h3__prompt"
LDS = 163840

def kd(a, name, vgpr, sgpr=102, acc=None):
    a.raw(f".amdhsa_kernel {name}")
    a.raw(f"  .amdhsa_next_free_vgpr {vgpr}")
    a.raw(f"  .amdhsa_next_free_sgpr {sgpr}")
    a.raw(f"  .amdhsa_accum_offset {acc or vgpr}")
    a.raw("  .amdhsa_group_segment_fixed_size 0")
    a.raw("  .amdhsa_kernarg_size 96")
    a.raw("  .amdhsa_user_sgpr_count 2")
    a.raw("  .amdhsa_user_sgpr_kernarg_segment_ptr 1")
    a.raw("  .amdhsa_system_sgpr_workgroup_id_x 1")
    a.raw(".end_amdhsa_kernel")

def phase1_ids(a):
    a(f"s_cmp_ge_u32 s2, {ID_B}")
    a("s_cbranch_scc1 L_roleB")
    a(f"s_cmp_ge_u32 s2, {ID_Q}")
    a("s_cbranch_scc1 L_roleQ")

def k1(a, diag, nskv, nsq, opts):
    name = "k1_kernel"
    entry(a, name, ID_Z + 1)
    if opts.get("pf"):
        a("s_cmp_eq_u32 s3, 3")
        a("s_cbranch_scc0 L_k1_nopf")
        code_prefetch(a, name, f"L_{name}_exit", "k1")
        a.label("L_k1_nopf")
    stamp(a, 0, diag)
    phase1_ids(a)
    a("s_and_b32 s20, s2, 7"); a("s_lshr_b32 s21, s2, 3")
    a("s_lshr_b32 s22, s20, 1"); a("s_lshl_b32 s22, s22, 2"); a("s_and_b32 s23, s21, 3"); a("s_add_u32 s22, s22, s23")
    a("s_and_b32 s23, s20, 1"); a("s_lshl_b32 s23, s23, 2"); a("s_lshr_b32 s24, s21, 2"); a("s_add_u32 s23, s23, s24")
    g1_role(a, False, nskv, "", diag, lambda k: a("s_endpgm"))
    a.label("L_roleQ")
    a("s_and_b32 s20, s2, 7"); a(f"s_sub_u32 s21, s2, {ID_Q}"); a("s_lshr_b32 s21, s21, 3")
    a("s_lshl_b32 s22, s20, 1"); a("s_and_b32 s23, s21, 1"); a("s_add_u32 s22, s22, s23")
    a("s_lshr_b32 s23, s21, 1")
    g1_role(a, True, nsq, "", diag, lambda k: a("s_endpgm"))
    a.label("L_roleB")
    a(f"s_cmp_eq_u32 s2, {ID_Z}")
    a("s_cbranch_scc1 L_roleZ")
    a(f"s_sub_u32 s20, s2, {ID_B}")
    a("s_cmp_ge_u32 s3, 4")
    a("s_cbranch_scc1 L_k1_kernel_exit")
    prep_role(a, "", diag)
    if diag: a("s_waitcnt vmcnt(0)")
    stamp(a, 3, diag)
    a("s_endpgm")
    a.label("L_roleZ")
    z_role(a, diag)
    a.label(f"L_{name}_exit")
    a("s_endpgm")

def k2(a, diag, opts):
    name = "k2_kernel"
    entry(a, name, ID_Z)
    if opts.get("pf"):
        a("s_cmp_eq_u32 s3, 3")
        a("s_cbranch_scc0 L_k2_nopf")
        code_prefetch(a, name, f"L_{name}_exit", "k2")
        a.label("L_k2_nopf")
    stamp(a, 4, diag)
    a(f"s_cmp_ge_u32 s2, {ID_B}")
    a("s_cbranch_scc1 L_k2_conv")
    a("s_cmp_lt_u32 s2, 96")
    a("s_cbranch_scc1 L_k2_lo")
    a(f"s_cmp_lt_u32 s2, {ID_Q}")
    a(f"s_cbranch_scc1 L_{name}_exit")
    a("s_sub_u32 s20, s2, 32")
    a("s_branch L_k2_g2")
    a.label("L_k2_lo")
    a("s_mov_b32 s20, s2")
    a.label("L_k2_g2")
    g2_role(a, "", diag, None, None, opts)
    if diag: a("s_waitcnt vmcnt(0)")
    stamp(a, 8, diag)
    a("s_endpgm")
    a.label("L_k2_conv")
    a(f"s_sub_u32 s20, s2, {ID_B}")
    conv_role(a, "", diag, lambda: None)
    if diag: a("s_waitcnt vmcnt(0)")
    stamp(a, 8, diag)
    a.label(f"L_{name}_exit")
    a("s_endpgm")

def k3(a, sel):
    name = "k3_kernel"
    entry(a, name, 1)
    a("s_cmp_eq_u32 s3, 0")
    a(f"s_cbranch_scc0 L_{name}_exit")
    a(f"v_mov_b32 v2, {WS_STAMP}")
    a(f"global_load_dword v3, v2, s[{S_WS}:{S_WS+1}] sc0 sc1")
    a("v_mov_b32 v4, 0")
    for i, (wg, idx) in enumerate(sel):
        a(f"v_cmp_eq_u32 vcc, {i}, v1")
        a(f"v_mov_b32 v5, {WS_STAMP + wg*128 + idx*8}")
        a("s_nop 0")
        a("v_cndmask_b32 v4, v4, v5, vcc")
    a("v_cmp_gt_u32 vcc, 16, v1")
    a("s_and_saveexec_b64 s[20:21], vcc")
    a(f"global_load_dword v6, v4, s[{S_WS}:{S_WS+1}] sc0 sc1")
    a("s_waitcnt vmcnt(0)")
    a("v_sub_u32 v6, v6, v3")
    a("v_lshlrev_b32 v7, 2, v1")
    a(f"global_store_dword v7, v6, s[{S_DBG}:{S_DBG+1}]")
    a.label(f"L_{name}_exit")
    a("s_endpgm")

def fused(a, diag, opts):
    name = NAME + "_kernel"
    sc = {0: " sc0 sc1", 1: " sc1", 2: ""}[opts.get("sc", 1)]
    entry(a, name, ID_Z + 1)
    if opts.get("pf", 1):
        a("s_cmp_eq_u32 s3, 3")
        a("s_cbranch_scc0 L_nopf")
        code_prefetch(a, name, f"L_{name}_exit", "k")
        a.label("L_nopf")
    if opts.get("dpf", 1):
        a("s_cmp_eq_u32 s3, 2")
        a("s_cbranch_scc0 L_nodpf")
        data_prefetch(a, ID_Z + 1)
        a.label("L_nodpf")
    stamp(a, 0, diag)
    phase1_ids(a)
    def g2_index():
        a("s_sub_u32 s20, s2, 32")
        a(f"s_cmp_ge_u32 s2, {ID_Q}")
        a("s_cselect_b32 s20, s20, s2")
        a("s_cmp_ge_u32 s20, 96")
        a("s_cselect_b32 s21, 1, 0")
        a(f"s_cmp_ge_u32 s2, {ID_Q}")
        a("s_cselect_b32 s21, 0, s21")
        a("s_cmp_eq_u32 s21, 1")
    def after_g1(q):
        def f(kind):
            L = "q" if q else "kv"
            if kind == "loader":
                def dma():
                    g2_index()
                    a(f"s_cbranch_scc1 L_{L}_nodma")
                    g2_dma(a, 4, 4)
                    a.label(f"L_{L}_nodma")
                a("s_barrier")
                a("s_cmp_eq_u32 s3, 7")
                a(f"s_cbranch_scc0 L_{L}_nodbg")
                wait_dbg(a)
                a.label(f"L_{L}_nodbg")
                early = opts.get("dma_early", 1) and not q
                if not q: a("s_barrier")
                if early: dma()
                a("s_barrier")
                if not early: dma()
                a("s_branch L_A_join")
            else:
                a("s_waitcnt vmcnt(0)")
                a("s_barrier")
                a("s_cmp_eq_u32 s3, 0")
                a("s_cbranch_scc0 L_A_join")
                if q:
                    wait_dbg(a)
                    a(f"s_sub_u32 s20, s2, {ID_Q - FL_Q}")
                else:
                    a(f"s_add_u32 s20, s2, {FL_KV}")
                flag_store(a, "s20")
                a("s_branch L_A_join")
        return f
    a("s_and_b32 s20, s2, 7"); a("s_lshr_b32 s21, s2, 3")
    a("s_lshr_b32 s22, s20, 1"); a("s_lshl_b32 s22, s22, 2"); a("s_and_b32 s23, s21, 3"); a("s_add_u32 s22, s22, s23")
    a("s_and_b32 s23, s20, 1"); a("s_lshl_b32 s23, s23, 2"); a("s_lshr_b32 s24, s21, 2"); a("s_add_u32 s23, s23, s24")
    g1_role(a, False, opts.get("nskv", 4), sc, diag, after_g1(False))
    a.label("L_roleQ")
    a("s_and_b32 s20, s2, 7"); a(f"s_sub_u32 s21, s2, {ID_Q}"); a("s_lshr_b32 s21, s21, 3")
    a("s_lshl_b32 s22, s20, 1"); a("s_and_b32 s23, s21, 1"); a("s_add_u32 s22, s22, s23")
    a("s_lshr_b32 s23, s21, 1")
    g1_role(a, True, opts.get("nsq", 3), sc, diag, after_g1(True))
    a.label("L_A_join")
    stamp(a, 4, diag)
    g2_index()
    a(f"s_cbranch_scc1 L_{name}_exit")
    if opts.get("pf2"):
        a("s_cmp_eq_u32 s3, 6")
        a("s_cbranch_scc0 L_nopf2")
        code_prefetch_all(a, "L_A_join", "L_roleB", "g2")
        a.label("L_nopf2")
    g2_addr(a, diag)
    def wait_all():
        a("v_min_u32 v250, 2, v1")
        a("v_lshlrev_b32 v250, 4, v250")
        a("s_and_b32 s66, s22, 1")
        a("s_lshl_b32 s66, s66, 3")
        a("s_lshr_b32 s67, s22, 1")
        a("s_add_u32 s66, s66, s67")
        a(f"s_add_u32 s66, s66, {FL_Q}")
        a("v_add_u32 v250, s66, v250")
        a("v_lshlrev_b32 v250, 6, v250")
        a(f"v_add_u32 v250, {WS_FLAG}, v250")
        a("v_lshlrev_b32 v251, 6, v1")
        a(f"v_add_u32 v252, {WS_FLAG + (FL_KV+64)*64}, v251")
        a(f"v_add_u32 v251, {WS_FLAG + FL_KV*64}, v251")
        poll(a, [250, 251, 252])
    wait_pq = wait_all
    wait_kv = lambda: None
    g2_post(a, sc, diag, wait_kv, wait_pq, opts)
    diag_delay(a, opts.get("dlyA", 0))
    if diag: a("s_waitcnt vmcnt(0)")
    stamp(a, 8, diag)
    a("s_endpgm")
    a.label("L_roleB")
    a(f"s_cmp_eq_u32 s2, {ID_Z}")
    a("s_cbranch_scc1 L_roleZ")
    a(f"s_sub_u32 s20, s2, {ID_B}")
    conv_hload(a)
    a("s_cmp_ge_u32 s3, 4")
    a("s_cbranch_scc1 L_B_noprep")
    prep_role(a, sc, diag)
    a.label("L_B_noprep")
    conv_pre(a, diag)
    stamp(a, 3, diag)
    a("s_barrier")
    a("s_cmp_eq_u32 s3, 7")
    a("s_cbranch_scc0 L_B_wait")
    wait_dbg(a)
    flag_store(a, "s20")
    a("s_lshr_b32 s66, s21, 3")
    a("s_lshl_b32 s66, s66, 3")
    a("v_and_b32 v248, 7, v1")
    a("v_add_u32 v248, s66, v248")
    a("v_lshlrev_b32 v248, 6, v248")
    a(f"v_add_u32 v248, {WS_FLAG + FL_PREP*64}, v248")
    poll(a, [248])
    a.label("L_B_wait")
    a("s_barrier")
    stamp(a, 4, diag)
    conv_post(a, sc, diag, lambda: None, opts.get("osc_b", ""))
    diag_delay(a, opts.get("dlyB", 0))
    if diag: a("s_waitcnt vmcnt(0)")
    stamp(a, 8, diag)
    a("s_endpgm")
    a.label("L_roleZ")
    z_role(a, diag)
    a.label(f"L_{name}_exit")
    a("s_endpgm")
    a.raw(".fill 1024, 4, 0xbf810000")

def main_fused(out, diag, opts):
    a = A()
    a.raw(f"; @launch grid=({ID_Z+1},1,1) block=(512,1,1) lds={LDS}")
    a.raw('.amdgcn_target "amdgcn-amd-amdhsa--gfx950"')
    a.raw(".text")
    fused(a, diag, opts)
    a.raw('.section .rodata,"a"')
    a.raw(".p2align 6")
    kd(a, NAME + "_kernel", 256)
    open(out, "w").write(a.text())

def main(out, diag, opts):
    a = A()
    a.raw(f"; @launch kernel=k1_kernel grid=({ID_Z+1},1,1) block=(512,1,1) lds={LDS}")
    a.raw(f"; @launch kernel=k2_kernel grid=({ID_Z},1,1) block=(512,1,1) lds={LDS}")
    if opts.get("k3"): a.raw("; @launch kernel=k3_kernel grid=(1,1,1) block=(64,1,1) lds=0")
    a.raw('.amdgcn_target "amdgcn-amd-amdhsa--gfx950"')
    a.raw(".text")
    k1(a, diag, opts.get("nskv", 4), opts.get("nsq", 3), opts)
    k2(a, diag, opts)
    if opts.get("k3"):
        k3(a, [(0,1),(0,2),(0,3),(130,2),(130,3),(180,3),(0,4),(0,5),(0,6),(0,7),(0,8),(180,4),(180,5),(180,6),(180,8),(247,8)])
    a.raw('.section .rodata,"a"')
    a.raw(".p2align 6")
    kd(a, "k1_kernel", 256)
    a.raw(".p2align 6")
    kd(a, "k2_kernel", 256)
    if opts.get("k3"):
        a.raw(".p2align 6")
        kd(a, "k3_kernel", 256)
    open(out, "w").write(a.text())

if __name__ == "__main__":
    out = sys.argv[1]; diag = "diag" in sys.argv
    opts = {k: (int(v) if v.lstrip("-").isdigit() else " " + v.replace("+", " ")) for k, v in (x.split("=") for x in sys.argv[2:] if "=" in x)}
    (main if opts.get('multi') else main_fused)(out, diag, opts)
```

```python
from asmlib import *

WS_UT  = 0x000000
WS_QT  = 0x240000
WS_PQ  = 0x480000
WS_KVS = 0x6C0000
KVS_BYTES = 576*24*4
WS_Z = WS_KVS + KVS_BYTES
WS_FLAG = 0x6D0000
WS_STAMP = 0x800000
WS_SRD_BYTES = 0x800000

LOG2E = 0x3fb8aa3b
EPS = 0x358637bd
ONE_EPS = 0x3f800008

S_X, S_W, S_WO, S_Q, S_K, S_V, S_SH, S_H = 40, 42, 44, 46, 48, 50, 52, 54
S_D, S_OUT, S_DBG, S_WS = 56, 58, 60, 62

N_KV, N_Q, N_B = 128, 48, 72
ID_Q, ID_B, ID_Z = 128, 176, 248

def stamp(a, idx, on):
    if not on: return
    a("s_memrealtime s[96:97]")
    a("s_waitcnt lgkmcnt(0)")
    a("v_mov_b32 v250, s96")
    a("v_mov_b32 v251, s97")
    a("s_lshl_b32 s98, s2, 7")
    a(f"s_add_u32 s98, s98, {WS_STAMP + idx*8}")
    a("v_mov_b32 v252, s98")
    a("s_mov_b64 s[96:97], exec")
    a("s_mov_b64 exec, 1")
    a(f"global_store_dwordx2 v252, v[250:251], s[{S_WS}:{S_WS+1}]")
    a("s_mov_b64 exec, s[96:97]")

def entry(a, name, nwg):
    a.raw(f".globl {name}")
    a.raw(".p2align 8")
    a.raw(f".type {name},@function")
    a.label(name)
    a(f"s_cmp_ge_u32 s2, {nwg}")
    a(f"s_cbranch_scc1 L_{name}_exit")
    a("s_load_dwordx16 s[40:55], s[0:1], 0")
    a("s_load_dwordx8 s[56:63], s[0:1], 64")
    a("v_lshrrev_b32 v1, 6, v0")
    a("s_nop 0")
    a("v_readfirstlane_b32 s3, v1")
    a("v_and_b32 v1, 63, v0")
    a("s_waitcnt lgkmcnt(0)")

def phi4(a, r, t, consts):
    cl, c1, ce = consts
    a(f"v_pk_mul_f32 v[{t}:{t+1}], v[{r}:{r+1}], v[{cl}:{cl+1}]")
    a(f"v_pk_mul_f32 v[{t+2}:{t+3}], v[{r+2}:{r+3}], v[{cl}:{cl+1}]")
    for i in range(4): a(f"v_exp_f32_e64 v{t+i}, v{t+i} clamp")
    a(f"v_pk_add_f32 v[{r}:{r+1}], v[{r}:{r+1}], v[{c1}:{c1+1}]")
    a(f"v_pk_add_f32 v[{r+2}:{r+3}], v[{r+2}:{r+3}], v[{c1}:{c1+1}]")
    a(f"v_pk_add_f32 v[{t}:{t+1}], v[{t}:{t+1}], v[{ce}:{ce+1}]")
    a(f"v_pk_add_f32 v[{t+2}:{t+3}], v[{t+2}:{t+3}], v[{ce}:{ce+1}]")
    for i in range(4): a(f"v_max_f32 v{r+i}, v{r+i}, v{t+i}")

def load_phi_consts(a, base):
    for i, c in enumerate((LOG2E, LOG2E, ONE_EPS, ONE_EPS, EPS, EPS)):
        a(f"v_mov_b32 v{base+i}, {hex(c)}")
    return (base, base+2, base+4)

def code_prefetch(a, start, end, tag):
    a("s_getpc_b64 s[20:21]")
    a.label(f"L_pf_{tag}")
    a(f"s_sub_u32 s20, s20, L_pf_{tag}-{start}")
    a("s_subb_u32 s21, s21, 0")
    a("s_lshr_b32 s22, s2, 3")
    a("s_and_b32 s22, s22, 31")
    a(f"s_mul_i32 s22, s22, (({end}-{start}+4095)/4096)")
    a("v_add_u32 v2, s22, v1")
    a("v_lshlrev_b32 v2, 7, v2")
    a(f"v_cmp_gt_u32 vcc, (({end}-{start}+4095)/4096), v1")
    a("s_and_saveexec_b64 s[22:23], vcc")
    a("global_load_dword v255, v2, s[20:21]")
    a("s_mov_b64 exec, -1")

def data_prefetch(a, nwg):
    for ptr, nbytes, dst in ((S_W, 576*3456, 253), (S_X, 2048*1152, 254), (S_WO, 576*1152, 255)):
        lines = nbytes // 128
        per = -(-lines // nwg)
        a(f"s_mul_i32 s20, s2, {per}")
        for k in range(-(-per // 64)):
            a(f"v_add_u32 v2, s20, v1")
            if k: a(f"v_add_u32 v2, {64*k}, v2")
            a(f"s_add_u32 s21, s20, {per}")
            a(f"s_min_u32 s21, s21, {lines}")
            a("v_cmp_gt_u32 vcc, s21, v2")
            a("v_lshlrev_b32 v2, 7, v2")
            a("s_and_saveexec_b64 s[22:23], vcc")
            L = a.newlabel("dpf")
            a(f"s_cbranch_execz {L}")
            a(f"global_load_dword v{dst}, v2, s[{ptr}:{ptr+1}]")
            a.label(L)
            a("s_mov_b64 exec, -1")

def code_prefetch_all(a, start, end, tag, dst=255):
    a("s_getpc_b64 s[26:27]")
    a.label(f"L_pfa_{tag}")
    a(f"s_sub_u32 s26, s26, L_pfa_{tag}-{start}")
    a("s_subb_u32 s27, s27, 0")
    a("v_lshlrev_b32 v252, 7, v1")
    a(f"global_load_dword v{dst}, v252, s[26:27]")
    a(f"global_load_dword v{dst}, v252, s[26:27] offset:64")
    a("v_add_u32 v252, 8192, v252")
    a(f"v_cmp_gt_u32 vcc, ({end}-{start}), v252")
    a("s_and_saveexec_b64 s[28:29], vcc")
    a(f"s_cbranch_execz L_pfa_{tag}_x")
    a(f"global_load_dword v{dst}, v252, s[26:27]")
    a.label(f"L_pfa_{tag}_x")
    a("s_mov_b64 exec, -1")

def diag_delay(a, us):
    if not us: return
    L = a.newlabel("dly")
    a("s_memrealtime s[90:91]")
    a("s_waitcnt lgkmcnt(0)")
    a(f"s_add_u32 s92, s90, {us*100}")
    a.label(L)
    a("s_memrealtime s[90:91]")
    a("s_waitcnt lgkmcnt(0)")
    a("s_sub_u32 s93, s92, s90")
    a("s_cmp_gt_i32 s93, 0")
    a(f"s_cbranch_scc1 {L}")
```

```python
from asmlib import *

WS_UT  = 0x000000
WS_QT  = 0x240000
WS_PQ  = 0x480000
WS_KVS = 0x6C0000
KVS_BYTES = 576*24*4
WS_Z = WS_KVS + KVS_BYTES
WS_FLAG = 0x6D0000
WS_STAMP = 0x800000
WS_SRD_BYTES = 0x800000

LOG2E = 0x3fb8aa3b
EPS = 0x358637bd
ONE_EPS = 0x3f800008

S_X, S_W, S_WO, S_Q, S_K, S_V, S_SH, S_H = 40, 42, 44, 46, 48, 50, 52, 54
S_D, S_OUT, S_DBG, S_WS = 56, 58, 60, 62

N_KV, N_Q, N_B = 128, 48, 72
ID_Q, ID_B, ID_Z = 128, 176, 248

def stamp(a, idx, on):
    if not on: return
    a("s_memrealtime s[96:97]")
    a("s_waitcnt lgkmcnt(0)")
    a("v_mov_b32 v250, s96")
    a("v_mov_b32 v251, s97")
    a("s_lshl_b32 s98, s2, 7")
    a(f"s_add_u32 s98, s98, {WS_STAMP + idx*8}")
    a("v_mov_b32 v252, s98")
    a("s_mov_b64 s[96:97], exec")
    a("s_mov_b64 exec, 1")
    a(f"global_store_dwordx2 v252, v[250:251], s[{S_WS}:{S_WS+1}]")
    a("s_mov_b64 exec, s[96:97]")

def entry(a, name, nwg):
    a.raw(f".globl {name}")
    a.raw(".p2align 8")
    a.raw(f".type {name},@function")
    a.label(name)
    a(f"s_cmp_ge_u32 s2, {nwg}")
    a(f"s_cbranch_scc1 L_{name}_exit")
    a("s_load_dwordx16 s[40:55], s[0:1], 0")
    a("s_load_dwordx8 s[56:63], s[0:1], 64")
    a("v_lshrrev_b32 v1, 6, v0")
    a("s_nop 0")
    a("v_readfirstlane_b32 s3, v1")
    a("v_and_b32 v1, 63, v0")
    a("s_waitcnt lgkmcnt(0)")

def phi4(a, r, t, consts):
    cl, c1, ce = consts
    a(f"v_pk_mul_f32 v[{t}:{t+1}], v[{r}:{r+1}], v[{cl}:{cl+1}]")
    a(f"v_pk_mul_f32 v[{t+2}:{t+3}], v[{r+2}:{r+3}], v[{cl}:{cl+1}]")
    for i in range(4): a(f"v_exp_f32_e64 v{t+i}, v{t+i} clamp")
    a(f"v_pk_add_f32 v[{r}:{r+1}], v[{r}:{r+1}], v[{c1}:{c1+1}]")
    a(f"v_pk_add_f32 v[{r+2}:{r+3}], v[{r+2}:{r+3}], v[{c1}:{c1+1}]")
    a(f"v_pk_add_f32 v[{t}:{t+1}], v[{t}:{t+1}], v[{ce}:{ce+1}]")
    a(f"v_pk_add_f32 v[{t+2}:{t+3}], v[{t+2}:{t+3}], v[{ce}:{ce+1}]")
    for i in range(4): a(f"v_max_f32 v{r+i}, v{r+i}, v{t+i}")

def load_phi_consts(a, base):
    for i, c in enumerate((LOG2E, LOG2E, ONE_EPS, ONE_EPS, EPS, EPS)):
        a(f"v_mov_b32 v{base+i}, {hex(c)}")
    return (base, base+2, base+4)

def code_prefetch(a, start, end, tag):
    a("s_getpc_b64 s[20:21]")
    a.label(f"L_pf_{tag}")
    a(f"s_sub_u32 s20, s20, L_pf_{tag}-{start}")
    a("s_subb_u32 s21, s21, 0")
    a("s_lshr_b32 s22, s2, 3")
    a("s_and_b32 s22, s22, 31")
    a(f"s_mul_i32 s22, s22, (({end}-{start}+4095)/4096)")
    a("v_add_u32 v2, s22, v1")
    a("v_lshlrev_b32 v2, 7, v2")
    a(f"v_cmp_gt_u32 vcc, (({end}-{start}+4095)/4096), v1")
    a("s_and_saveexec_b64 s[22:23], vcc")
    a("global_load_dword v255, v2, s[20:21]")
    a("s_mov_b64 exec, -1")

def data_prefetch(a, idx, nwg, skip=0):
    nW = 576*27; nX = 2048*9; nO = 576*9
    per = -(-(nW + nX + nO) // nwg)
    for k in range(-(-per // 512)):
        a(f"s_mul_i32 s21, {idx}, {per}")
        if k: a(f"s_add_u32 s21, s21, {512*k}")
        a("v_add_u32 v4, s21, v0")
        a(f"s_movk_i32 s22, {per - 512*k}")
        a("v_cmp_gt_u32 s[26:27], s22, v0")
        for ptr, n, dst in ((S_W, nW, 253), (S_X, nX, 254), (S_WO, nO, 255)):
            a(f"s_mov_b32 s22, {n}")
            a("v_cmp_gt_u32 vcc, s22, v4")
            a("v_lshlrev_b32 v2, 7, v4")
            a("s_and_b64 exec, vcc, s[26:27]")
            L = a.newlabel("dpf")
            a(f"s_cbranch_execz {L}")
            a(f"global_load_dword v{dst}, v2, s[{ptr}:{ptr+1}]")
            a.label(L)
            a("s_mov_b64 exec, -1")
            a(f"v_subrev_u32 v4, {n}, v4")

def code_prefetch_all(a, start, end, tag, dst=255):
    a("s_getpc_b64 s[26:27]")
    a.label(f"L_pfa_{tag}")
    a(f"s_sub_u32 s26, s26, L_pfa_{tag}-{start}")
    a("s_subb_u32 s27, s27, 0")
    a("v_lshlrev_b32 v252, 7, v1")
    a(f"global_load_dword v{dst}, v252, s[26:27]")
    a(f"global_load_dword v{dst}, v252, s[26:27] offset:64")
    a("v_add_u32 v252, 8192, v252")
    a(f"v_cmp_gt_u32 vcc, ({end}-{start}), v252")
    a("s_and_saveexec_b64 s[28:29], vcc")
    a(f"s_cbranch_execz L_pfa_{tag}_x")
    a(f"global_load_dword v{dst}, v252, s[26:27]")
    a.label(f"L_pfa_{tag}_x")
    a("s_mov_b64 exec, -1")

def diag_delay(a, us):
    if not us: return
    L = a.newlabel("dly")
    a("s_memrealtime s[90:91]")
    a("s_waitcnt lgkmcnt(0)")
    a(f"s_add_u32 s92, s90, {us*100}")
    a.label(L)
    a("s_memrealtime s[90:91]")
    a("s_waitcnt lgkmcnt(0)")
    a("s_sub_u32 s93, s92, s90")
    a("s_cmp_gt_i32 s93, 0")
    a(f"s_cbranch_scc1 {L}")
```

```python
from common import *

CV_HE, CV_HO, CV_U = 0, 4160, 8320
CV_WAVE = 13056
CV_Y = 8*CV_WAVE
CV_LDS = CV_Y + 8*4096

def conv_ids(a):
    a("s_and_b32 s21, s20, 7")
    a("s_mul_i32 s21, s21, 9")
    a("s_lshr_b32 s22, s20, 3")
    a("s_add_u32 s21, s21, s22")
    a("s_lshl_b32 s22, s21, 3")
    a("s_add_u32 s22, s22, s3")
    a(f"s_mul_i32 s23, s3, {CV_WAVE}")
    a("s_lshl_b32 s24, s22, 12")

CV_H = 208
def conv_hload(a, H, so):
    a("v_lshlrev_b32 v2, 4, v1")
    for j in range(4):
        a(f"buffer_load_dwordx4 v[{H+8*j}:{H+8*j+3}], v2, s[16:19], {so} offen offset:{1024*j} nt")
        a(f"buffer_load_dword v{H+8*j+4}, v2, s[16:19], {so} offen offset:{1024*j+16} nt")

def conv_dload(a):
    a("s_lshr_b32 s25, s22, 1")
    a("s_lshl_b32 s25, s25, 2")
    a(f"s_load_dword s64, s[{S_D}:{S_D+1}], s25")

def conv_copies(a, H, sbase):
    a("v_lshlrev_b32 v2, 4, v1")
    a("v_mov_b32 v4, 0"); a("v_mov_b32 v5, 0"); a("v_mov_b32 v6, 0"); a("v_mov_b32 v7, 0")
    a(f"v_add_u32 v3, {sbase}, v2")
    a("s_mov_b32 exec_lo, -1"); a("s_mov_b32 exec_hi, 0")
    a(f"ds_write_b128 v3, v[4:7] offset:{CV_U+4096}")
    a("s_mov_b64 exec, 3")
    a(f"ds_write_b128 v3, v[4:7] offset:{CV_HE}")
    a(f"ds_write_b128 v3, v[4:7] offset:{CV_HO}")
    a("s_mov_b64 exec, -1")
    for j in range(4):
        h = H + 8*j
        a(f"ds_write_b128 v3, v[{h}:{h+3}] offset:{CV_HE + 32 + 1024*j}")
        t = 96 + 4*(j & 1)
        for i in range(4): a(f"v_alignbit_b32 v{t+i}, v{h+i+1}, v{h+i}, 16")
        a(f"ds_write_b128 v3, v[{t}:{t+3}] offset:{CV_HO + 32 + 1024*j}")
    a(f"v_lshlrev_b32 v4, 16, v{H}")
    a("s_mov_b64 exec, 1")
    a(f"ds_write_b32 v3, v4 offset:{CV_HO + 28}")
    a("s_mov_b64 exec, -1")

def conv_filters(a):
    a.c("==== conv: Toeplitz copies of the filters ====")
    conv_ids(a)
    srd(a, 16, S_H, S_H+1, 576*4096)
    a("s_sub_u32 s26, s24, 16384")
    a(f"s_sub_u32 s27, s23, {4*CV_WAVE}")
    conv_hload(a, 128, "s26")
    conv_hload(a, 160, "s24")
    a("s_waitcnt vmcnt(8)")
    conv_copies(a, 128, "s27")
    a("s_waitcnt vmcnt(0)")
    conv_copies(a, 160, "s23")
    a("s_waitcnt lgkmcnt(0)")

def conv_geom(a, diag):
    a.c("==== conv: geometry ====")
    conv_ids(a)
    a("s_waitcnt lgkmcnt(0)")
    a("v_lshlrev_b32 v2, 4, v1")
    a("v_add_u32 v3, s23, v2")
    a("v_and_b32 v8, 15, v1")
    a("v_lshrrev_b32 v9, 4, v1")
    a("v_lshrrev_b32 v10, 1, v9")
    a("v_and_b32 v11, 1, v9")
    a("v_lshlrev_b32 v12, 4, v10")
    a("v_lshl_add_u32 v12, v11, 3, v12")
    a("v_add_u32 v12, v12, v8")
    a("v_and_b32 v13, 1, v8")
    a("v_add_u32 v12, v12, v13")
    a("v_lshlrev_b32 v12, 1, v12")
    a("v_cmp_eq_u32 vcc, 0, v13")
    a(f"v_mov_b32 v14, {CV_HO}")
    a("v_add_u32 v12, s23, v12")
    a("v_cndmask_b32 v14, 0, v14, vcc")
    a("v_add_u32 v16, v12, v14")
    for t in range(1, 4): a(f"v_add_u32 v{16+t}, {1024*t}, v16")
    a("v_sub_u32 v20, v10, v8")
    a("v_lshlrev_b32 v20, 5, v20")
    a("v_lshl_add_u32 v20, v11, 4, v20")
    a(f"v_add_u32 v20, {CV_U + 32*127 - 3584}, v20")
    a("v_add_u32 v20, s23, v20")
    AD = 24
    a("s_waitcnt lgkmcnt(0)")
    a("s_and_b32 s25, s22, 1")
    a("s_lshl_b32 s25, s25, 4")
    a("s_lshr_b32 s26, s64, s25")
    a("s_and_b32 s26, s26, 0xffff")
    a("v_sub_u32 v4, 15, v8")
    a("v_lshrrev_b32 v5, 3, v4")
    a("v_and_b32 v4, 7, v4")
    a("v_and_b32 v6, 1, v4")
    a("v_lshlrev_b32 v6, 4, v6")
    a("v_mov_b32 v7, s26")
    a("v_lshlrev_b32 v7, v6, v7")
    a("v_lshrrev_b32 v4, 1, v4")
    a("v_cmp_eq_u32 vcc, v5, v9")
    a("s_nop 1")
    a("v_cndmask_b32 v7, 0, v7, vcc")
    for j in range(4):
        a(f"v_cmp_eq_u32 vcc, {j}, v4")
        a("s_nop 1")
        a(f"v_cndmask_b32 v{AD+j}, 0, v7, vcc")

def conv_post(a, sc, diag, wait_inputs, osc=''):
    a.c("==== conv (post): long causal convolution via Toeplitz MFMA ====")
    AD = 24
    srd(a, 12, S_WS, S_WS+1, WS_SRD_BYTES)
    wait_inputs()
    UU = 64
    for j in range(4):
        a(f"buffer_load_dwordx4 v[{UU+4*j}:{UU+4*j+3}], v2, s[12:15], s24 offen offset:{1024*j}{sc}")
    a("s_waitcnt vmcnt(0)")
    for j in range(4):
        a(f"ds_write_b128 v3, v[{UU+4*j}:{UU+4*j+3}] offset:{CV_U + 1024*j}")
    QQ = 224
    srd(a, 16, S_Q, S_Q+1, 2048*1152)
    a("v_mul_u32_u24 v4, 4608, v0")
    a("s_lshl_b32 s27, s21, 4")
    a("v_mov_b32 v21, v4")
    def qload(row):
        a(f"buffer_load_dwordx4 v[{QQ+4*row}:{QQ+4*row+3}], v21, s[16:19], s27 offen offset:{1152*row} nt")
    a("s_waitcnt lgkmcnt(0)")
    stamp(a, 5, diag)
    ACCV = 32
    SA = [64, 128]; SB = [96, 160]
    def reads(s):
        out = []
        for j in range(8):
            b = 16 + (j >> 1); o = 128*(j & 1); r = SA[s] + 4*j
            out.append(f"ds_read2_b32 v[{r}:{r+1}], v{b} offset0:{o} offset1:{o+1}")
            out.append(f"ds_read2_b32 v[{r+2}:{r+3}], v{b} offset0:{o+2} offset1:{o+3}")
        B = [f"ds_read_b128 v[{SB[s]+4*i}:{SB[s]+4*i+3}], v20 offset:{512*(7-i)}" for i in range(8)]
        seq = []
        for k in range(8):
            seq += [B[k], out[2*k], out[2*k+1]]
        return seq
    def adv():
        for t in range(4): a(f"v_add_u32 v{16+t}, 64, v{16+t}")
        a("v_add_u32 v20, 64, v20")
    for r in reads(0): a(r)
    adv()
    a("s_waitcnt lgkmcnt(0)")
    for t in range(8):
        a(f"v_mfma_f32_16x16x32_bf16 v[{ACCV+4*t}:{ACCV+4*t+3}], v[{AD}:{AD+3}], v[{SB[0]+4*t}:{SB[0]+4*t+3}], 0")
    pairs = sorted([(i, j) for i in range(8) for j in range(8) if i + j <= 7], key=lambda p: (max(p), p[0]+p[1]))
    def body(s, nxt):
        rs = reads(1 - s) if nxt else []
        k = 0
        for idx, (i, j) in enumerate(pairs):
            if k < len(rs): a(rs[k]); k += 1
            t = i + j
            a(f"v_mfma_f32_16x16x32_bf16 v[{ACCV+4*t}:{ACCV+4*t+3}], v[{SA[s]+4*j}:{SA[s]+4*j+3}], v[{SB[s]+4*i}:{SB[s]+4*i+3}], v[{ACCV+4*t}:{ACCV+4*t+3}]")
        if nxt:
            adv()
            a("s_waitcnt lgkmcnt(0)")
    a("s_mov_b32 s28, 0")
    a.label("L_conv_loop")
    for row in range(3):
        L = a.newlabel("ql")
        a(f"s_cmp_eq_u32 s28, {row}")
        a(f"s_cbranch_scc0 {L}")
        qload(row)
        a.label(L)
    body(0, True)
    body(1, True)
    a("s_add_u32 s28, s28, 1")
    a("s_cmp_lt_u32 s28, 3")
    a("s_cbranch_scc1 L_conv_loop")
    qload(3)
    body(0, True)
    body(1, False)
    stamp(a, 6, diag)
    a("v_lshrrev_b32 v5, 2, v8")
    a("v_xor_b32 v5, v5, v9")
    a("v_lshlrev_b32 v4, 2, v8")
    a("v_add_u32 v4, v4, v5")
    a("v_lshlrev_b32 v4, 3, v4")
    a("s_lshl_b32 s25, s3, 12")
    a(f"s_add_u32 s25, s25, {CV_Y}")
    a("v_add_u32 v4, s25, v4")
    a("v_mov_b32 v14, 0xffff0000")
    for t in range(8):
        r = ACCV + 4*t; u = 64 + 2*(t & 3)
        a(f"v_cvt_pk_bf16_f32 v{u}, v{r}, v{r+1}")
        a(f"v_cvt_pk_bf16_f32 v{u+1}, v{r+2}, v{r+3}")
        a(f"ds_write_b64 v4, v[{u}:{u+1}] offset:{512*t}")
    a("s_waitcnt lgkmcnt(0)")
    a("s_barrier")
    a("v_bfe_u32 v5, v0, 4, 2")
    a("v_xor_b32 v4, v5, v0")
    a("v_lshlrev_b32 v4, 3, v4")
    a(f"v_add_u32 v4, {CV_Y}, v4")
    Y = 64
    for ch in range(8): a(f"ds_read_b64 v[{Y+2*ch}:{Y+2*ch+1}], v4 offset:{4096*ch}")
    srd(a, 16, S_OUT, S_OUT+1, 2048*2304)
    a("v_mul_u32_u24 v5, 9216, v0")
    a("s_lshl_b32 s25, s21, 4")
    a("s_add_u32 s25, s25, 1152")
    a("s_waitcnt vmcnt(0) lgkmcnt(0)")
    for row in range(4):
        d = row >> 1; hi = row & 1
        o = 96 + 4*row
        T = 112
        for k in range(4):
            t = T + 4*(k & 1)
            q = QQ + 4*row + k
            for half in range(2):
                y = Y + 2*(2*k + half) + d
                if hi: a(f"v_and_b32 v{t+half}, v14, v{y}")
                else:  a(f"v_lshlrev_b32 v{t+half}, 16, v{y}")
            a(f"v_lshlrev_b32 v{t+2}, 16, v{q}")
            a(f"v_and_b32 v{t+3}, v14, v{q}")
            a(f"v_pk_mul_f32 v[{t}:{t+1}], v[{t}:{t+1}], v[{t+2}:{t+3}]")
            a(f"v_cvt_pk_bf16_f32 v{o+k}, v{t}, v{t+1}")
        if row == 0: a(f"buffer_store_dwordx4 v[{o}:{o+3}], v5, s[16:19], s25 offen{osc}")
        elif row == 1: a(f"buffer_store_dwordx4 v[{o}:{o+3}], v5, s[16:19], s25 offen offset:2304{osc}")
        else:
            if row == 2: a("s_add_u32 s25, s25, 4608")
            a(f"buffer_store_dwordx4 v[{o}:{o+3}], v5, s[16:19], s25 offen offset:{2304*(row-2)}{osc}")

def conv_role(a, sc, diag, wait_inputs):
    raise NotImplementedError("multi-kernel variant retired")
    conv_post(a, sc, diag, wait_inputs)
```

```python
from common import *

G2_WO = 0
G2_KVB = 590*128
G2_ZT = G2_KVB + 590*48
G2_ZZ = G2_ZT + 32*288
G2_LDS = G2_ZZ + 288

V_L15, V_G, V_T16 = 9, 10, 8
TA, OA, OB, KB0, KB1 = 200, 208, 212, 216, 220
KW = 224
ZD = 233
MA = 236
PQ = 128

def swz(a, dst, row, cu, t1, t2, block=True):
    a(f"v_lshrrev_b32 v{t1}, 3, v{row}")
    if block:
        a(f"v_mul_u32_u24 v{t2}, 3641, v{row}")
        a(f"v_lshrrev_b32 v{t2}, 19, v{t2}")
        a(f"v_add_u32 v{t1}, v{t1}, v{t2}")
    a(f"v_and_b32 v{t1}, 1, v{t1}")
    a(f"v_and_b32 v{t2}, 3, v{row}")
    a(f"v_lshl_or_b32 v{t1}, v{t1}, 2, v{t2}")
    a(f"v_lshrrev_b32 v{t2}, 1, v{cu}")
    a(f"v_xor_b32 v{t1}, v{t1}, v{t2}")
    a(f"v_lshlrev_b32 v{dst}, 7, v{row}")
    a(f"v_lshl_add_u32 v{dst}, v{t1}, 4, v{dst}")
    a(f"v_and_b32 v{t2}, 1, v{cu}")
    a(f"v_lshl_add_u32 v{dst}, v{t2}, 3, v{dst}")

def g2_ids(a):
    a("s_and_b32 s22, s20, 15")
    a("s_lshr_b32 s23, s20, 4")

def g2_dma_setup(a, first_wave):
    g2_ids(a)
    srd(a, 16, S_WO, S_WO+1, 576*1152)
    a("v_lshrrev_b32 v2, 3, v1")
    a("v_and_b32 v3, 7, v1")
    a("v_and_b32 v4, 3, v2")
    a("v_xor_b32 v3, v3, v4")
    a("v_lshlrev_b32 v3, 4, v3")
    a("v_mul_u32_u24 v2, 1152, v2")
    a("v_add_u32 v2, v2, v3")
    a("s_lshl_b32 s82, s23, 7")
    a(f"s_sub_u32 s83, s3, {first_wave}")

def g2_dma_pieces(a, nwaves, limit):
    L = a.newlabel("g2wo")
    a.label(L)
    a("s_mul_i32 s26, s83, 3641")
    a("s_lshr_b32 s26, s26, 16")
    a("s_add_u32 s26, s26, s83")
    a("s_and_b32 s26, s26, 1")
    a("s_lshl_b32 s26, s26, 6")
    a("v_xor_b32 v3, s26, v2")
    a("s_lshl_b32 m0, s83, 10")
    a("s_mul_i32 s25, s83, 9216")
    a("s_add_u32 s25, s25, s82")
    a("buffer_load_dwordx4 v3, s[16:19], s25 offen lds")
    a(f"s_add_u32 s83, s83, {nwaves}")
    a(f"s_cmp_lt_u32 s83, {limit}")
    a(f"s_cbranch_scc1 {L}")

def g2_dma_zero(a, first_wave, nwaves):
    for i in range(4): a(f"v_mov_b32 v{4+i}, 0")
    a(f"v_subrev_u32 v12, {64*first_wave}, v0")
    a("v_lshlrev_b32 v13, 4, v12")
    nthr = 64*nwaves
    a("v_cmp_gt_u32 vcc, 112, v12")
    a("s_and_saveexec_b64 s[26:27], vcc")
    a(f"v_add_u32 v11, {576*128}, v13")
    a("ds_write_b128 v11, v[4:7]")
    a("s_mov_b64 exec, -1")
    a(f"v_add_u32 v11, {G2_KVB}, v13")
    n16 = (590*48 + 9504) // 16
    k = 0
    while k*nthr < n16:
        rem = n16 - k*nthr
        if rem < nthr:
            a(f"s_movk_i32 s38, {rem}")
            a("v_cmp_gt_u32 vcc, s38, v12")
            a("s_and_saveexec_b64 s[26:27], vcc")
        a(f"ds_write_b128 v11, v[4:7] offset:{k*nthr*16}")
        k += 1
    a("s_mov_b64 exec, -1")

def g2_dma(a, first_wave, nwaves):
    g2_dma_setup(a, first_wave)
    g2_dma_pieces(a, nwaves, 72)
    g2_dma_zero(a, first_wave, nwaves)

def g2_addr(a, diag):
    a.c("==== G2 (addr) ====")
    g2_ids(a)
    a(f"v_lshlrev_b32 v{V_T16}, 4, v0")
    a(f"v_and_b32 v{V_L15}, 15, v1")
    a(f"v_lshrrev_b32 v{V_G}, 4, v1")
    a(f"v_lshrrev_b32 v12, 2, v{V_L15}")
    a(f"v_and_b32 v13, 3, v{V_L15}")
    a("v_lshl_add_u32 v13, v12, 3, v13")
    a("v_mul_u32_u24 v13, 288, v13")
    a(f"v_add_u32 v13, {G2_ZT}, v13")
    a(f"v_add_u32 v14, {4*288}, v13")
    a(f"v_mov_b32 v15, {G2_ZZ}")
    a(f"v_cmp_eq_u32 vcc, v12, v{V_G}")
    a("s_nop 1")
    a(f"v_cndmask_b32 v{ZD}, v15, v13, vcc")
    a(f"v_cndmask_b32 v{ZD+1}, v15, v14, vcc")
    a("s_mul_i32 s24, s3, 18")
    a("v_bfe_u32 v12, v1, 2, 2")
    a("v_and_b32 v21, 3, v1")
    a(f"v_lshl_add_u32 v20, v{V_G}, 3, v12")
    a("v_add_u32 v20, s24, v20")
    for hh in range(2):
        if hh: a("v_add_u32 v20, 4, v20")
        swz(a, 23, 20, 21, 24, 25, block=False)
        for t in range(4): a(f"v_xor_b32 v{TA+4*hh+t}, {32*t}, v23")
    a(f"v_add_u32 v20, s24, v{V_L15}")
    swz(a, 23, 20, V_G, 24, 25, block=False)
    for t in range(4): a(f"v_xor_b32 v{OA+t}, {32*t}, v23")
    a(f"v_lshrrev_b32 v24, 1, v{V_L15}")
    a("v_and_b32 v24, 3, v24")
    a(f"v_and_b32 v25, 1, v{V_L15}")
    a("v_mul_u32_u24 v26, 144, v24")
    a("v_add_u32 v26, v26, v25")
    a("s_add_u32 s25, s24, 16")
    a("v_add_u32 v26, s25, v26")
    swz(a, 27, 26, V_G, 28, 29)
    for t in range(4): a(f"v_xor_b32 v{OB+t}, {32*t}, v27")
    a(f"v_mul_u32_u24 v22, 48, v20")
    a(f"v_lshl_add_u32 v22, v{V_G}, 4, v22")
    a(f"v_add_u32 v22, {G2_KVB}, v22")
    a(f"v_mov_b32 v15, {G2_ZZ}")
    a(f"v_cmp_eq_u32 s[34:35], 3, v{V_G}")
    a("v_add_u32 v23, s25, v25")
    a("v_mul_u32_u24 v23, 48, v23")
    a(f"v_lshl_add_u32 v23, v{V_G}, 4, v23")
    a(f"v_add_u32 v23, {G2_KVB}, v23")
    for g in range(4):
        a(f"v_add_u32 v28, {6912*g}, v22")
        a(f"v_cndmask_b32 v{KB0+g}, v28, v15, s[34:35]")
        a(f"v_lshrrev_b32 v28, 1, v{V_L15}")
        a(f"v_cmp_eq_u32 vcc, {g}, v28")
        a(f"s_andn2_b64 s[36:37], vcc, s[34:35]")
        a(f"v_add_u32 v28, {6912*g}, v23")
        a("s_nop 0")
        a(f"v_cndmask_b32 v{KB1+g}, v15, v28, s[36:37]")
    for i in range(7):
        a(f"v_add_u32 v12, {512*i}, v0")
        a("v_mul_u32_u24 v13, 10923, v12")
        a("v_lshrrev_b32 v13, 16, v13")
        a("v_mul_u32_u24 v14, 6, v13")
        a("v_sub_u32 v14, v12, v14")
        a(f"v_cmp_eq_u32 s[{68+2*i}:{69+2*i}], 5, v14")
        a("v_mul_u32_u24 v14, 3641, v13")
        a("v_lshrrev_b32 v15, 16, v14")
        a("v_lshrrev_b32 v14, 19, v14")
        a("v_mul_u32_u24 v14, 144, v14")
        a("v_sub_u32 v14, v13, v14")
        a("v_mul_u32_u24 v15, 288, v15")
        a("v_lshl_add_u32 v14, v14, 1, v15")
        a(f"v_add_u32 v14, {G2_ZT}, v14")
        a("v_lshlrev_b32 v12, 3, v12")
        a(f"v_add_u32 v12, {G2_KVB}, v12")
        a(f"v_cndmask_b32 v{KW+i}, v12, v14, s[{68+2*i}:{69+2*i}]")
    a(f"v_mul_u32_u24 v12, 144, v{V_G}")
    a("v_bfe_u32 v13, v1, 2, 2")
    a("v_add_u32 v12, v12, v13")
    a("v_lshlrev_b32 v12, 7, v12")
    a("v_and_b32 v14, 3, v1")
    a("v_and_b32 v15, 1, v14")
    a("v_lshl_add_u32 v12, v15, 3, v12")
    a("v_lshrrev_b32 v14, 1, v14")
    a("v_xor_b32 v14, v14, v13")
    a(f"v_and_b32 v15, 1, v{V_G}")
    a("v_lshl_or_b32 v14, v15, 2, v14")
    a("v_lshl_add_u32 v12, v14, 4, v12")
    for par in range(2):
        for ft in range(4):
            a(f"v_xor_b32 v{MA+4*par+ft}, {(32*ft) ^ (64*par)}, v12")

def g2_post(a, sc, diag, wait_kv, wait_pq, opts={}):
    a.c("==== G2 (post): tables, den, fold, normalise, main GEMM ====")
    srd(a, 12, S_WS, S_WS+1, WS_SRD_BYTES)
    a(f"s_mov_b32 s28, s{S_WS}"); a(f"s_and_b32 s29, s{S_WS+1}, 0xffff")
    a(f"s_mov_b32 s30, {WS_KVS + KVS_BYTES}"); a("s_mov_b32 s31, 0x20000")
    a("s_lshl_b32 s25, s22, 3")
    a("s_add_u32 s25, s25, s3")
    a("s_mul_i32 s25, s25, 18432")
    a(f"s_add_u32 s25, s25, {WS_PQ}")
    a("v_lshlrev_b32 v11, 4, v1")
    pq_list = []
    for ks in range(18):
        pq_list.append((f"buffer_load_dwordx4 v[{PQ+4*ks}:{PQ+4*ks+3}], v11, s[12:15], s25 offen offset:{1024*(ks % 4)}{sc}", ks % 4 == 3))
    issued = [0]
    def pq_issue(n):
        for ins, adv in pq_list[issued[0]:issued[0]+n]:
            a(ins)
            if adv: a("s_add_u32 s25, s25, 4096")
        issued[0] = min(18, issued[0] + n)
    def pq_loads(): pq_issue(18)
    KV = 64
    def kv_loads():
        for i in range(7):
            a(f"s_mov_b32 s26, {WS_KVS + i*8192}")
            a(f"buffer_load_dwordx4 v[{KV+4*i}:{KV+4*i+3}], v{V_T16}, s[28:31], s26 offen{sc}")
    def tables(per_step):
        for i in range(7):
            k = KV + 4*i
            a(f"s_waitcnt vmcnt({issued[0] + 6 - i})")
            a(f"v_cvt_pk_bf16_f32 v{k}, v{k}, v{k+1}")
            a(f"v_cvt_pk_bf16_f32 v{k+1}, v{k+2}, v{k+3}")
            if i == 6:
                a("s_movk_i32 s38, 384")
                a("v_cmp_gt_u32 vcc, s38, v0")
                a("s_nop 0")
                a(f"s_and_b64 s[26:27], vcc, s[{68+2*i}:{69+2*i}]")
                a(f"s_andn2_b64 exec, vcc, s[{68+2*i}:{69+2*i}]")
                a(f"ds_write_b64 v{KW+i}, v[{k}:{k+1}]")
                a("s_mov_b64 exec, s[26:27]")
            else:
                a(f"s_andn2_b64 exec, -1, s[{68+2*i}:{69+2*i}]")
                a(f"ds_write_b64 v{KW+i}, v[{k}:{k+1}]")
                a(f"s_mov_b64 exec, s[{68+2*i}:{69+2*i}]")
            a(f"ds_write_b16 v{KW+i}, v{k}")
            a("s_mov_b64 exec, -1")
            pq_issue(per_step)
    if wait_pq is not None:
        a("s_cmp_eq_u32 s3, 0")
        a("s_cbranch_scc0 L_g2_nopoll")
        wait_pq(); wait_kv()
        a.label("L_g2_nopoll")
    a("s_waitcnt lgkmcnt(0)")
    a("s_barrier")
    stamp(a, 13, diag)
    if opts.get("touch", 1):
        a("s_cmp_lt_u32 s3, 3")
        a("s_cbranch_scc0 L_g2_notouch")
        a("s_cmp_eq_u32 s3, 2")
        a("s_cbranch_scc1 L_g2_touchkv")
        a("s_mul_i32 s26, s22, 147456")
        a("s_lshl_b32 s27, s23, 14")
        a("s_add_u32 s26, s26, s27")
        a("s_lshl_b32 s27, s3, 13")
        a("s_add_u32 s26, s26, s27")
        a(f"s_add_u32 s26, s26, {WS_PQ}")
        a("v_lshlrev_b32 v12, 7, v1")
        a(f"buffer_load_dword v253, v12, s[12:15], s26 offen{sc}")
        a("s_branch L_g2_notouch")
        a.label("L_g2_touchkv")
        a("s_lshr_b32 s26, s22, 3")
        a("s_mul_i32 s26, s26, 9")
        a("s_add_u32 s26, s26, s23")
        a("s_mul_i32 s26, s26, 3072")
        a(f"s_add_u32 s26, s26, {WS_KVS}")
        a("v_lshlrev_b32 v12, 7, v1")
        a("s_mov_b64 exec, 0xffffff")
        a(f"buffer_load_dword v253, v12, s[12:15], s26 offen{sc}")
        a("s_mov_b64 exec, -1")
        a.label("L_g2_notouch")
    kv_loads()
    pq_issue(opts.get("pq0", 2))
    tables(opts.get("pq1", 1))
    a("s_waitcnt lgkmcnt(0)")
    a("s_barrier")
    stamp(a, 5, diag)
    if opts.get("delay5"):
        for _ in range(opts["delay5"]): a("s_sleep 8")
        stamp(a, 10, diag)
    AF = [32, 48]; BF = [64, 72]; MO = 80; M1 = 112
    def fold_reads(g):
        s = g & 1
        a(f"ds_read_b128 v[{BF[s]}:{BF[s]+3}], v{KB0+g}")
        a(f"ds_read_b128 v[{BF[s]+4}:{BF[s]+7}], v{KB1+g}")
        for ft in range(4):
            t = ft ^ (2*(g & 1))
            for hh in range(2):
                r = AF[s] + 4*ft + 2*hh
                a(f"ds_read_b64_tr_b16 v[{r}:{r+1}], v{TA+4*hh+t} offset:{18432*g}")
    def fold_out(g):
        for ft in range(4):
            r = MO + 16*(g & 1) + 4*ft
            t = ft ^ (2*(g & 1))
            a(f"v_cvt_pk_bf16_f32 v{r}, v{r}, v{r+1}")
            a(f"v_cvt_pk_bf16_f32 v{r+1}, v{r+2}, v{r+3}")
            if not opts.get("fnow"): a(f"ds_write_b64 v{OA+t}, v[{r}:{r+1}] offset:{18432*g}")
    fold_reads(0)
    for g in range(4):
        s = g & 1
        a("s_waitcnt lgkmcnt(0)")
        pq_issue(opts.get("pq2", 3))
        if g + 1 < 4: fold_reads(g + 1)
        for ft in range(4):
            r = MO + 16*s + 4*ft
            a(f"v_mfma_f32_16x16x32_bf16 v[{r}:{r+3}], v[{AF[s]+4*ft}:{AF[s]+4*ft+3}], v[{BF[s]}:{BF[s]+3}], 0")
        for ft in range(4):
            r = M1 + 4*ft
            c = f"v[{r}:{r+3}]" if g else "0"
            a(f"v_mfma_f32_16x16x32_bf16 v[{r}:{r+3}], v[{AF[s]+4*ft}:{AF[s]+4*ft+3}], v[{BF[s]+4}:{BF[s]+7}], {c}")
        if g > 0: fold_out(g - 1)
    a("s_nop 1")
    fold_out(3)
    a(f"v_cmp_gt_u32 vcc, 8, v{V_L15}")
    a("s_and_saveexec_b64 s[26:27], vcc")
    for ft in range(4):
        r = M1 + 4*ft
        a(f"v_cvt_pk_bf16_f32 v{r}, v{r}, v{r+1}")
        a(f"v_cvt_pk_bf16_f32 v{r+1}, v{r+2}, v{r+3}")
        a(f"ds_write_b64 v{OB+ft}, v[{r}:{r+1}]")
    a("s_mov_b64 exec, -1")
    stamp(a, 11, diag)
    pq_issue(18)
    a("s_waitcnt vmcnt(0) lgkmcnt(0)")
    stamp(a, 12, diag)
    ZF = 32; DEN = 16; RD = 24
    zp = []
    def zread(i):
        th, k = divmod(i, 9)
        r = ZF + 4*(i % 12)
        a(f"ds_read_b128 v[{r}:{r+3}], v{ZD+th} offset:{16*i}"); zp.append(i)
    order = [x for k in range(9) for x in (k, 9 + k)]
    for i in order[:9]: zread2 = None
    ZF2 = {i: ZF + 4*(n % 9) for n, i in enumerate(order)}
    def zr(n):
        i = order[n]; th = i // 9
        a(f"ds_read_b128 v[{ZF2[i]}:{ZF2[i]+3}], v{ZD+th} offset:{16*i}")
    for n in range(8): zr(n)
    for n in range(18):
        i = order[n]; th, k = divmod(i, 9)
        outstanding = min(18, n + 8) - n - 1
        a(f"s_waitcnt lgkmcnt({outstanding})")
        c = f"v[{DEN+4*th}:{DEN+4*th+3}]" if k else "0"
        a(f"v_mfma_f32_16x16x32_bf16 v[{DEN+4*th}:{DEN+4*th+3}], v[{ZF2[i]}:{ZF2[i]+3}], v[{PQ+4*i}:{PQ+4*i+3}], {c}")
        if n + 8 < 18: zr(n + 8)
    a("s_nop 7")
    for x in range(8):
        a(f"v_add_f32 v{RD+x}, {hex(EPS)}, v{DEN+x}")
    for x in range(8):
        a(f"v_rcp_f32 v{RD+x}, v{RD+x}")
    a("v_mov_b32 v14, 0xffff0000")
    def norm(ks):
        for p in range(4):
            x = (8*ks + 2*p)//18
            src = PQ + 4*ks + p; t = 32 + 2*p
            rd = RD + x
            a(f"v_lshlrev_b32 v{t}, 16, v{src}")
            a(f"v_and_b32 v{t+1}, v14, v{src}")
            if rd % 2 == 0: a(f"v_pk_mul_f32 v[{t}:{t+1}], v[{t}:{t+1}], v[{rd}:{rd+1}] op_sel_hi:[1,0]")
            else:           a(f"v_pk_mul_f32 v[{t}:{t+1}], v[{t}:{t+1}], v[{rd-1}:{rd}] op_sel:[0,1] op_sel_hi:[1,1]")
        for p in range(4):
            a(f"v_cvt_pk_bf16_f32 v{PQ+4*ks+p}, v{32+2*p}, v{32+2*p+1}")
    if not opts.get("nonorm"):
        for ks in range(18): norm(ks)
    stamp(a, 9, diag)
    a("s_waitcnt lgkmcnt(0)")
    a("s_barrier")
    stamp(a, 6, diag)
    OUT = 16; NSET = 3; MF = [64, 80, 96]
    def mread_ops(ks):
        s = ks % NSET
        return [f"ds_read_b64_tr_b16 v[{MF[s]+4*ft+2*hh}:{MF[s]+4*ft+2*hh+1}], v{MA+4*(ks&1)+ft} offset:{(8*ks+4*hh)*128}" for ft in range(4) for hh in range(2)]
    pend = []
    def issue(ks, lo, hi):
        for idx, r in enumerate(mread_ops(ks)[lo:hi]):
            a(r); pend.append((ks, (lo+idx)//2))
    issue(0, 0, 8); issue(1, 0, 4)
    for ks in range(18):
        s = ks % NSET
        for ft in range(4):
            if ft % 2 == 0:
                last = max(i for i, t in enumerate(pend) if t == (ks, ft + 1))
                a(f"s_waitcnt lgkmcnt({len(pend)-1-last})")
                del pend[:last+1]
            c = f"v[{OUT+4*ft}:{OUT+4*ft+3}]" if ks else "0"
            a(f"v_mfma_f32_16x16x32_bf16 v[{OUT+4*ft}:{OUT+4*ft+3}], v[{MF[s]+4*ft}:{MF[s]+4*ft+3}], v[{PQ+4*ks}:{PQ+4*ks+3}], {c}")
            if ft < 2:
                if ks + 1 < 18: issue(ks + 1, 4 + 2*ft, 6 + 2*ft)
            else:
                if ks + 2 < 18: issue(ks + 2, 2*(ft-2), 2*(ft-2) + 2)
    stamp(a, 7, diag)
    srd(a, 16, S_OUT, S_OUT+1, 2048*2304)
    a("s_lshl_b32 s25, s22, 7")
    a("s_lshl_b32 s26, s3, 4")
    a("s_add_u32 s25, s25, s26")
    a("s_mul_i32 s25, s25, 2304")
    a("s_lshl_b32 s26, s23, 7")
    a("s_add_u32 s25, s25, s26")
    a(f"v_mul_u32_u24 v4, 2304, v{V_L15}")
    a(f"v_lshl_add_u32 v4, v{V_G}, 4, v4")
    for pr in range(2):
        A_ = OUT + 8*pr; B_ = A_ + 4; p = 64 + 4*pr
        a(f"v_cvt_pk_bf16_f32 v{p}, v{A_}, v{A_+1}")
        a(f"v_cvt_pk_bf16_f32 v{p+1}, v{A_+2}, v{A_+3}")
        a(f"v_cvt_pk_bf16_f32 v{p+2}, v{B_}, v{B_+1}")
        a(f"v_cvt_pk_bf16_f32 v{p+3}, v{B_+2}, v{B_+3}")
        a("s_nop 1")
        a(f"v_permlane32_swap_b32 v{p}, v{p+2}")
        a(f"v_permlane32_swap_b32 v{p+1}, v{p+3}")
        a("s_nop 1")
        a(f"v_permlane16_swap_b32 v{p}, v{p+2}")
        a(f"v_permlane16_swap_b32 v{p+1}, v{p+3}")
        a("s_nop 1")
        a(f"buffer_store_dwordx4 v[{p}:{p+3}], v4, s[16:19], s25 offen offset:{64*pr}{opts.get('osc_a', '')}")

def g2_role(a, sc, diag, wait_kv, wait_pq, opts={}):
    g2_dma(a, 0, 8)
    g2_addr(a, diag)
    g2_post(a, sc, diag, wait_kv, wait_pq, opts)
```

```python
from common import *

def z_role(a, diag):
    a.c("==== Z: zero-init ====")
    for i in range(4): a(f"v_mov_b32 v{4+i}, 0")
    a("v_lshlrev_b32 v2, 4, v0")
    a(f"s_mov_b32 s16, s{S_WS}"); a(f"s_and_b32 s17, s{S_WS+1}, 0xffff")
    a(f"s_mov_b32 s18, {WS_FLAG + 0x4000}"); a("s_mov_b32 s19, 0x20000")
    n = (WS_FLAG + 0x4000 - WS_KVS) // 8192
    for i in range(n):
        if (i*8192 >= KVS_BYTES + 2304) and (WS_KVS + (i+1)*8192 <= WS_FLAG): continue
        a(f"s_mov_b32 s21, {WS_KVS + i*8192}")
        a("buffer_store_dwordx4 v[4:7], v2, s[16:19], s21 offen sc0 sc1")
    a("s_waitcnt vmcnt(0)")
    a("s_barrier")
    a("s_cmp_eq_u32 s3, 0")
    a("s_cbranch_scc0 L_z_done")
    a("v_mov_b32 v4, 1")
    a("v_mov_b32 v5, 0")
    a("s_mov_b64 exec, 1")
    a(f"global_store_dword v5, v4, s[{S_DBG}:{S_DBG+1}] sc0 sc1")
    a("s_mov_b64 exec, -1")
    a.label("L_z_done")

def prep_role(a, sc, diag, hbar=False):
    a.c("==== prep: uT (reversed) = (shiftconv(k)*v)^T ====")
    srd(a, 16, S_K, S_K+1, 2048*1152)
    srd(a, 24, S_V, S_V+1, 2048*1152)
    a("s_lshr_b32 s23, s20, 3")
    a("s_and_b32 s22, s20, 7")
    a("s_lshl_b32 s22, s22, 8")
    a("s_lshl_b32 s21, s3, 6")
    a("s_add_u32 s22, s22, s21")
    a("v_and_b32 v2, 7, v1")
    a("v_lshrrev_b32 v3, 3, v1")
    a("v_lshl_add_u32 v4, v3, 3, s22")
    a("v_mul_u32_u24 v5, 1152, v4")
    a("s_lshl_b32 s37, s23, 7")
    a("v_lshl_add_u32 v6, v2, 4, s37")
    a("v_add_u32 v5, v5, v6")
    a("v_subrev_u32 v7, 3456, v5")
    a("v_cmp_eq_u32 vcc, 0, v4")
    a("v_mov_b32 v8, 0x40000000")
    a("s_movk_i32 s38, 4608")
    a("v_cndmask_b32 v7, v7, v8, vcc")
    K = 16; V = 60; Q = 92; W = 124
    for j in range(3): a(f"buffer_load_dwordx4 v[{K+4*j}:{K+4*j+3}], v7, s[16:19], 0 offen offset:{1152*j} nt")
    for j in range(8):
        so = "0" if j < 4 else "s38"
        a(f"buffer_load_dwordx4 v[{K+12+4*j}:{K+12+4*j+3}], v5, s[16:19], {so} offen offset:{1152*(j%4)} nt")
    srd(a, 32, S_SH, S_SH+1, 576*8)
    a("v_lshlrev_b32 v9, 2, v6")
    for j in range(4): a(f"buffer_load_dwordx4 v[{W+4*j}:{W+4*j+3}], v9, s[32:35], 0 offen offset:{16*j}")
    for j in range(8):
        so = "0" if j < 4 else "s38"
        a(f"buffer_load_dwordx4 v[{V+4*j}:{V+4*j+3}], v5, s[24:27], {so} offen offset:{1152*(j%4)} nt")
    srd(a, 12, S_WS, S_WS+1, WS_SRD_BYTES)
    a("v_lshlrev_b32 v10, 11, v6")
    a("v_lshlrev_b32 v11, 1, v4")
    a("v_sub_u32 v13, v10, v11")
    a("v_add_u32 v13, 4080, v13")
    a("v_mov_b32 v14, 0xffff0000")
    KU = 140; VU = 162; WU = 164; U = 172; O = 188
    a("s_waitcnt vmcnt(0)")
    if hbar: a("s_barrier")
    stamp(a, 10, diag)
    for cp in range(4):
        d0, d1, d2, d3 = W+4*cp, W+4*cp+1, W+4*cp+2, W+4*cp+3
        a(f"v_lshlrev_b32 v{WU+0}, 16, v{d0}"); a(f"v_lshlrev_b32 v{WU+1}, 16, v{d2}")
        a(f"v_and_b32 v{WU+2}, v14, v{d0}");    a(f"v_and_b32 v{WU+3}, v14, v{d2}")
        a(f"v_lshlrev_b32 v{WU+4}, 16, v{d1}"); a(f"v_lshlrev_b32 v{WU+5}, 16, v{d3}")
        a(f"v_and_b32 v{WU+6}, v14, v{d1}");    a(f"v_and_b32 v{WU+7}, v14, v{d3}")
        for j in range(11):
            a(f"v_lshlrev_b32 v{KU+2*j}, 16, v{K+4*j+cp}")
            a(f"v_and_b32 v{KU+2*j+1}, v14, v{K+4*j+cp}")
        for r in range(8):
            a(f"v_pk_mul_f32 v[{U+2*r}:{U+2*r+1}], v[{KU+2*r}:{KU+2*r+1}], v[{WU+6}:{WU+7}]")
        for m, w in ((1, 4), (2, 2), (3, 0)):
            for r in range(8):
                u = U + 2*r
                a(f"v_pk_fma_f32 v[{u}:{u+1}], v[{KU+2*(r+m)}:{KU+2*(r+m)+1}], v[{WU+w}:{WU+w+1}], v[{u}:{u+1}]")
        for r in range(8):
            t = KU + 2*r
            a(f"v_lshlrev_b32 v{t}, 16, v{V+4*r+cp}")
            a(f"v_and_b32 v{t+1}, v14, v{V+4*r+cp}")
        for r in range(8):
            a(f"v_pk_mul_f32 v[{U+2*r}:{U+2*r+1}], v[{U+2*r}:{U+2*r+1}], v[{KU+2*r}:{KU+2*r+1}]")
        for half in range(2):
            o = Q + 4*(2*cp + half)
            for j in range(4):
                a(f"v_cvt_pk_bf16_f32 v{o+j}, v{U+2*(7-2*j)+half}, v{U+2*(6-2*j)+half}")
            a(f"s_mov_b32 s39, {WS_UT + (2*cp+half)*4096}")
            a(f"buffer_store_dwordx4 v[{o}:{o+3}], v13, s[12:15], s39 offen{sc}")
    stamp(a, 11, diag)
```

```python
import sys
from common import *
from g1 import *
from prep import *
from conv import *
from g2 import *
from sync import *
NAME = "concat_heads__linear_attn_block__ssm_conv_h3__prompt"
LDS = 163840

def kd(a, name, vgpr, sgpr=102, acc=None):
    a.raw(f".amdhsa_kernel {name}")
    a.raw(f"  .amdhsa_next_free_vgpr {vgpr}")
    a.raw(f"  .amdhsa_next_free_sgpr {sgpr}")
    a.raw(f"  .amdhsa_accum_offset {acc or vgpr}")
    a.raw("  .amdhsa_group_segment_fixed_size 0")
    a.raw("  .amdhsa_kernarg_size 96")
    a.raw("  .amdhsa_user_sgpr_count 2")
    a.raw("  .amdhsa_user_sgpr_kernarg_segment_ptr 1")
    a.raw("  .amdhsa_system_sgpr_workgroup_id_x 1")
    a.raw(".end_amdhsa_kernel")

def phase1_ids(a):
    a(f"s_cmp_ge_u32 s2, {ID_B}")
    a("s_cbranch_scc1 L_roleB")
    a(f"s_cmp_ge_u32 s2, {ID_Q}")
    a("s_cbranch_scc1 L_roleQ")

def k1(a, diag, nskv, nsq, opts):
    name = "k1_kernel"
    entry(a, name, ID_Z + 1)
    if opts.get("pf"):
        a("s_cmp_eq_u32 s3, 3")
        a("s_cbranch_scc0 L_k1_nopf")
        code_prefetch(a, name, f"L_{name}_exit", "k1")
        a.label("L_k1_nopf")
    stamp(a, 0, diag)
    phase1_ids(a)
    a("s_and_b32 s20, s2, 7"); a("s_lshr_b32 s21, s2, 3")
    a("s_lshr_b32 s22, s20, 1"); a("s_lshl_b32 s22, s22, 2"); a("s_and_b32 s23, s21, 3"); a("s_add_u32 s22, s22, s23")
    a("s_and_b32 s23, s20, 1"); a("s_lshl_b32 s23, s23, 2"); a("s_lshr_b32 s24, s21, 2"); a("s_add_u32 s23, s23, s24")
    g1_role(a, False, nskv, "", diag, lambda k: a("s_endpgm"))
    a.label("L_roleQ")
    a("s_and_b32 s20, s2, 7"); a(f"s_sub_u32 s21, s2, {ID_Q}"); a("s_lshr_b32 s21, s21, 3")
    a("s_lshl_b32 s22, s20, 1"); a("s_and_b32 s23, s21, 1"); a("s_add_u32 s22, s22, s23")
    a("s_lshr_b32 s23, s21, 1")
    g1_role(a, True, nsq, "", diag, lambda k: a("s_endpgm"))
    a.label("L_roleB")
    a(f"s_cmp_eq_u32 s2, {ID_Z}")
    a("s_cbranch_scc1 L_roleZ")
    a(f"s_sub_u32 s20, s2, {ID_B}")
    a("s_cmp_ge_u32 s3, 4")
    a("s_cbranch_scc1 L_k1_kernel_exit")
    prep_role(a, "", diag)
    if diag: a("s_waitcnt vmcnt(0)")
    stamp(a, 3, diag)
    a("s_endpgm")
    a.label("L_roleZ")
    z_role(a, diag)
    if opts.get("wopf", 0):
        for k in range(11):
            a(f"v_add_u32 v2, {512*k}, v0")
            a(f"s_movk_i32 s22, 5184")
            a("v_cmp_gt_u32 vcc, s22, v2")
            a("v_lshlrev_b32 v2, 7, v2")
            a("s_mov_b64 exec, vcc")
            L = a.newlabel("wopf")
            a(f"s_cbranch_execz {L}")
            a(f"global_load_dword v253, v2, s[{S_WO}:{S_WO+1}]")
            a.label(L)
            a("s_mov_b64 exec, -1")
    a.label(f"L_{name}_exit")
    a("s_endpgm")

def k2(a, diag, opts):
    name = "k2_kernel"
    entry(a, name, ID_Z)
    if opts.get("pf"):
        a("s_cmp_eq_u32 s3, 3")
        a("s_cbranch_scc0 L_k2_nopf")
        code_prefetch(a, name, f"L_{name}_exit", "k2")
        a.label("L_k2_nopf")
    stamp(a, 4, diag)
    a(f"s_cmp_ge_u32 s2, {ID_B}")
    a("s_cbranch_scc1 L_k2_conv")
    a("s_cmp_lt_u32 s2, 96")
    a("s_cbranch_scc1 L_k2_lo")
    a(f"s_cmp_lt_u32 s2, {ID_Q}")
    a(f"s_cbranch_scc1 L_{name}_exit")
    a("s_sub_u32 s20, s2, 32")
    a("s_branch L_k2_g2")
    a.label("L_k2_lo")
    a("s_mov_b32 s20, s2")
    a.label("L_k2_g2")
    g2_role(a, "", diag, None, None, opts)
    if diag: a("s_waitcnt vmcnt(0)")
    stamp(a, 8, diag)
    a("s_endpgm")
    a.label("L_k2_conv")
    a(f"s_sub_u32 s20, s2, {ID_B}")
    conv_role(a, "", diag, lambda: None)
    if diag: a("s_waitcnt vmcnt(0)")
    stamp(a, 8, diag)
    a.label(f"L_{name}_exit")
    a("s_endpgm")

def k3(a, sel):
    name = "k3_kernel"
    entry(a, name, 1)
    a("s_cmp_eq_u32 s3, 0")
    a(f"s_cbranch_scc0 L_{name}_exit")
    a(f"v_mov_b32 v2, {WS_STAMP}")
    a(f"global_load_dword v3, v2, s[{S_WS}:{S_WS+1}] sc0 sc1")
    a("v_mov_b32 v4, 0")
    for i, (wg, idx) in enumerate(sel):
        a(f"v_cmp_eq_u32 vcc, {i}, v1")
        a(f"v_mov_b32 v5, {WS_STAMP + wg*128 + idx*8}")
        a("s_nop 0")
        a("v_cndmask_b32 v4, v4, v5, vcc")
    a("v_cmp_gt_u32 vcc, 16, v1")
    a("s_and_saveexec_b64 s[20:21], vcc")
    a(f"global_load_dword v6, v4, s[{S_WS}:{S_WS+1}] sc0 sc1")
    a("s_waitcnt vmcnt(0)")
    a("v_sub_u32 v6, v6, v3")
    a("v_lshlrev_b32 v7, 2, v1")
    a(f"global_store_dword v7, v6, s[{S_DBG}:{S_DBG+1}]")
    a.label(f"L_{name}_exit")
    a("s_endpgm")

def fused(a, diag, opts):
    name = NAME + "_kernel"
    sc = {0: " sc0 sc1", 1: " sc1", 2: ""}[opts.get("sc", 1)]
    entry(a, name, ID_Z + 1)
    if opts.get("pf", 1):
        a("s_cmp_eq_u32 s3, 3")
        a("s_cbranch_scc0 L_nopf")
        code_prefetch(a, name, f"L_{name}_exit", "k")
        a.label("L_nopf")
    stamp(a, 0, diag)
    phase1_ids(a)
    def g2_index():
        a("s_sub_u32 s20, s2, 32")
        a(f"s_cmp_ge_u32 s2, {ID_Q}")
        a("s_cselect_b32 s20, s20, s2")
        a("s_cmp_ge_u32 s20, 96")
        a("s_cselect_b32 s21, 1, 0")
        a(f"s_cmp_ge_u32 s2, {ID_Q}")
        a("s_cselect_b32 s21, 0, s21")
        a("s_cmp_eq_u32 s21, 1")
    def after_g1(q):
        def f(kind):
            L = "q" if q else "kv"
            if kind == "loader":
                a("s_barrier")
                g2_index()
                a("s_cbranch_scc1 L_%s_idle" % L)
                n1 = opts.get("dma1_q" if q else "dma1_kv", 40)
                g2_dma_setup(a, 4)
                g2_dma_pieces(a, 4, n1)
                if not q: a("s_barrier")
                if n1 < 72: g2_dma_pieces(a, 4, 72)
                g2_dma_zero(a, 4, 4)
                g2_addr(a, diag)
                a("s_barrier")
                a("s_branch L_A_post")
                a.label("L_%s_idle" % L)
                if not q: a("s_barrier")
                a("s_barrier")
                a("s_endpgm")
            else:
                g2_index()
                a(f"s_cselect_b32 s65, 1, 0")
                a("s_cbranch_scc1 L_%s_noaddr" % L)
                g2_addr(a, diag)
                a.label("L_%s_noaddr" % L)
                a("s_waitcnt vmcnt(0)")
                stamp(a, 3, diag)
                a("s_barrier")
                a("s_cmp_eq_u32 s3, 0")
                a("s_cbranch_scc0 L_%s_noflag" % L)
                if q:
                    wait_dbg(a)
                    a(f"s_sub_u32 s21, s2, {ID_Q - FL_Q}")
                else:
                    a(f"s_add_u32 s21, s2, {FL_KV}")
                flag_store(a, "s21")
                a.label("L_%s_noflag" % L)
                a("s_cmp_eq_u32 s65, 1")
                a(f"s_cbranch_scc1 L_{name}_exit")
                a("s_branch L_A_post")
        return f
    a("s_and_b32 s20, s2, 7"); a("s_lshr_b32 s21, s2, 3")
    a("s_lshr_b32 s22, s20, 1"); a("s_lshl_b32 s22, s22, 2"); a("s_and_b32 s23, s21, 3"); a("s_add_u32 s22, s22, s23")
    a("s_and_b32 s23, s20, 1"); a("s_lshl_b32 s23, s23, 2"); a("s_lshr_b32 s24, s21, 2"); a("s_add_u32 s23, s23, s24")
    g1_role(a, False, opts.get("nskv", 4), sc, diag, after_g1(False))
    a.label("L_roleQ")
    a("s_and_b32 s20, s2, 7"); a(f"s_sub_u32 s21, s2, {ID_Q}"); a("s_lshr_b32 s21, s21, 3")
    a("s_lshl_b32 s22, s20, 1"); a("s_and_b32 s23, s21, 1"); a("s_add_u32 s22, s22, s23")
    a("s_lshr_b32 s23, s21, 1")
    g1_role(a, True, opts.get("nsq", 3), sc, diag, after_g1(True))
    a.label("L_A_post")
    stamp(a, 4, diag)
    g2_ids(a)
    def wait_all():
        a("v_min_u32 v250, 2, v1")
        a("v_lshlrev_b32 v250, 4, v250")
        a("s_and_b32 s66, s22, 1")
        a("s_lshl_b32 s66, s66, 3")
        a("s_lshr_b32 s67, s22, 1")
        a("s_add_u32 s66, s66, s67")
        a(f"s_add_u32 s66, s66, {FL_Q}")
        a("v_add_u32 v250, s66, v250")
        a("v_lshlrev_b32 v250, 6, v250")
        a(f"v_add_u32 v250, {WS_FLAG}, v250")
        a("v_lshlrev_b32 v251, 6, v1")
        a(f"v_add_u32 v252, {WS_FLAG + (FL_KV+64)*64}, v251")
        a(f"v_add_u32 v251, {WS_FLAG + FL_KV*64}, v251")
        poll(a, [250, 251, 252])
    wait_pq = wait_all
    wait_kv = lambda: None
    g2_post(a, opts.get("ldsc", sc), diag, wait_kv, wait_pq, opts)
    diag_delay(a, opts.get("dlyA", 0))
    if diag: a("s_waitcnt vmcnt(0)")
    stamp(a, 8, diag)
    a("s_endpgm")
    a.label("L_roleB")
    a(f"s_cmp_eq_u32 s2, {ID_Z}")
    a("s_cbranch_scc1 L_roleZ")
    a(f"s_sub_u32 s20, s2, {ID_B}")
    if opts.get("dpf", 1):
        data_prefetch(a, "s20", N_B, opts.get("dpf_skip", 1))
        a("s_waitcnt vmcnt(0)")
    conv_ids(a)
    conv_dload(a)
    a("s_cmp_ge_u32 s3, 4")
    a("s_cbranch_scc1 L_B_other")
    prep_role(a, sc, diag)
    a("s_waitcnt vmcnt(0)")
    a("s_branch L_B_noprep")
    a.label("L_B_other")
    conv_filters(a)
    a("s_cmp_eq_u32 s3, 7")
    a("s_cbranch_scc0 L_B_noprep")
    wait_dbg(a)
    a.label("L_B_noprep")
    stamp(a, 3, diag)
    a("s_barrier")
    a("s_cmp_eq_u32 s3, 7")
    a("s_cbranch_scc0 L_B_geom")
    flag_store(a, "s20")
    a.label("L_B_geom")
    conv_geom(a, diag)
    a("s_cmp_eq_u32 s3, 7")
    a("s_cbranch_scc0 L_B_wait")
    a("s_lshr_b32 s66, s21, 3")
    a("s_lshl_b32 s66, s66, 3")
    a("v_and_b32 v248, 7, v1")
    a("v_add_u32 v248, s66, v248")
    a("v_lshlrev_b32 v248, 6, v248")
    a(f"v_add_u32 v248, {WS_FLAG + FL_PREP*64}, v248")
    poll(a, [248])
    a.label("L_B_wait")
    a("s_barrier")
    stamp(a, 4, diag)
    conv_post(a, sc, diag, lambda: None, opts.get("osc_b", ""))
    diag_delay(a, opts.get("dlyB", 0))
    if diag: a("s_waitcnt vmcnt(0)")
    stamp(a, 8, diag)
    a("s_endpgm")
    a.label("L_roleZ")
    z_role(a, diag)
    if opts.get("wopf", 0):
        for k in range(11):
            a(f"v_add_u32 v2, {512*k}, v0")
            a(f"s_movk_i32 s22, 5184")
            a("v_cmp_gt_u32 vcc, s22, v2")
            a("v_lshlrev_b32 v2, 7, v2")
            a("s_mov_b64 exec, vcc")
            L = a.newlabel("wopf")
            a(f"s_cbranch_execz {L}")
            a(f"global_load_dword v253, v2, s[{S_WO}:{S_WO+1}]")
            a.label(L)
            a("s_mov_b64 exec, -1")
    a.label(f"L_{name}_exit")
    a("s_endpgm")
    a.raw(".fill 1024, 4, 0xbf810000")

def main_fused(out, diag, opts):
    a = A()
    a.raw(f"; @launch grid=({ID_Z+1},1,1) block=(512,1,1) lds={LDS}")
    a.raw('.amdgcn_target "amdgcn-amd-amdhsa--gfx950"')
    a.raw(".text")
    fused(a, diag, opts)
    a.raw('.section .rodata,"a"')
    a.raw(".p2align 6")
    kd(a, NAME + "_kernel", 256)
    open(out, "w").write(a.text())

def main(out, diag, opts):
    a = A()
    a.raw(f"; @launch kernel=k1_kernel grid=({ID_Z+1},1,1) block=(512,1,1) lds={LDS}")
    a.raw(f"; @launch kernel=k2_kernel grid=({ID_Z},1,1) block=(512,1,1) lds={LDS}")
    if opts.get("k3"): a.raw("; @launch kernel=k3_kernel grid=(1,1,1) block=(64,1,1) lds=0")
    a.raw('.amdgcn_target "amdgcn-amd-amdhsa--gfx950"')
    a.raw(".text")
    k1(a, diag, opts.get("nskv", 4), opts.get("nsq", 3), opts)
    k2(a, diag, opts)
    if opts.get("k3"):
        k3(a, [(0,1),(0,2),(0,3),(130,2),(130,3),(180,3),(0,4),(0,5),(0,6),(0,7),(0,8),(180,4),(180,5),(180,6),(180,8),(247,8)])
    a.raw('.section .rodata,"a"')
    a.raw(".p2align 6")
    kd(a, "k1_kernel", 256)
    a.raw(".p2align 6")
    kd(a, "k2_kernel", 256)
    if opts.get("k3"):
        a.raw(".p2align 6")
        kd(a, "k3_kernel", 256)
    open(out, "w").write(a.text())

if __name__ == "__main__":
    out = sys.argv[1]; diag = "diag" in sys.argv
    opts = {k: (int(v) if v.lstrip("-").isdigit() else ("" if v == "none" else " " + v.replace("+", " "))) for k, v in (x.split("=") for x in sys.argv[2:] if "=" in x)}
    (main if opts.get('multi') else main_fused)(out, diag, opts)
```

```python
from asmlib import *

WS_UT  = 0x000000
WS_QT  = 0x240000
WS_PQ  = 0x480000
WS_KVS = 0x6C0000
KVS_BYTES = 576*24*4
WS_Z = WS_KVS + KVS_BYTES
WS_FLAG = 0x6D0000
WS_STAMP = 0x800000
WS_SRD_BYTES = 0x800000

LOG2E = 0x3fb8aa3b
EPS = 0x358637bd
ONE_EPS = 0x3f800008

S_X, S_W, S_WO, S_Q, S_K, S_V, S_SH, S_H = 40, 42, 44, 46, 48, 50, 52, 54
S_D, S_OUT, S_DBG, S_WS = 56, 58, 60, 62

N_KV, N_Q, N_B = 128, 48, 72
ID_Q, ID_B, ID_Z = 128, 176, 248

def stamp(a, idx, on):
    if not on: return
    a("s_memrealtime s[96:97]")
    a("s_waitcnt lgkmcnt(0)")
    a("v_mov_b32 v250, s96")
    a("v_mov_b32 v251, s97")
    a("s_lshl_b32 s98, s2, 7")
    a(f"s_add_u32 s98, s98, {WS_STAMP + idx*8}")
    a("v_mov_b32 v252, s98")
    a("s_mov_b64 s[96:97], exec")
    a("s_mov_b64 exec, 1")
    a(f"global_store_dwordx2 v252, v[250:251], s[{S_WS}:{S_WS+1}]")
    a("s_mov_b64 exec, s[96:97]")

def entry(a, name, nwg):
    a.raw(f".globl {name}")
    a.raw(".p2align 8")
    a.raw(f".type {name},@function")
    a.label(name)
    a(f"s_cmp_ge_u32 s2, {nwg}")
    a(f"s_cbranch_scc1 L_{name}_exit")
    a("s_load_dwordx16 s[40:55], s[0:1], 0")
    a("s_load_dwordx8 s[56:63], s[0:1], 64")
    a("v_lshrrev_b32 v1, 6, v0")
    a("s_nop 0")
    a("v_readfirstlane_b32 s3, v1")
    a("v_and_b32 v1, 63, v0")
    a("s_waitcnt lgkmcnt(0)")

def phi4(a, r, t, consts):
    cl, c1, ce = consts
    a(f"v_pk_mul_f32 v[{t}:{t+1}], v[{r}:{r+1}], v[{cl}:{cl+1}]")
    a(f"v_pk_mul_f32 v[{t+2}:{t+3}], v[{r+2}:{r+3}], v[{cl}:{cl+1}]")
    for i in range(4): a(f"v_exp_f32_e64 v{t+i}, v{t+i} clamp")
    a(f"v_pk_add_f32 v[{r}:{r+1}], v[{r}:{r+1}], v[{c1}:{c1+1}]")
    a(f"v_pk_add_f32 v[{r+2}:{r+3}], v[{r+2}:{r+3}], v[{c1}:{c1+1}]")
    a(f"v_pk_add_f32 v[{t}:{t+1}], v[{t}:{t+1}], v[{ce}:{ce+1}]")
    a(f"v_pk_add_f32 v[{t+2}:{t+3}], v[{t+2}:{t+3}], v[{ce}:{ce+1}]")
    for i in range(4): a(f"v_max_f32 v{r+i}, v{r+i}, v{t+i}")

def phi8(a, rA, rB, t, consts):
    cl, c1, ce = consts
    q = [(rA, t), (rA+2, t+2), (rB, t+4), (rB+2, t+6)]
    for r, u in q: a(f"v_pk_mul_f32 v[{u}:{u+1}], v[{r}:{r+1}], v[{cl}:{cl+1}]")
    for r, u in q[:2]: a(f"v_pk_add_f32 v[{r}:{r+1}], v[{r}:{r+1}], v[{c1}:{c1+1}]")
    for i in range(4): a(f"v_exp_f32_e64 v{t+i}, v{t+i} clamp")
    for r, u in q[2:]: a(f"v_pk_add_f32 v[{r}:{r+1}], v[{r}:{r+1}], v[{c1}:{c1+1}]")
    for i in range(4, 8): a(f"v_exp_f32_e64 v{t+i}, v{t+i} clamp")
    for r, u in q[:2]: a(f"v_pk_add_f32 v[{u}:{u+1}], v[{u}:{u+1}], v[{ce}:{ce+1}]")
    for i in range(2): a(f"v_max_f32 v{rA+i}, v{rA+i}, v{t+i}")
    for r, u in q[2:]: a(f"v_pk_add_f32 v[{u}:{u+1}], v[{u}:{u+1}], v[{ce}:{ce+1}]")
    for i in range(2, 4): a(f"v_max_f32 v{rA+i}, v{rA+i}, v{t+i}")
    for i in range(4): a(f"v_max_f32 v{rB+i}, v{rB+i}, v{t+4+i}")

def load_phi_consts(a, base):
    for i, c in enumerate((LOG2E, LOG2E, ONE_EPS, ONE_EPS, EPS, EPS)):
        a(f"v_mov_b32 v{base+i}, {hex(c)}")
    return (base, base+2, base+4)

def code_prefetch(a, start, end, tag):
    a("s_getpc_b64 s[20:21]")
    a.label(f"L_pf_{tag}")
    a(f"s_sub_u32 s20, s20, L_pf_{tag}-{start}")
    a("s_subb_u32 s21, s21, 0")
    a("s_lshr_b32 s22, s2, 3")
    a("s_and_b32 s22, s22, 31")
    a(f"s_mul_i32 s22, s22, (({end}-{start}+4095)/4096)")
    a("v_add_u32 v2, s22, v1")
    a("v_lshlrev_b32 v2, 7, v2")
    a(f"v_cmp_gt_u32 vcc, (({end}-{start}+4095)/4096), v1")
    a("s_and_saveexec_b64 s[22:23], vcc")
    a("global_load_dword v255, v2, s[20:21]")
    a("s_mov_b64 exec, -1")

def data_prefetch(a, idx, nwg, skip=0):
    nW = 576*27; nX = 2048*9; nO = 576*9
    per = -(-(nW + nX + nO) // nwg)
    for k in range(-(-per // 512)):
        a(f"s_mul_i32 s21, {idx}, {per}")
        if k: a(f"s_add_u32 s21, s21, {512*k}")
        a("v_add_u32 v4, s21, v0")
        a(f"s_movk_i32 s22, {per - 512*k}")
        a("v_cmp_gt_u32 s[26:27], s22, v0")
        for ptr, n, dst in ((S_W, nW, 253), (S_X, nX, 254), (S_WO, nO, 255)):
            a(f"s_mov_b32 s22, {n}")
            a("v_cmp_gt_u32 vcc, s22, v4")
            a("v_lshlrev_b32 v2, 7, v4")
            a("s_and_b64 exec, vcc, s[26:27]")
            L = a.newlabel("dpf")
            a(f"s_cbranch_execz {L}")
            a(f"global_load_dword v{dst}, v2, s[{ptr}:{ptr+1}]")
            a.label(L)
            a("s_mov_b64 exec, -1")
            a(f"v_subrev_u32 v4, {n}, v4")

def code_prefetch_all(a, start, end, tag, dst=255):
    a("s_getpc_b64 s[26:27]")
    a.label(f"L_pfa_{tag}")
    a(f"s_sub_u32 s26, s26, L_pfa_{tag}-{start}")
    a("s_subb_u32 s27, s27, 0")
    a("v_lshlrev_b32 v252, 7, v1")
    a(f"global_load_dword v{dst}, v252, s[26:27]")
    a(f"global_load_dword v{dst}, v252, s[26:27] offset:64")
    a("v_add_u32 v252, 8192, v252")
    a(f"v_cmp_gt_u32 vcc, ({end}-{start}), v252")
    a("s_and_saveexec_b64 s[28:29], vcc")
    a(f"s_cbranch_execz L_pfa_{tag}_x")
    a(f"global_load_dword v{dst}, v252, s[26:27]")
    a.label(f"L_pfa_{tag}_x")
    a("s_mov_b64 exec, -1")

def diag_delay(a, us):
    if not us: return
    L = a.newlabel("dly")
    a("s_memrealtime s[90:91]")
    a("s_waitcnt lgkmcnt(0)")
    a(f"s_add_u32 s92, s90, {us*100}")
    a.label(L)
    a("s_memrealtime s[90:91]")
    a("s_waitcnt lgkmcnt(0)")
    a("s_sub_u32 s93, s92, s90")
    a("s_cmp_gt_i32 s93, 0")
    a(f"s_cbranch_scc1 {L}")
```

```python
from common import *

class G1Cfg:
    def __init__(self, q, ns):
        self.q = q
        self.lab = "q" if q else "kv"
        self.NT = 12 if q else 9
        self.WB = 384 if q else 288
        self.CH = self.WB // 16
        self.NS = ns
        self.SLOT = 16384 + 64*self.WB
        self.NWI = self.CH

def g1_loader(a, c, diag):
    L = c.lab
    srd(a, 12, S_X, S_X+1, 2048*1152)
    srd(a, 16, S_W, S_W+1, 576*3456)
    a("v_lshrrev_b32 v2, 3, v1")
    a("v_and_b32 v3, 7, v1")
    a("v_xor_b32 v3, v3, v2")
    a("v_lshlrev_b32 v3, 4, v3")
    a("v_mul_u32_u24 v2, 1152, v2")
    a("v_add_u32 v2, v2, v3")
    a("s_lshl_b32 s26, s22, 7")
    a("s_lshl_b32 s27, s25, 3")
    a("s_add_u32 s26, s26, s27")
    a("s_mul_i32 s26, s26, 1152")
    a("s_lshl_b32 s29, s25, 10")
    def issue_x():
        for mm in range(4):
            a(f"s_add_u32 m0, s29, {mm*4096}")
            a(f"s_add_u32 s31, s26, {mm*36864}")
            a("buffer_load_dwordx4 v2, s[12:15], s31 offen lds")
    def issue_w(n):
        for mm in range(n):
            a(f"s_add_u32 m0, s29, {16384 + mm*4096}")
            a("s_nop 0")
            a(f"buffer_load_dwordx4 v{4+mm}, s[16:19], s28 offen lds")
    def advance():
        a("s_add_u32 s26, s26, 128")
        a(f"s_add_u32 s28, s28, {64*3456}")
        a(f"s_add_u32 s29, s29, {c.SLOT}")
        a(f"s_cmp_ge_u32 s29, {c.SLOT*c.NS}")
        a(f"s_cselect_b32 s37, {c.SLOT*c.NS}, 0")
        a("s_sub_u32 s29, s29, s37")
    issue_x()
    nmm = (c.NWI + 3)//4
    a("s_lshl_b32 s30, s25, 6")
    if c.q:
        a("s_mul_i32 s34, s23, 384")
        for mm in range(nmm):
            a("v_add_u32 v12, s30, v1")
            if mm: a(f"v_add_u32 v12, {256*mm}, v12")
            a("v_mul_u32_u24 v13, 2731, v12")
            a("v_lshrrev_b32 v13, 16, v13")
            a("v_mul_u32_u24 v14, 24, v13")
            a("v_sub_u32 v12, v12, v14")
            a("v_bfe_u32 v14, v13, 1, 1")
            a("v_bfe_u32 v11, v13, 3, 1")
            a("v_lshl_or_b32 v14, v11, 1, v14")
            a("v_lshlrev_b32 v14, 1, v14")
            a("v_xor_b32 v12, v12, v14")
            a("v_mul_u32_u24 v13, 3456, v13")
            a("v_lshl_add_u32 v13, v12, 4, v13")
            a(f"v_add_u32 v{4+mm}, s34, v13")
    else:
        a("s_mul_i32 s33, s23, 144")
        a("s_add_u32 s34, s33, 1152")
        a("s_add_u32 s35, s33, 2160")
        a("v_mov_b32 v10, s34")
        a("v_mov_b32 v11, s35")
        for mm in range(nmm):
            a("v_add_u32 v12, s30, v1")
            if mm: a(f"v_add_u32 v12, {256*mm}, v12")
            a("v_mul_u32_u24 v13, 3641, v12")
            a("v_lshrrev_b32 v13, 16, v13")
            a("v_mul_u32_u24 v14, 18, v13")
            a("v_sub_u32 v12, v12, v14")
            a("v_and_b32 v14, 8, v13")
            a("v_xor_b32 v14, v14, v12")
            a("v_cmp_gt_u32 vcc, 16, v12")
            a("v_mul_u32_u24 v13, 3456, v13")
            a("s_nop 0")
            a("v_cndmask_b32 v12, v12, v14, vcc")
            a("v_cmp_gt_u32 vcc, 9, v12")
            a("v_lshl_add_u32 v13, v12, 4, v13")
            a("s_nop 0")
            a("v_cndmask_b32 v12, v11, v10, vcc")
            a(f"v_add_u32 v{4+mm}, v12, v13")
    a("s_mov_b32 s28, 0")
    variants = [(nmm, None)] if c.NWI % 4 == 0 else [(nmm, "hi"), (nmm-1, "lo")]
    for nw, tag in variants:
        if tag == "hi":
            a(f"s_cmp_lt_u32 s25, {c.NWI % 4}")
            a(f"s_cbranch_scc0 L_ld_{L}_lo")
        if tag == "lo": a.label(f"L_ld_{L}_lo")
        n = 4 + nw
        issue_w(nw)
        advance(); issue_x(); issue_w(nw)
        a("s_mov_b32 s36, 2")
        a.label(f"L_ld_{L}_{tag}_loop")
        a(f"s_waitcnt vmcnt({n})")
        a("s_barrier")
        advance(); issue_x(); issue_w(nw)
        a("s_add_u32 s36, s36, 1")
        a("s_cmp_lt_u32 s36, 9")
        a(f"s_cbranch_scc1 L_ld_{L}_{tag}_loop")
        a(f"s_waitcnt vmcnt({n})")
        a("s_barrier")
        a("s_waitcnt vmcnt(0)")
        a("s_barrier")
        a(f"s_branch L_ld_{L}_done")
    a.label(f"L_ld_{L}_done")

ACC = 64
TWICE = False
KV_T_BASE = 116736

def gemm_loop(a, c, diag, nst, nt, xaddr, waddr, wbase, woff, XF, WF, NW, D, acc_of, swap):
    L = c.lab
    assert (2*nt) % NW == 0
    pend = []
    def xread(ks, st):
        a(f"ds_read_b128 v[{XF[ks]+4*st}:{XF[ks]+4*st+3}], v{xaddr[ks]} offset:{2048*st}"); pend.append(f"x{ks}{st}")
    def wread(s):
        ks = 1 if s < nt else 0
        t = s % nt
        r = WF + (s % NW)*4
        reg, off = woff(t)
        off += 32*ks*c.WB
        a(f"ds_read_b64_tr_b16 v[{r}:{r+1}], v{reg} offset:{off}")
        a(f"ds_read_b64_tr_b16 v[{r+2}:{r+3}], v{reg} offset:{off + 4*c.WB}")
        pend.extend([f"w{s}"]*2)
    def wait_for(names):
        names = [n for n in names if n in pend]
        if not names: return
        last = max(idx for idx, t in enumerate(pend) if t in names)
        a(f"s_waitcnt lgkmcnt({len(pend) - 1 - last})")
        del pend[:last+1]
    def advance():
        a(f"s_add_u32 s25, s25, {c.SLOT}")
        a(f"s_cmp_ge_u32 s25, {c.SLOT*c.NS}")
        a(f"s_cselect_b32 s37, {c.SLOT*c.NS}, 0")
        a("s_sub_u32 s25, s25, s37")
        for reg, base in list(zip(xaddr, wbase[:2])) + list(zip(waddr, wbase[2:])):
            a(f"v_add_u32 v{reg}, s25, v{base}")
    def section(first, look):
        ks = 0 if first else 1
        s0 = nt if first else 0
        xq = list(range(nst))
        for j in range(nt):
            s = s0 + j
            for st in range(nst):
                wait_for([f"w{s}", f"x{ks}{st}"])
                w = WF + (s % NW)*4; x = XF[ks] + 4*st; acc = acc_of(st, j)
                if swap: a(f"v_mfma_f32_16x16x32_bf16 v[{acc}:{acc+3}], v[{w}:{w+3}], v[{x}:{x+3}], v[{acc}:{acc+3}]")
                else:    a(f"v_mfma_f32_16x16x32_bf16 v[{acc}:{acc+3}], v[{x}:{x+3}], v[{w}:{w+3}], v[{acc}:{acc+3}]")
                if st == min(1, nst-1):
                    n = j + D
                    if n < nt: wread(s0 + n)
                    elif look:
                        if n == nt and not first: advance()
                        wread((s0 + n) % (2*nt))
                if st == nst-1 and look and xq:
                    if first and j >= 1: xread(1, xq.pop(0))
                    elif (not first) and j + D > nt: xread(0, xq.pop(0))
        while look and xq: xread(1 - ks if first else 0, xq.pop(0))
    a("s_mov_b32 s24, 0")
    a("s_mov_b32 s25, 0")
    for reg, base in list(zip(xaddr, wbase[:2])) + list(zip(waddr, wbase[2:])):
        a(f"v_mov_b32 v{reg}, v{base}")
    a("s_barrier")
    stamp(a, 1, diag)
    xread(0, 0); wread(nt)
    for st in range(1, nst): xread(0, st)
    for n in range(1, D): wread(nt + n)
    section(True, True)
    state = list(pend)
    a.label(f"L_g1{L}_loop")
    a("s_barrier")
    section(False, True)
    section(True, True)
    assert pend == state, (pend, state)
    a("s_add_u32 s24, s24, 1")
    a("s_cmp_lt_u32 s24, 8")
    a(f"s_cbranch_scc1 L_g1{L}_loop")
    section(False, False)

def g1_compute(a, c, diag):
    a("v_and_b32 v2, 15, v1")
    a("v_lshrrev_b32 v3, 4, v1")
    a("s_lshl_b32 s24, s3, 12")
    a("v_and_b32 v4, 7, v2")
    a("v_xor_b32 v4, v4, v3")
    a("v_lshlrev_b32 v5, 7, v2")
    a("v_lshl_add_u32 v5, v4, 4, v5")
    a("v_add_u32 v6, s24, v5")
    a("v_xor_b32 v7, 64, v6")
    a("v_bfe_u32 v4, v1, 2, 2")
    a("v_lshl_add_u32 v5, v3, 3, v4")
    a(f"v_mul_u32_u24 v5, {c.WB}, v5")
    a("v_and_b32 v8, 3, v1")
    a("v_lshl_add_u32 v5, v8, 3, v5")
    a("v_add_u32 v5, 16384, v5")
    a("v_and_b32 v4, 1, v3")
    a("v_lshlrev_b32 v4, 7, v4")
    a("v_add_u32 v8, v5, v4")
    a("v_sub_u32 v9, v5, v4")
    a("v_mov_b32 v10, v5")
    for i in range(72): a(f"v_mov_b32 v{ACC+i}, 0")
    AW = 236
    woff = lambda t: (AW + (0 if t < 4 else (1 if t < 8 else 2)), 32*t)
    gemm_loop(a, c, diag, 2, 9, [12, 13], [AW, AW+1, AW+2], [6, 7, 8, 9, 10], woff, [16, 24], 32, 6, 5 if False else 4,
              lambda st, j: ACC + (st*9 + j)*4, False)

def q_compute(a, c, diag):
    a("v_and_b32 v2, 15, v1")
    a("v_lshrrev_b32 v3, 4, v1")
    a("s_lshr_b32 s30, s3, 1")
    a("s_and_b32 s31, s3, 1")
    a("s_lshl_b32 s24, s30, 13")
    a("v_and_b32 v4, 7, v2")
    a("v_xor_b32 v4, v4, v3")
    a("v_lshlrev_b32 v5, 7, v2")
    a("v_lshl_add_u32 v5, v4, 4, v5")
    a("v_add_u32 v6, s24, v5")
    a("v_xor_b32 v7, 64, v6")
    a("v_bfe_u32 v4, v1, 2, 2")
    a("v_lshl_add_u32 v5, v3, 3, v4")
    a(f"v_mul_u32_u24 v5, {c.WB}, v5")
    a("v_and_b32 v8, 3, v1")
    a("v_lshl_add_u32 v5, v8, 3, v5")
    a("v_add_u32 v5, 16384, v5")
    a("v_lshrrev_b32 v4, 1, v4")
    a("v_and_b32 v8, 1, v3")
    a("v_lshl_or_b32 v4, v8, 1, v4")
    a("s_mul_i32 s32, s31, 6")
    for t in range(6):
        a(f"s_add_u32 s33, s32, {t}")
        a("s_and_b32 s34, s33, 3")
        a("s_lshr_b32 s33, s33, 2")
        a("s_lshl_b32 s33, s33, 7")
        a(f"v_xor_b32 v14, s34, v4")
        a(f"v_lshl_add_u32 v14, v14, 5, v5")
        a(f"v_add_u32 v{8+t}, s33, v14")
    for i in range(96): a(f"v_mov_b32 v{ACC+i}, 0")
    AW = 236
    gemm_loop(a, c, diag, 4, 6, [14, 15], [AW+t for t in range(6)], [6, 7] + [8+t for t in range(6)],
              lambda t: (AW + t, 0), [16, 32], 160, 6, 4, lambda st, j: ACC + (st*6 + j)*4, True)

def q_epilogue(a, c, sc, diag):
    a.c("-- Q epilogue --")
    a("s_barrier")
    a("v_mov_b32 v15, 0")
    a(f"global_load_dword v14, v15, s[{S_DBG}:{S_DBG+1}] sc0 sc1")
    cs = load_phi_consts(a, 16)
    T = 24
    srd(a, 12, S_WS, S_WS+1, WS_SRD_BYTES)
    a("v_and_b32 v5, 1, v3")
    a("v_lshlrev_b32 v4, 10, v5")
    a("v_lshl_add_u32 v4, v2, 4, v4")
    a("v_cmp_gt_u32 s[34:35], 2, v3")
    a("s_lshl_b32 s25, s22, 3")
    a("s_lshl_b32 s26, s30, 2")
    a("s_add_u32 s25, s25, s26")
    a("s_mul_i32 s25, s25, 18432")
    a(f"s_add_u32 s25, s25, {WS_PQ}")
    a("s_mul_i32 s27, s23, 12")
    a("s_mul_i32 s26, s31, 6")
    a("s_add_u32 s27, s27, s26")
    P = 32
    grp = 0
    def tile_off(dst, tau):
        a(f"s_add_u32 s28, s27, {tau}")
        a("s_mul_i32 s29, s28, 7282")
        a("s_lshr_b32 s29, s29, 16")
        a("s_mul_i32 s36, s29, 9")
        a("s_sub_u32 s36, s28, s36")
        a("s_lshl_b32 s36, s36, 11")
        a("s_lshl_b32 s29, s29, 8")
        a(f"s_add_u32 {dst}, s29, s36")
    for tp in range(3):
        tile_off(f"s{40-8+tp*0}" if False else f"s{84+2*tp}", 2*tp); tile_off(f"s{85+2*tp}", 2*tp+1)
        a(f"v_mov_b32 v6, s{85+2*tp}")
        a(f"v_mov_b32 v7, s{84+2*tp}")
        a("v_cndmask_b32 v6, v6, v7, s[34:35]")
        a(f"v_add_u32 v{8+tp}, v6, v4")
    jobs = [(tp, st) for tp in range(3) for st in range(4)]
    def stage1(n):
        tp, st = jobs[n]
        accA = ACC + (st*6 + 2*tp)*4; accB = accA + 4
        p = P + 4*(n % 4)
        phi8(a, accA, accB, T, cs)
        a(f"v_cvt_pk_bf16_f32 v{p}, v{accA}, v{accA+1}")
        a(f"v_cvt_pk_bf16_f32 v{p+2}, v{accB}, v{accB+1}")
        a(f"v_cvt_pk_bf16_f32 v{p+1}, v{accA+2}, v{accA+3}")
        a(f"v_cvt_pk_bf16_f32 v{p+3}, v{accB+2}, v{accB+3}")
    def swaps(n, which):
        p = P + 4*(n % 4)
        op = "v_permlane32_swap_b32" if which == 0 else "v_permlane16_swap_b32"
        a(f"{op} v{p}, v{p+2}")
        a(f"{op} v{p+1}, v{p+3}")
    def store(n):
        tp, st = jobs[n]
        p = P + 4*(n % 4)
        a(f"s_add_u32 s26, s25, {st*18432}")
        a(f"buffer_store_dwordx4 v[{p}:{p+3}], v{8+tp}, s[12:15], s26 offen{sc}")
    if TWICE:
        a("s_mov_b32 s90, 0")
        a.label("L_qtwice")
    for n in range(len(jobs) + 1):
        if n < len(jobs):
            tp, st = jobs[n]
            accA = ACC + (st*6 + 2*tp)*4; accB = accA + 4
            p = P + 4*(n % 4)
            cl, c1, ce = cs
            t = T
            q = [(accA, t), (accA+2, t+2), (accB, t+4), (accB+2, t+6)]
            for r, u in q: a(f"v_pk_mul_f32 v[{u}:{u+1}], v[{r}:{r+1}], v[{cl}:{cl+1}]")
            if n: swaps(n-1, 0)
            for r, u in q[:2]: a(f"v_pk_add_f32 v[{r}:{r+1}], v[{r}:{r+1}], v[{c1}:{c1+1}]")
            for i in range(4): a(f"v_exp_f32_e64 v{t+i}, v{t+i} clamp")
            if n: swaps(n-1, 1)
            for r, u in q[2:]: a(f"v_pk_add_f32 v[{r}:{r+1}], v[{r}:{r+1}], v[{c1}:{c1+1}]")
            for i in range(4, 8): a(f"v_exp_f32_e64 v{t+i}, v{t+i} clamp")
            if n: store(n-1)
            for r, u in q[:2]: a(f"v_pk_add_f32 v[{u}:{u+1}], v[{u}:{u+1}], v[{ce}:{ce+1}]")
            for i in range(2): a(f"v_max_f32 v{accA+i}, v{accA+i}, v{t+i}")
            for r, u in q[2:]: a(f"v_pk_add_f32 v[{u}:{u+1}], v[{u}:{u+1}], v[{ce}:{ce+1}]")
            for i in range(2, 4): a(f"v_max_f32 v{accA+i}, v{accA+i}, v{t+i}")
            for i in range(4): a(f"v_max_f32 v{accB+i}, v{accB+i}, v{t+4+i}")
            a(f"v_cvt_pk_bf16_f32 v{p}, v{accA}, v{accA+1}")
            a(f"v_cvt_pk_bf16_f32 v{p+1}, v{accA+2}, v{accA+3}")
            a(f"v_cvt_pk_bf16_f32 v{p+2}, v{accB}, v{accB+1}")
            a(f"v_cvt_pk_bf16_f32 v{p+3}, v{accB+2}, v{accB+3}")
        else:
            a("s_nop 1")
            swaps(n-1, 0)
            a("s_nop 1")
            swaps(n-1, 1)
            a("s_nop 0")
            store(n-1)
    if TWICE:
        a("s_cmp_eq_u32 s90, 0")
        a("s_cbranch_scc0 L_qtwice_done")
        stamp(a, 15, diag)
        a("s_mov_b32 s90, 1")
        a("s_branch L_qtwice")
        a.label("L_qtwice_done")

def q_touch(a):
    for tp in range(3):
        for st in range(4):
            pass
    a("v_and_b32 v12, 1, v1")
    a("v_bfe_u32 v13, v1, 1, 2")
    a("v_lshrrev_b32 v15, 3, v1")
    a("v_and_b32 v15, 3, v15")
    a("v_lshrrev_b32 v16, 5, v1")
    a("v_and_b32 v17, 1, v13")
    a("v_lshlrev_b32 v17, 10, v17")
    a("v_lshl_add_u32 v17, v12, 7, v17")
    a("v_mul_u32_u24 v15, 18432, v15")
    a("v_add_u32 v17, v17, v15")
    a("v_cmp_gt_u32 vcc, 2, v13")
    for k, (tpa, tpb) in enumerate(((0, 1), (2, 2))):
        for nm, tp in (("v18", tpa), ("v19", tpb)):
            a(f"v_mov_b32 v20, s{85+2*tp}")
            a(f"v_mov_b32 v21, s{84+2*tp}")
            a(f"v_cndmask_b32 {nm}, v20, v21, vcc")
        a("v_cmp_eq_u32 s[34:35], 0, v16")
        a("s_nop 1")
        a("v_cndmask_b32 v18, v19, v18, s[34:35]")
        a("v_add_u32 v18, v18, v17")
        a("buffer_load_dword v253, v18, s[12:15], s25 offen")

def kv_epilogue(a, c, sc, diag):
    a.c("-- KV epilogue: phi(K), V -> LDS T[col][s]; kv/z via MFMA; atomics --")
    TS = 272
    TB = KV_T_BASE
    cs = load_phi_consts(a, 16)
    T = 24
    a("v_mov_b32 v5, 0")
    a(f"global_load_dword v60, v5, s[{S_DBG}:{S_DBG+1}] sc0 sc1")
    a("s_barrier")
    a(f"v_mul_u32_u24 v4, {TS}, v2")
    a("v_lshl_add_u32 v4, v3, 3, v4")
    a("s_lshl_b32 s24, s3, 6")
    a(f"s_add_u32 s24, s24, {TB}")
    a("v_add_u32 v4, s24, v4")
    a("v_mov_b32 v6, 0x3f803f80")
    a("v_lshlrev_b32 v7, 2, v1")
    a(f"v_add_u32 v7, {TB}, v7")
    a(f"ds_write_b32 v7, v6 offset:{160*TS}")

    a("v_cmp_gt_u32 s[26:27], 8, v2")
    def put(tau, st):
        r = ACC + (st*9 + tau)*4
        p = 32 + 2*((tau*2+st) % 8)
        a(f"v_cvt_pk_bf16_f32 v{p}, v{r}, v{r+1}")
        a(f"v_cvt_pk_bf16_f32 v{p+1}, v{r+2}, v{r+3}")
        a(f"ds_write_b64 v4, v[{p}:{p+1}] offset:{16*tau*TS + st*32}")
    for tau in (5, 6, 7, 8):
        for st in range(2): put(tau, st)
    for tau in (0, 1, 2, 3, 4):
        rA = ACC + tau*4; rB = ACC + (9 + tau)*4
        if tau == 4:
            for i in range(4):
                a(f"v_mov_b32 v{48+i}, v{rA+i}"); a(f"v_mov_b32 v{52+i}, v{rB+i}")
        phi8(a, rA, rB, T, cs)
        if tau == 4:
            for i in range(4):
                a(f"v_cndmask_b32 v{rA+i}, v{48+i}, v{rA+i}, s[26:27]")
                a(f"v_cndmask_b32 v{rB+i}, v{52+i}, v{rB+i}, s[26:27]")
        put(tau, 0); put(tau, 1)
    a("s_waitcnt lgkmcnt(0)")
    a("s_barrier")
    stamp(a, 10, diag)
    a("s_mul_i32 s24, s3, 18")
    a("v_add_u32 v4, s24, v2")
    a(f"v_mul_u32_u24 v4, {TS}, v4")
    a("v_lshl_add_u32 v4, v3, 4, v4")
    a(f"v_add_u32 v4, {TB}, v4")
    a(f"v_add_u32 v5, {72*TS}, v4")
    a(f"v_add_u32 v6, {16*TS}, v5")
    a("v_lshlrev_b32 v7, 4, v3")
    a(f"v_add_u32 v7, {TB + 160*TS}, v7")
    a("v_cmp_eq_u32 vcc, 2, v2")
    a("s_nop 1")
    a("v_cndmask_b32 v6, v6, v7, vcc")
    F = 64
    def rd(ks):
        a(f"ds_read_b128 v[{F+ks*16}:{F+ks*16+3}], v4 offset:{64*ks}")
        a(f"ds_read_b128 v[{F+ks*16+8}:{F+ks*16+11}], v5 offset:{64*ks}")
        a(f"ds_read_b128 v[{F+ks*16+4}:{F+ks*16+7}], v4 offset:{64*ks + 16*TS}")
        a(f"ds_read_b128 v[{F+ks*16+12}:{F+ks*16+15}], v6 offset:{64*ks}")
    for ks in range(3): rd(ks)
    R = 32
    for ks in range(4):
        a(f"s_waitcnt lgkmcnt({[8, 8, 4, 0][ks]})")
        for dt in range(2):
            for et in range(2):
                r = R + (dt*2+et)*4
                A_ = F + ks*16 + dt*4; B_ = F + ks*16 + 8 + et*4
                cc = f"v[{r}:{r+3}]" if ks else "0"
                a(f"v_mfma_f32_16x16x32_bf16 v[{r}:{r+3}], v[{A_}:{A_+3}], v[{B_}:{B_+3}], {cc}")
        if ks == 0: rd(3)
    SCR = 0
    a(f"s_mul_i32 s27, s3, {18*TS}")
    a(f"s_add_u32 s27, s27, {TB}")
    for i in range(4): a(f"v_mov_b32 v{8+i}, 0")
    a("v_lshlrev_b32 v7, 4, v1")
    a("v_add_u32 v7, s27, v7")
    a("ds_write_b128 v7, v[8:11]")
    a("s_mov_b32 exec_lo, -1"); a("s_mov_b32 exec_hi, 0xffff")
    a("ds_write_b128 v7, v[8:11] offset:1024")
    a("s_mov_b64 exec, -1")
    a("v_mul_u32_u24 v4, 384, v3")
    a("v_lshl_add_u32 v5, v2, 2, v4")
    a("v_add_u32 v5, s27, v5")
    a("v_cmp_eq_u32 vcc, 2, v2")
    a("v_add_u32 v6, 64, v5")
    a("v_add_u32 v7, 8, v6")
    a("v_cndmask_b32 v6, v6, v7, vcc")
    a("s_nop 4")
    for i in range(4): a(f"ds_write_b32 v5, v{R+i} offset:{SCR + 96*i}")
    a("s_mov_b32 exec_lo, 0x00070007")
    a("s_mov_b32 exec_hi, 0x00070007")
    for i in range(4): a(f"ds_write_b32 v6, v{R+4+i} offset:{SCR + 96*i}")
    a("s_mov_b64 exec, 0xffff")
    for i in range(2): a(f"ds_write_b32 v5, v{R+8+i} offset:{SCR + 96*i + 1536}")
    a("s_mov_b64 exec, 7")
    for i in range(2): a(f"ds_write_b32 v6, v{R+12+i} offset:{SCR + 96*i + 1536}")
    a("s_mov_b64 exec, -1")
    a("v_lshlrev_b32 v4, 2, v1")
    a("v_add_u32 v5, s27, v4")
    a("s_waitcnt lgkmcnt(0)")
    for i in range(7): a(f"ds_read_b32 v{64+i}, v5 offset:{SCR + 256*i}")
    srd(a, 12, S_WS, S_WS+1, WS_SRD_BYTES)
    a("s_lshl_b32 s24, s23, 2")
    a("s_add_u32 s24, s24, s3")
    a("s_mul_i32 s24, s24, 1728")
    a(f"s_add_u32 s24, s24, {WS_KVS}")
    a("s_mov_b32 s38, 0")
    a.label("L_kv_flag")
    a("s_waitcnt vmcnt(0)")
    a("v_readfirstlane_b32 s25, v60")
    a("s_cmp_lg_u32 s25, 0")
    a("s_cbranch_scc1 L_kv_go")
    a("s_add_u32 s38, s38, 1")
    a("s_cmp_ge_u32 s38, 100000")
    a("s_cbranch_scc1 L_kv_go")
    a("s_sleep 1")
    a("v_mov_b32 v7, 0")
    a(f"global_load_dword v60, v7, s[{S_DBG}:{S_DBG+1}] sc0 sc1")
    a("s_branch L_kv_flag")
    a.label("L_kv_go")
    stamp(a, 11, diag)
    a("s_waitcnt lgkmcnt(0)")
    for i in range(7):
        if i == 6:
            a("s_mov_b32 exec_lo, -1")
            a("s_mov_b32 exec_hi, 0xffff")
        a(f"buffer_atomic_add_f32 v{64+i}, v4, s[12:15], s24 offen offset:{256*i}")
    a("s_mov_b64 exec, -1")
    stamp(a, 12, diag)

def g1_role(a, q, ns, sc, diag, after, prio=0):
    c = G1Cfg(q, ns)
    a(f"s_cmp_ge_u32 s3, 4")
    a(f"s_cbranch_scc0 L_g1{c.lab}_compute")
    a("s_sub_u32 s25, s3, 4")
    g1_loader(a, c, diag)
    after("loader")
    a.label(f"L_g1{c.lab}_compute")
    if prio: a(f"s_setprio {prio}")
    if q: q_compute(a, c, diag)
    else: g1_compute(a, c, diag)
    stamp(a, 2, diag)
    if q: q_epilogue(a, c, sc, diag)
    else: kv_epilogue(a, c, sc, diag)
    after("compute")
```

```python
from common import *

G2_WO = 0
G2_RS = 304
G2_GS = 64*G2_RS
G2_KVB = 4*G2_GS
G2_ZT = G2_KVB + 590*48
G2_ZZ = G2_ZT + 32*288
G2_LDS = G2_ZZ + 288

V_L15, V_G, V_T16 = 9, 10, 8
TA, OA, OB, KB0, KB1 = 200, 208, 212, 216, 220
KW = 224
ZD = 233
MA = 236
PQ = 128

def swz(a, dst, row, cu, t1, t2, block=True):
    a(f"v_lshrrev_b32 v{t1}, 3, v{row}")
    if block:
        a(f"v_mul_u32_u24 v{t2}, 3641, v{row}")
        a(f"v_lshrrev_b32 v{t2}, 19, v{t2}")
        a(f"v_add_u32 v{t1}, v{t1}, v{t2}")
    a(f"v_and_b32 v{t1}, 1, v{t1}")
    a(f"v_and_b32 v{t2}, 3, v{row}")
    a(f"v_lshl_or_b32 v{t1}, v{t1}, 2, v{t2}")
    a(f"v_lshrrev_b32 v{t2}, 1, v{cu}")
    a(f"v_xor_b32 v{t1}, v{t1}, v{t2}")
    a(f"v_lshlrev_b32 v{dst}, 7, v{row}")
    a(f"v_lshl_add_u32 v{dst}, v{t1}, 4, v{dst}")
    a(f"v_and_b32 v{t2}, 1, v{cu}")
    a(f"v_lshl_add_u32 v{dst}, v{t2}, 3, v{dst}")

def mswz(a, dst, row, cu, t1, t2, block=True):
    a(f"v_lshrrev_b32 v{t1}, 3, v{row}")
    if block:
        a(f"v_mul_u32_u24 v{t2}, 3641, v{row}")
        a(f"v_lshrrev_b32 v{t2}, 19, v{t2}")
        a(f"v_add_u32 v{t1}, v{t1}, v{t2}")
    a(f"v_and_b32 v{t1}, 1, v{t1}")
    a(f"v_bfe_u32 v{t2}, v{row}, 1, 1")
    a(f"v_lshl_or_b32 v{t1}, v{t1}, 1, v{t2}")
    a(f"v_bfe_u32 v{t2}, v{row}, 2, 1")
    a(f"v_lshl_or_b32 v{t1}, v{t1}, 1, v{t2}")
    a(f"v_and_b32 v{t2}, 1, v{row}")
    a(f"v_lshl_or_b32 v{t1}, v{t1}, 1, v{t2}")
    a(f"v_xor_b32 v{t1}, v{t1}, v{cu}")
    a(f"v_lshlrev_b32 v{dst}, 7, v{row}")
    a(f"v_lshl_add_u32 v{dst}, v{t1}, 3, v{dst}")

def g2_ids(a):
    a("s_and_b32 s22, s20, 15")
    a("s_lshr_b32 s23, s20, 4")

def g2_dma_setup(a, first_wave):
    g2_ids(a)
    srd(a, 16, S_WO, S_WO+1, 576*1152)
    a("v_lshrrev_b32 v2, 3, v1")
    a("v_and_b32 v3, 7, v1")
    a("v_and_b32 v4, 3, v2")
    a("v_xor_b32 v3, v3, v4")
    a("v_lshlrev_b32 v3, 4, v3")
    a("v_mul_u32_u24 v2, 1152, v2")
    a("v_add_u32 v2, v2, v3")
    a("s_lshl_b32 s82, s23, 7")
    a(f"s_sub_u32 s83, s3, {first_wave}")

def g2_dma_pieces(a, nwaves, limit):
    L = a.newlabel("g2wo")
    a.label(L)
    a("s_mul_i32 s26, s83, 3641")
    a("s_lshr_b32 s26, s26, 16")
    a("s_add_u32 s26, s26, s83")
    a("s_and_b32 s26, s26, 1")
    a("s_lshl_b32 s26, s26, 6")
    a("v_xor_b32 v3, s26, v2")
    a("s_lshl_b32 m0, s83, 10")
    a("s_mul_i32 s25, s83, 9216")
    a("s_add_u32 s25, s25, s82")
    a("buffer_load_dwordx4 v3, s[16:19], s25 offen lds")
    a(f"s_add_u32 s83, s83, {nwaves}")
    a(f"s_cmp_lt_u32 s83, {limit}")
    a(f"s_cbranch_scc1 {L}")

def g2_dma_zero(a, first_wave, nwaves):
    for i in range(4): a(f"v_mov_b32 v{4+i}, 0")
    a(f"v_subrev_u32 v12, {64*first_wave}, v0")
    a("v_lshlrev_b32 v13, 4, v12")
    nthr = 64*nwaves
    a("v_cmp_gt_u32 vcc, 112, v12")
    a("s_and_saveexec_b64 s[26:27], vcc")
    a(f"v_add_u32 v11, {576*128}, v13")
    a("ds_write_b128 v11, v[4:7]")
    a("s_mov_b64 exec, -1")
    a(f"v_add_u32 v11, {G2_KVB}, v13")
    n16 = (590*48 + 9504) // 16
    k = 0
    while k*nthr < n16:
        rem = n16 - k*nthr
        if rem < nthr:
            a(f"s_movk_i32 s38, {rem}")
            a("v_cmp_gt_u32 vcc, s38, v12")
            a("s_and_saveexec_b64 s[26:27], vcc")
        a(f"ds_write_b128 v11, v[4:7] offset:{k*nthr*16}")
        k += 1
    a("s_mov_b64 exec, -1")

def g2_dma(a, first_wave, nwaves):
    g2_dma_setup(a, first_wave)
    g2_dma_pieces(a, nwaves, 72)
    g2_dma_zero(a, first_wave, nwaves)

def g2_addr(a, diag):
    a.c("==== G2 (addr) ====")
    g2_ids(a)
    a(f"v_lshlrev_b32 v{V_T16}, 4, v0")
    a(f"v_and_b32 v{V_L15}, 15, v1")
    a(f"v_lshrrev_b32 v{V_G}, 4, v1")
    a(f"v_lshrrev_b32 v12, 2, v{V_L15}")
    a(f"v_and_b32 v13, 3, v{V_L15}")
    a("v_lshl_add_u32 v13, v12, 3, v13")
    a("v_mul_u32_u24 v13, 288, v13")
    a(f"v_add_u32 v13, {G2_ZT}, v13")
    a(f"v_add_u32 v14, {4*288}, v13")
    a(f"v_mov_b32 v15, {G2_ZZ}")
    a(f"v_cmp_eq_u32 vcc, v12, v{V_G}")
    a("s_nop 1")
    a(f"v_cndmask_b32 v{ZD}, v15, v13, vcc")
    a(f"v_cndmask_b32 v{ZD+1}, v15, v14, vcc")
    a("s_mul_i32 s24, s3, 18")
    a("v_bfe_u32 v12, v1, 2, 2")
    a("v_and_b32 v21, 3, v1")
    a(f"v_lshl_add_u32 v20, v{V_G}, 3, v12")
    a("v_add_u32 v20, s24, v20")
    for hh in range(2):
        if hh: a("v_add_u32 v20, 4, v20")
        swz(a, 23, 20, 21, 24, 25, block=False)
        for t in range(4): a(f"v_xor_b32 v{TA+4*hh+t}, {32*t}, v23")
    a(f"v_add_u32 v20, s24, v{V_L15}")
    a(f"v_mul_u32_u24 v23, {G2_RS}, v{V_L15}")
    a("s_mul_i32 s25, s3, 36")
    a("v_add_u32 v23, s25, v23")
    a(f"v_lshl_add_u32 v{OA}, v{V_G}, 3, v23")
    for ft in range(1, 4): a(f"v_add_u32 v{OA+ft}, {16*G2_RS*ft}, v{OA}")
    a(f"v_mul_u32_u24 v24, {G2_GS}, v{V_G}")
    a("v_add_u32 v24, v24, v23")
    a(f"v_add_u32 v{OB}, 32, v24")
    a(f"v_lshrrev_b32 v24, 2, v{V_L15}")
    a(f"v_and_b32 v25, 3, v{V_L15}")
    a("s_add_u32 s25, s24, 16")
    a(f"v_mul_u32_u24 v22, 48, v20")
    a(f"v_lshl_add_u32 v22, v{V_G}, 4, v22")
    a(f"v_add_u32 v22, {G2_KVB}, v22")
    a(f"v_mov_b32 v15, {G2_ZZ}")
    a(f"v_cmp_eq_u32 s[34:35], 3, v{V_G}")
    a("v_cmp_gt_u32 s[38:39], 2, v25")
    a("v_add_u32 v23, s25, v25")
    a("v_mul_u32_u24 v23, 48, v23")
    a(f"v_lshl_add_u32 v23, v{V_G}, 4, v23")
    a(f"v_add_u32 v23, {G2_KVB}, v23")
    a("s_andn2_b64 s[38:39], s[38:39], s[34:35]")
    for g in range(4):
        a(f"v_add_u32 v28, {6912*g}, v22")
        a(f"v_cndmask_b32 v{KB0+g}, v28, v15, s[34:35]")
        a(f"v_cmp_eq_u32 vcc, {g}, v24")
        a(f"v_add_u32 v28, {6912*g}, v23")
        a("s_nop 0")
        a(f"s_and_b64 s[36:37], vcc, s[38:39]")
        a(f"v_cndmask_b32 v{KB1+g}, v15, v28, s[36:37]")
    for i in range(7):
        a(f"v_add_u32 v12, {512*i}, v0")
        a("v_mul_u32_u24 v13, 10923, v12")
        a("v_lshrrev_b32 v13, 16, v13")
        a("v_mul_u32_u24 v14, 6, v13")
        a("v_sub_u32 v14, v12, v14")
        a(f"v_cmp_eq_u32 s[{68+2*i}:{69+2*i}], 5, v14")
        a("v_mul_u32_u24 v14, 3641, v13")
        a("v_lshrrev_b32 v15, 16, v14")
        a("v_lshrrev_b32 v14, 19, v14")
        a("v_mul_u32_u24 v14, 144, v14")
        a("v_sub_u32 v14, v13, v14")
        a("v_mul_u32_u24 v15, 288, v15")
        a("v_lshl_add_u32 v14, v14, 1, v15")
        a(f"v_add_u32 v14, {G2_ZT}, v14")
        a("v_lshlrev_b32 v12, 3, v12")
        a(f"v_add_u32 v12, {G2_KVB}, v12")
        a(f"v_cndmask_b32 v{KW+i}, v12, v14, s[{68+2*i}:{69+2*i}]")
    a(f"v_mul_u32_u24 v12, {G2_RS}, v{V_L15}")
    a(f"v_mul_u32_u24 v13, {G2_GS}, v{V_G}")
    a(f"v_add_u32 v{MA}, v12, v13")

def g2_post(a, sc, diag, wait_kv, wait_pq, opts={}):
    a.c("==== G2 (post): tables, den, fold, normalise, main GEMM ====")
    srd(a, 12, S_WS, S_WS+1, WS_SRD_BYTES)
    a(f"s_mov_b32 s28, s{S_WS}"); a(f"s_and_b32 s29, s{S_WS+1}, 0xffff")
    a(f"s_mov_b32 s30, {WS_KVS + KVS_BYTES}"); a("s_mov_b32 s31, 0x20000")
    a("s_lshl_b32 s25, s22, 3")
    a("s_add_u32 s25, s25, s3")
    a("s_mul_i32 s25, s25, 18432")
    a(f"s_add_u32 s25, s25, {WS_PQ}")
    a("v_lshlrev_b32 v11, 4, v1")
    pq_list = []
    for ks in range(18):
        pq_list.append((f"buffer_load_dwordx4 v[{PQ+4*ks}:{PQ+4*ks+3}], v11, s[12:15], s25 offen offset:{1024*(ks % 4)}{sc}", ks % 4 == 3))
    issued = [0]
    def pq_issue(n):
        for ins, adv in pq_list[issued[0]:issued[0]+n]:
            a(ins)
            if adv: a("s_add_u32 s25, s25, 4096")
        issued[0] = min(18, issued[0] + n)
    def pq_loads(): pq_issue(18)
    KV = 80
    def kv_loads():
        for i in range(7):
            a(f"s_mov_b32 s26, {WS_KVS + i*8192}")
            a(f"buffer_load_dwordx4 v[{KV+4*i}:{KV+4*i+3}], v{V_T16}, s[28:31], s26 offen{sc}")
    def tables(per_step):
        for i in range(7):
            k = KV + 4*i
            a(f"s_waitcnt vmcnt({issued[0] + 6 - i})")
            a(f"v_cvt_pk_bf16_f32 v{k}, v{k}, v{k+1}")
            a(f"v_cvt_pk_bf16_f32 v{k+1}, v{k+2}, v{k+3}")
            if i == 6:
                a("s_movk_i32 s38, 384")
                a("v_cmp_gt_u32 vcc, s38, v0")
                a("s_nop 0")
                a(f"s_and_b64 s[26:27], vcc, s[{68+2*i}:{69+2*i}]")
                a(f"s_andn2_b64 exec, vcc, s[{68+2*i}:{69+2*i}]")
                a(f"ds_write_b64 v{KW+i}, v[{k}:{k+1}]")
                a("s_mov_b64 exec, s[26:27]")
            else:
                a(f"s_andn2_b64 exec, -1, s[{68+2*i}:{69+2*i}]")
                a(f"ds_write_b64 v{KW+i}, v[{k}:{k+1}]")
                a(f"s_mov_b64 exec, s[{68+2*i}:{69+2*i}]")
            a(f"ds_write_b16 v{KW+i}, v{k}")
            a("s_mov_b64 exec, -1")
            pq_issue(per_step)
    AF4 = [16, 32, 48, 64]
    a("s_waitcnt vmcnt(0) lgkmcnt(0)")
    a("s_barrier")
    n = 0
    for g in range(4):
        for ft in range(4):
            t = ft ^ (2*(g & 1))
            for hh in range(2):
                r = AF4[g] + 4*ft + 2*hh
                a(f"ds_read_b64_tr_b16 v[{r}:{r+1}], v{TA+4*hh+t} offset:{18432*g}")
                n += 1
                if n % 12 == 0: a("s_waitcnt lgkmcnt(4)")
    if wait_pq is not None:
        a("s_cmp_eq_u32 s3, 0")
        a("s_cbranch_scc0 L_g2_nopoll")
        wait_pq(); wait_kv()
        a.label("L_g2_nopoll")
    a("s_waitcnt lgkmcnt(0)")
    a("s_barrier")
    stamp(a, 13, diag)
    if opts.get("touch", 0):
        a("s_cmp_lt_u32 s3, 3")
        a("s_cbranch_scc0 L_g2_notouch")
        a("s_cmp_eq_u32 s3, 2")
        a("s_cbranch_scc1 L_g2_touchkv")
        a("s_mul_i32 s26, s22, 147456")
        a("s_lshl_b32 s27, s23, 14")
        a("s_add_u32 s26, s26, s27")
        a("s_lshl_b32 s27, s3, 13")
        a("s_add_u32 s26, s26, s27")
        a(f"s_add_u32 s26, s26, {WS_PQ}")
        a("v_lshlrev_b32 v12, 7, v1")
        a(f"buffer_load_dword v253, v12, s[12:15], s26 offen{sc}")
        a("s_branch L_g2_notouch")
        a.label("L_g2_touchkv")
        a("s_lshr_b32 s26, s22, 3")
        a("s_mul_i32 s26, s26, 9")
        a("s_add_u32 s26, s26, s23")
        a("s_mul_i32 s26, s26, 3072")
        a(f"s_add_u32 s26, s26, {WS_KVS}")
        a("v_lshlrev_b32 v12, 7, v1")
        a("s_mov_b64 exec, 0xffffff")
        a(f"buffer_load_dword v253, v12, s[12:15], s26 offen{sc}")
        a("s_mov_b64 exec, -1")
        a.label("L_g2_notouch")
    kv_loads()
    pq_issue(opts.get("pq0", 0))
    tables(opts.get("pq1", 0))
    if opts.get("allwait"): a("s_waitcnt vmcnt(0)")
    a("s_waitcnt lgkmcnt(0)")
    a("s_barrier")
    stamp(a, 5, diag)
    if opts.get("delay5"):
        for _ in range(opts["delay5"]): a("s_sleep 8")
        stamp(a, 10, diag)
    if opts.get("twice2"):
        a("s_mov_b32 s90, 0")
        a.label("L_g2twice")
        stamp(a, 14, diag)
    BF = [112, 120]; MO = 80; M1 = 96
    def fold_read_ops(g):
        s = g & 1
        return [f"ds_read_b128 v[{BF[s]}:{BF[s]+3}], v{KB0+g}", f"ds_read_b128 v[{BF[s]+4}:{BF[s]+7}], v{KB1+g}"]
    def fold_out_ops(g):
        cv, wr = [], []
        for ft in range(4):
            r = MO + 4*ft
            cv += [f"v_cvt_pk_bf16_f32 v{r}, v{r}, v{r+1}", f"v_cvt_pk_bf16_f32 v{r+1}, v{r+2}, v{r+3}"]
            wr.append(f"ds_write2_b32 v{OA+ft}, v{r}, v{r+1} offset0:0 offset1:1")
        return cv, wr
    def next_block():
        for ft in range(4): a(f"v_add_u32 v{OA+ft}, {G2_GS}, v{OA+ft}")
    for x in fold_read_ops(0): a(x)
    for g in range(4):
        s = g & 1
        a("s_waitcnt lgkmcnt(0)" if g < 2 or opts.get("fnow") else "s_waitcnt lgkmcnt(1)")
        if opts.get("fst2") and g in (0, 1): stamp(a, {0: 14, 1: 15}[g], diag)
        pq_issue(opts.get("pq2", 0))
        rd = fold_read_ops(g + 1) if g + 1 < 4 else []
        cv, wr = fold_out_ops(g - 1) if g else ([], [])
        A_ = AF4[g]
        m0 = [f"v_mfma_f32_16x16x32_bf16 v[{MO+4*ft}:{MO+4*ft+3}], v[{BF[s]}:{BF[s]+3}], v[{A_+4*ft}:{A_+4*ft+3}], 0" for ft in range(4)]
        m1 = []
        for ft in range(4):
            r = M1 + 4*ft
            c = f"v[{r}:{r+3}]" if g else "0"
            m1.append(f"v_mfma_f32_16x16x32_bf16 v[{r}:{r+3}], v[{BF[s]+4}:{BF[s]+7}], v[{A_+4*ft}:{A_+4*ft+3}], {c}")
        W = lambda k: a(wr[k]) if wr else None
        C = lambda k: (a(cv[2*k]), a(cv[2*k+1])) if cv else None
        a(m1[0]); a(m1[1]); C(0)
        a(m1[2]); C(1); W(0)
        a(m1[3]); C(2); W(1)
        a(m0[0]); C(3); W(2)
        for x in rd: a(x)
        a(m0[1]); W(3)
        if wr: next_block()
        a(m0[2]); a(m0[3])
    if opts.get("fst2"): stamp(a, 12, diag)
    a("s_nop 7")
    cv, wr = fold_out_ops(3)
    for k in range(4):
        a(cv[2*k]); a(cv[2*k+1])
        if k and wr: a(wr[k-1])
    if wr: a(wr[3])
    for ft in range(4):
        r = M1 + 4*ft
        a(f"v_cvt_pk_bf16_f32 v{r}, v{r}, v{r+1}")
    for ft in range(4):
        r = M1 + 4*ft
        a(f"ds_write_b32 v{OB}, v{r} offset:{16*G2_RS*ft}")
    pq_issue(18)
    if opts.get("st11"): stamp(a, 11, diag)
    ZF = 32; DEN = 16; RD = 24
    a("s_waitcnt lgkmcnt(0)")
    order = list(range(18))
    ZF2 = {i: ZF + 4*(n % 12) for n, i in enumerate(order)}
    def zr(n):
        i = order[n]; th = i // 9
        a(f"ds_read_b128 v[{ZF2[i]}:{ZF2[i]+3}], v{ZD+th} offset:{16*i}")
    for n in range(11): zr(n)
    nst = 0
    for n in range(18):
        i = order[n]; th, k = divmod(i, 9)
        outstanding = min(18, n + 11) - n - 1
        a(f"s_waitcnt vmcnt({17 - i}) lgkmcnt({outstanding})")
        c = f"v[{DEN+4*th}:{DEN+4*th+3}]" if k else "0"
        a(f"v_mfma_f32_16x16x32_bf16 v[{DEN+4*th}:{DEN+4*th+3}], v[{ZF2[i]}:{ZF2[i]+3}], v[{PQ+4*i}:{PQ+4*i+3}], {c}")
        if n + 11 < 18: zr(n + 11)
    if not opts.get("fst2"): stamp(a, 12, diag)
    a("s_nop 7")
    for x in range(8):
        a(f"v_add_f32 v{RD+x}, {hex(EPS)}, v{DEN+x}")
    for x in range(8):
        a(f"v_rcp_f32 v{RD+x}, v{RD+x}")
    a("v_mov_b32 v14, 0xffff0000")
    def norm(ks):
        for p in range(4):
            x = (8*ks + 2*p)//18
            src = PQ + 4*ks + p; t = 32 + 2*p
            rd = RD + x
            a(f"v_lshlrev_b32 v{t}, 16, v{src}")
            a(f"v_and_b32 v{t+1}, v14, v{src}")
            if rd % 2 == 0: a(f"v_pk_mul_f32 v[{t}:{t+1}], v[{t}:{t+1}], v[{rd}:{rd+1}] op_sel_hi:[1,0]")
            else:           a(f"v_pk_mul_f32 v[{t}:{t+1}], v[{t}:{t+1}], v[{rd-1}:{rd}] op_sel:[0,1] op_sel_hi:[1,1]")
        for p in range(4):
            a(f"v_cvt_pk_bf16_f32 v{PQ+4*ks+p}, v{32+2*p}, v{32+2*p+1}")
    if not opts.get("nonorm"):
        for ks in range(18): norm(ks)
    stamp(a, 9, diag)
    a("s_waitcnt lgkmcnt(0)")
    a("s_barrier")
    stamp(a, 6, diag)
    OUT = 16; NSET = 4; MF = [64, 80, 96, 112]
    pend = []
    def mrd(ks, ft):
        s = ks % NSET
        a(f"ds_read_b128 v[{MF[s]+4*ft}:{MF[s]+4*ft+3}], v{MA} offset:{16*G2_RS*ft + 16*ks}"); pend.append((ks, ft))
    LOOK = 10
    seq = [(ks, ft) for ks in range(18) for ft in range(4)]
    for x in seq[:LOOK]: mrd(*x)
    for n, (ks, ft) in enumerate(seq):
        if ft % 2 == 0:
            last = max(i for i, t in enumerate(pend) if t == (ks, ft + 1))
            a(f"s_waitcnt lgkmcnt({len(pend)-1-last})")
            del pend[:last+1]
        s = ks % NSET
        c = f"v[{OUT+4*ft}:{OUT+4*ft+3}]" if ks else "0"
        a(f"v_mfma_f32_16x16x32_bf16 v[{OUT+4*ft}:{OUT+4*ft+3}], v[{MF[s]+4*ft}:{MF[s]+4*ft+3}], v[{PQ+4*ks}:{PQ+4*ks+3}], {c}")
        if n + LOOK < len(seq): mrd(*seq[n + LOOK])
    stamp(a, 7, diag)
    if opts.get("twice2"):
        a("s_cmp_eq_u32 s90, 0")
        a("s_cbranch_scc0 L_g2twice_done")
        stamp(a, 15, diag)
        a("s_mov_b32 s90, 1")
        a("s_barrier")
        a("s_branch L_g2twice")
        a.label("L_g2twice_done")
    srd(a, 16, S_OUT, S_OUT+1, 2048*2304)
    a("s_lshl_b32 s25, s22, 7")
    a("s_lshl_b32 s26, s3, 4")
    a("s_add_u32 s25, s25, s26")
    a("s_mul_i32 s25, s25, 2304")
    a("s_lshl_b32 s26, s23, 7")
    a("s_add_u32 s25, s25, s26")
    a(f"v_mul_u32_u24 v4, 2304, v{V_L15}")
    a(f"v_lshl_add_u32 v4, v{V_G}, 4, v4")
    for pr in range(2):
        A_ = OUT + 8*pr; B_ = A_ + 4; p = 64 + 4*pr
        a(f"v_cvt_pk_bf16_f32 v{p}, v{A_}, v{A_+1}")
        a(f"v_cvt_pk_bf16_f32 v{p+1}, v{A_+2}, v{A_+3}")
        a(f"v_cvt_pk_bf16_f32 v{p+2}, v{B_}, v{B_+1}")
        a(f"v_cvt_pk_bf16_f32 v{p+3}, v{B_+2}, v{B_+3}")
        a("s_nop 1")
        a(f"v_permlane32_swap_b32 v{p}, v{p+2}")
        a(f"v_permlane32_swap_b32 v{p+1}, v{p+3}")
        a("s_nop 1")
        a(f"v_permlane16_swap_b32 v{p}, v{p+2}")
        a(f"v_permlane16_swap_b32 v{p+1}, v{p+3}")
        a("s_nop 1")
        a(f"buffer_store_dwordx4 v[{p}:{p+3}], v4, s[16:19], s25 offen offset:{64*pr}{opts.get('osc_a', '')}")

def g2_role(a, sc, diag, wait_kv, wait_pq, opts={}):
    g2_dma(a, 0, 8)
    g2_addr(a, diag)
    g2_post(a, sc, diag, wait_kv, wait_pq, opts)
```

```python
import sys
from common import *
from g1 import *
from prep import *
from conv import *
from g2 import *
from sync import *
NAME = "concat_heads__linear_attn_block__ssm_conv_h3__prompt"
LDS = 163840

def kd(a, name, vgpr, sgpr=102, acc=None):
    a.raw(f".amdhsa_kernel {name}")
    a.raw(f"  .amdhsa_next_free_vgpr {vgpr}")
    a.raw(f"  .amdhsa_next_free_sgpr {sgpr}")
    a.raw(f"  .amdhsa_accum_offset {acc or vgpr}")
    a.raw("  .amdhsa_group_segment_fixed_size 0")
    a.raw("  .amdhsa_kernarg_size 96")
    a.raw("  .amdhsa_user_sgpr_count 2")
    a.raw("  .amdhsa_user_sgpr_kernarg_segment_ptr 1")
    a.raw("  .amdhsa_system_sgpr_workgroup_id_x 1")
    a.raw(".end_amdhsa_kernel")

def phase1_ids(a):
    a(f"s_cmp_ge_u32 s2, {ID_B}")
    a("s_cbranch_scc1 L_roleB")
    a(f"s_cmp_ge_u32 s2, {ID_Q}")
    a("s_cbranch_scc1 L_roleQ")

def k1(a, diag, nskv, nsq, opts):
    name = "k1_kernel"
    entry(a, name, ID_Z + 1)
    if opts.get("pf"):
        a("s_cmp_eq_u32 s3, 3")
        a("s_cbranch_scc0 L_k1_nopf")
        code_prefetch(a, name, f"L_{name}_exit", "k1")
        a.label("L_k1_nopf")
    stamp(a, 0, diag)
    phase1_ids(a)
    a("s_and_b32 s20, s2, 7"); a("s_lshr_b32 s21, s2, 3")
    a("s_lshr_b32 s22, s20, 1"); a("s_lshl_b32 s22, s22, 2"); a("s_and_b32 s23, s21, 3"); a("s_add_u32 s22, s22, s23")
    a("s_and_b32 s23, s20, 1"); a("s_lshl_b32 s23, s23, 2"); a("s_lshr_b32 s24, s21, 2"); a("s_add_u32 s23, s23, s24")
    g1_role(a, False, nskv, "", diag, lambda k: a("s_endpgm"))
    a.label("L_roleQ")
    a("s_and_b32 s20, s2, 7"); a(f"s_sub_u32 s21, s2, {ID_Q}"); a("s_lshr_b32 s21, s21, 3")
    a("s_lshl_b32 s22, s20, 1"); a("s_and_b32 s23, s21, 1"); a("s_add_u32 s22, s22, s23")
    a("s_lshr_b32 s23, s21, 1")
    g1_role(a, True, nsq, "", diag, lambda k: a("s_endpgm"))
    a.label("L_roleB")
    a(f"s_cmp_eq_u32 s2, {ID_Z}")
    a("s_cbranch_scc1 L_roleZ")
    a(f"s_sub_u32 s20, s2, {ID_B}")
    a("s_cmp_ge_u32 s3, 4")
    a("s_cbranch_scc1 L_k1_kernel_exit")
    prep_role(a, "", diag)
    if diag: a("s_waitcnt vmcnt(0)")
    stamp(a, 3, diag)
    a("s_endpgm")
    a.label("L_roleZ")
    z_role(a, diag)
    if opts.get("wopf", 0):
        for k in range(11):
            a(f"v_add_u32 v2, {512*k}, v0")
            a(f"s_movk_i32 s22, 5184")
            a("v_cmp_gt_u32 vcc, s22, v2")
            a("v_lshlrev_b32 v2, 7, v2")
            a("s_mov_b64 exec, vcc")
            L = a.newlabel("wopf")
            a(f"s_cbranch_execz {L}")
            a(f"global_load_dword v253, v2, s[{S_WO}:{S_WO+1}]")
            a.label(L)
            a("s_mov_b64 exec, -1")
    a.label(f"L_{name}_exit")
    a("s_endpgm")

def k2(a, diag, opts):
    name = "k2_kernel"
    entry(a, name, ID_Z)
    if opts.get("pf"):
        a("s_cmp_eq_u32 s3, 3")
        a("s_cbranch_scc0 L_k2_nopf")
        code_prefetch(a, name, f"L_{name}_exit", "k2")
        a.label("L_k2_nopf")
    stamp(a, 4, diag)
    a(f"s_cmp_ge_u32 s2, {ID_B}")
    a("s_cbranch_scc1 L_k2_conv")
    a("s_cmp_lt_u32 s2, 96")
    a("s_cbranch_scc1 L_k2_lo")
    a(f"s_cmp_lt_u32 s2, {ID_Q}")
    a(f"s_cbranch_scc1 L_{name}_exit")
    a("s_sub_u32 s20, s2, 32")
    a("s_branch L_k2_g2")
    a.label("L_k2_lo")
    a("s_mov_b32 s20, s2")
    a.label("L_k2_g2")
    g2_role(a, "", diag, None, None, opts)
    if diag: a("s_waitcnt vmcnt(0)")
    stamp(a, 8, diag)
    a("s_endpgm")
    a.label("L_k2_conv")
    a(f"s_sub_u32 s20, s2, {ID_B}")
    conv_role(a, "", diag, lambda: None)
    if diag: a("s_waitcnt vmcnt(0)")
    stamp(a, 8, diag)
    a.label(f"L_{name}_exit")
    a("s_endpgm")

def k3(a, sel):
    name = "k3_kernel"
    entry(a, name, 1)
    a("s_cmp_eq_u32 s3, 0")
    a(f"s_cbranch_scc0 L_{name}_exit")
    a(f"v_mov_b32 v2, {WS_STAMP}")
    a(f"global_load_dword v3, v2, s[{S_WS}:{S_WS+1}] sc0 sc1")
    a("v_mov_b32 v4, 0")
    for i, (wg, idx) in enumerate(sel):
        a(f"v_cmp_eq_u32 vcc, {i}, v1")
        a(f"v_mov_b32 v5, {WS_STAMP + wg*128 + idx*8}")
        a("s_nop 0")
        a("v_cndmask_b32 v4, v4, v5, vcc")
    a("v_cmp_gt_u32 vcc, 16, v1")
    a("s_and_saveexec_b64 s[20:21], vcc")
    a(f"global_load_dword v6, v4, s[{S_WS}:{S_WS+1}] sc0 sc1")
    a("s_waitcnt vmcnt(0)")
    a("v_sub_u32 v6, v6, v3")
    a("v_lshlrev_b32 v7, 2, v1")
    a(f"global_store_dword v7, v6, s[{S_DBG}:{S_DBG+1}]")
    a.label(f"L_{name}_exit")
    a("s_endpgm")

def fused(a, diag, opts):
    name = NAME + "_kernel"
    sc = {0: " sc0 sc1", 1: " sc1", 2: ""}[opts.get("sc", 1)]
    entry(a, name, ID_Z + 1)
    if opts.get("pf", 1):
        a("s_cmp_eq_u32 s3, 3")
        a("s_cbranch_scc0 L_nopf")
        code_prefetch(a, name, f"L_{name}_exit", "k")
        a.label("L_nopf")
    stamp(a, 0, diag)
    if diag and opts.get("xcc"):
        a("s_getreg_b32 s96, hwreg(HW_REG_XCC_ID)")
        a("s_getreg_b32 s97, hwreg(HW_REG_HW_ID)")
        a("v_mov_b32 v250, s96"); a("v_mov_b32 v251, s97")
        a("s_lshl_b32 s98, s2, 7")
        a(f"s_add_u32 s98, s98, {WS_STAMP + 15*8}")
        a("v_mov_b32 v252, s98")
        a("s_mov_b64 exec, 1")
        a(f"global_store_dwordx2 v252, v[250:251], s[{S_WS}:{S_WS+1}]")
        a("s_mov_b64 exec, -1")
    phase1_ids(a)
    def g2_index():
        a("s_sub_u32 s20, s2, 32")
        a(f"s_cmp_ge_u32 s2, {ID_Q}")
        a("s_cselect_b32 s20, s20, s2")
        a("s_cmp_ge_u32 s20, 96")
        a("s_cselect_b32 s21, 1, 0")
        a(f"s_cmp_ge_u32 s2, {ID_Q}")
        a("s_cselect_b32 s21, 0, s21")
        a("s_cmp_eq_u32 s21, 1")
    def after_g1(q):
        def f(kind):
            L = "q" if q else "kv"
            if kind == "loader":
                a("s_barrier")
                g2_index()
                a("s_cbranch_scc1 L_%s_idle" % L)
                n1 = opts.get("dma1_q" if q else "dma1_kv", 40 if q else 72)
                g2_dma_setup(a, 4)
                g2_dma_pieces(a, 4, n1)
                if not q: a("s_barrier")
                if n1 < 72: g2_dma_pieces(a, 4, 72)
                g2_dma_zero(a, 4, 4)
                g2_addr(a, diag)
                a("s_barrier")
                a("s_branch L_A_post")
                a.label("L_%s_idle" % L)
                if not q: a("s_barrier")
                a("s_barrier")
                a("s_endpgm")
            else:
                if q: stamp(a, 14, diag)
                g2_index()
                a(f"s_cselect_b32 s65, 1, 0")
                if not q:
                    a("s_cbranch_scc1 L_%s_noaddr" % L)
                    g2_addr(a, diag)
                    a.label("L_%s_noaddr" % L)
                a("s_waitcnt vmcnt(0)")
                stamp(a, 3, diag)
                if q and opts.get("qtouch", 1):
                    q_touch(a)
                a("s_barrier")
                a("s_cmp_eq_u32 s3, 0")
                a("s_cbranch_scc0 L_%s_noflag" % L)
                if q:
                    a("v_readfirstlane_b32 s66, v14")
                    a("s_cmp_lg_u32 s66, 0")
                    a("s_cbranch_scc1 L_q_dbgok")
                    wait_dbg(a)
                    a.label("L_q_dbgok")
                    a(f"s_sub_u32 s21, s2, {ID_Q - FL_Q}")
                else:
                    a(f"s_add_u32 s21, s2, {FL_KV}")
                flag_store(a, "s21")
                a.label("L_%s_noflag" % L)
                if q:
                    g2_addr(a, diag)
                else:
                    a("s_cmp_eq_u32 s65, 1")
                    a(f"s_cbranch_scc1 L_{name}_exit")
                a("s_branch L_A_post")
        return f
    a("s_and_b32 s20, s2, 7"); a("s_lshr_b32 s21, s2, 3")
    a("s_lshr_b32 s22, s20, 1"); a("s_lshl_b32 s22, s22, 2"); a("s_and_b32 s23, s21, 3"); a("s_add_u32 s22, s22, s23")
    a("s_and_b32 s23, s20, 1"); a("s_lshl_b32 s23, s23, 2"); a("s_lshr_b32 s24, s21, 2"); a("s_add_u32 s23, s23, s24")
    g1_role(a, False, 4, sc, diag, after_g1(False), opts.get("prio", 0))
    a.label("L_roleQ")
    a("s_and_b32 s20, s2, 7"); a(f"s_sub_u32 s21, s2, {ID_Q}"); a("s_lshr_b32 s21, s21, 3")
    a("s_and_b32 s23, s21, 1"); a("s_lshl_b32 s23, s23, 3"); a("s_add_u32 s22, s20, s23")
    a("s_lshr_b32 s23, s21, 1")
    g1_role(a, True, 4, sc, diag, after_g1(True), opts.get("prio", 0))
    a.label("L_A_post")
    if opts.get("prio", 0): a("s_setprio 0")
    stamp(a, 4, diag)
    g2_ids(a)
    def wait_all():
        a("v_min_u32 v250, 2, v1")
        a("v_lshlrev_b32 v250, 4, v250")
        a("s_lshr_b32 s66, s22, 3")
        a("s_lshl_b32 s66, s66, 3")
        a("s_and_b32 s67, s22, 7")
        a("s_add_u32 s66, s66, s67")
        a(f"s_add_u32 s66, s66, {FL_Q}")
        a("v_add_u32 v250, s66, v250")
        a("v_lshlrev_b32 v250, 6, v250")
        a(f"v_add_u32 v250, {WS_FLAG}, v250")
        a("v_lshlrev_b32 v251, 6, v1")
        a(f"v_add_u32 v252, {WS_FLAG + (FL_KV+64)*64}, v251")
        a(f"v_add_u32 v251, {WS_FLAG + FL_KV*64}, v251")
        poll(a, [250, 251, 252])
    wait_pq = wait_all
    wait_kv = lambda: None
    g2_post(a, opts.get("ldsc", sc), diag, wait_kv, wait_pq, opts)
    diag_delay(a, opts.get("dlyA", 0))
    if diag: a("s_waitcnt vmcnt(0)")
    stamp(a, 8, diag)
    a("s_endpgm")
    a.label("L_roleB")
    a(f"s_cmp_eq_u32 s2, {ID_Z}")
    a("s_cbranch_scc1 L_roleZ")
    a(f"s_sub_u32 s20, s2, {ID_B}")
    if opts.get("dpf", 1):
        data_prefetch(a, "s20", N_B, opts.get("dpf_skip", 1))
        a("s_waitcnt vmcnt(0)")
    conv_ids(a)
    conv_dload(a)
    a("s_cmp_ge_u32 s3, 4")
    a("s_cbranch_scc1 L_B_other")
    prep_role(a, sc, diag)
    a("s_waitcnt vmcnt(0)")
    a("s_branch L_B_noprep")
    a.label("L_B_other")
    conv_filters(a)
    a("s_cmp_eq_u32 s3, 7")
    a("s_cbranch_scc0 L_B_noprep")
    wait_dbg(a)
    a.label("L_B_noprep")
    stamp(a, 3, diag)
    a("s_barrier")
    a("s_cmp_eq_u32 s3, 7")
    a("s_cbranch_scc0 L_B_geom")
    flag_store(a, "s20")
    a.label("L_B_geom")
    conv_geom(a, diag)
    a("s_cmp_eq_u32 s3, 7")
    a("s_cbranch_scc0 L_B_wait")
    a("s_lshr_b32 s66, s21, 3")
    a("s_lshl_b32 s66, s66, 3")
    a("v_and_b32 v248, 7, v1")
    a("v_add_u32 v248, s66, v248")
    a("v_lshlrev_b32 v248, 6, v248")
    a(f"v_add_u32 v248, {WS_FLAG + FL_PREP*64}, v248")
    poll(a, [248])
    a.label("L_B_wait")
    a("s_barrier")
    stamp(a, 4, diag)
    conv_post(a, sc, diag, lambda: None, opts.get("osc_b", ""))
    diag_delay(a, opts.get("dlyB", 0))
    if diag: a("s_waitcnt vmcnt(0)")
    stamp(a, 8, diag)
    a("s_endpgm")
    a.label("L_roleZ")
    z_role(a, diag)
    if opts.get("wopf", 0):
        for k in range(11):
            a(f"v_add_u32 v2, {512*k}, v0")
            a(f"s_movk_i32 s22, 5184")
            a("v_cmp_gt_u32 vcc, s22, v2")
            a("v_lshlrev_b32 v2, 7, v2")
            a("s_mov_b64 exec, vcc")
            L = a.newlabel("wopf")
            a(f"s_cbranch_execz {L}")
            a(f"global_load_dword v253, v2, s[{S_WO}:{S_WO+1}]")
            a.label(L)
            a("s_mov_b64 exec, -1")
    a.label(f"L_{name}_exit")
    a("s_endpgm")
    a.raw(".fill 1024, 4, 0xbf810000")

def main_fused(out, diag, opts):
    import g1 as _g1
    _g1.TWICE = bool(opts.get('twice'))
    a = A()
    a.raw(f"; @launch grid=({ID_Z+1},1,1) block=(512,1,1) lds={LDS}")
    a.raw('.amdgcn_target "amdgcn-amd-amdhsa--gfx950"')
    a.raw(".text")
    fused(a, diag, opts)
    a.raw('.section .rodata,"a"')
    a.raw(".p2align 6")
    kd(a, NAME + "_kernel", 256)
    open(out, "w").write(a.text())

def main(out, diag, opts):
    a = A()
    a.raw(f"; @launch kernel=k1_kernel grid=({ID_Z+1},1,1) block=(512,1,1) lds={LDS}")
    a.raw(f"; @launch kernel=k2_kernel grid=({ID_Z},1,1) block=(512,1,1) lds={LDS}")
    if opts.get("k3"): a.raw("; @launch kernel=k3_kernel grid=(1,1,1) block=(64,1,1) lds=0")
    a.raw('.amdgcn_target "amdgcn-amd-amdhsa--gfx950"')
    a.raw(".text")
    k1(a, diag, opts.get("nskv", 4), opts.get("nsq", 3), opts)
    k2(a, diag, opts)
    if opts.get("k3"):
        k3(a, [(0,1),(0,2),(0,3),(130,2),(130,3),(180,3),(0,4),(0,5),(0,6),(0,7),(0,8),(180,4),(180,5),(180,6),(180,8),(247,8)])
    a.raw('.section .rodata,"a"')
    a.raw(".p2align 6")
    kd(a, "k1_kernel", 256)
    a.raw(".p2align 6")
    kd(a, "k2_kernel", 256)
    if opts.get("k3"):
        a.raw(".p2align 6")
        kd(a, "k3_kernel", 256)
    open(out, "w").write(a.text())

if __name__ == "__main__":
    out = sys.argv[1]; diag = "diag" in sys.argv
    opts = {k: (int(v) if v.lstrip("-").isdigit() else ("" if v == "none" else " " + v.replace("+", " "))) for k, v in (x.split("=") for x in sys.argv[2:] if "=" in x)}
    (main if opts.get('multi') else main_fused)(out, diag, opts)
```

```python
from common import *

CV_HE, CV_HO, CV_U = 0, 4160, 8320
CV_WAVE = 13056
CV_Y = 8*CV_WAVE
CV_LDS = CV_Y + 8*4096

def conv_ids(a):
    a("s_and_b32 s21, s20, 7")
    a("s_mul_i32 s21, s21, 9")
    a("s_lshr_b32 s22, s20, 3")
    a("s_add_u32 s21, s21, s22")
    a("s_lshl_b32 s22, s21, 3")
    a("s_add_u32 s22, s22, s3")
    a(f"s_mul_i32 s23, s3, {CV_WAVE}")
    a("s_lshl_b32 s24, s22, 12")

CV_H = 208
def conv_hload(a, H, so):
    a("v_lshlrev_b32 v2, 4, v1")
    for j in range(4):
        a(f"buffer_load_dwordx4 v[{H+8*j}:{H+8*j+3}], v2, s[16:19], {so} offen offset:{1024*j} nt")
        a(f"buffer_load_dword v{H+8*j+4}, v2, s[16:19], {so} offen offset:{1024*j+16} nt")

def conv_dload(a):
    a("s_lshr_b32 s25, s22, 1")
    a("s_lshl_b32 s25, s25, 2")
    a(f"s_load_dword s64, s[{S_D}:{S_D+1}], s25")

def conv_copies(a, H, sbase):
    a("v_lshlrev_b32 v2, 4, v1")
    a("v_mov_b32 v4, 0"); a("v_mov_b32 v5, 0"); a("v_mov_b32 v6, 0"); a("v_mov_b32 v7, 0")
    a(f"v_add_u32 v3, {sbase}, v2")
    a("s_mov_b32 exec_lo, -1"); a("s_mov_b32 exec_hi, 0")
    a(f"ds_write_b128 v3, v[4:7] offset:{CV_U+4096}")
    a("s_mov_b64 exec, 3")
    a(f"ds_write_b128 v3, v[4:7] offset:{CV_HE}")
    a(f"ds_write_b128 v3, v[4:7] offset:{CV_HO}")
    a("s_mov_b64 exec, -1")
    for j in range(4):
        h = H + 8*j
        a(f"ds_write_b128 v3, v[{h}:{h+3}] offset:{CV_HE + 32 + 1024*j}")
        t = 96 + 4*(j & 1)
        for i in range(4): a(f"v_alignbit_b32 v{t+i}, v{h+i+1}, v{h+i}, 16")
        a(f"ds_write_b128 v3, v[{t}:{t+3}] offset:{CV_HO + 32 + 1024*j}")
    a(f"v_lshlrev_b32 v4, 16, v{H}")
    a("s_mov_b64 exec, 1")
    a(f"ds_write_b32 v3, v4 offset:{CV_HO + 28}")
    a("s_mov_b64 exec, -1")

def conv_filters(a):
    a.c("==== conv: Toeplitz copies of the filters ====")
    conv_ids(a)
    srd(a, 16, S_H, S_H+1, 576*4096)
    a("s_sub_u32 s26, s24, 16384")
    a(f"s_sub_u32 s27, s23, {4*CV_WAVE}")
    conv_hload(a, 128, "s26")
    conv_hload(a, 160, "s24")
    a("s_waitcnt vmcnt(8)")
    conv_copies(a, 128, "s27")
    a("s_waitcnt vmcnt(0)")
    conv_copies(a, 160, "s23")
    a("s_waitcnt lgkmcnt(0)")

CV_QQ = 224
def conv_qearly(a):
    srd(a, 16, S_Q, S_Q+1, 2048*1152)
    a("v_mul_u32_u24 v4, 4608, v0")
    a("s_lshl_b32 s27, s21, 4")
    for row in range(4):
        a(f"buffer_load_dwordx4 v[{CV_QQ+4*row}:{CV_QQ+4*row+3}], v4, s[16:19], s27 offen offset:{1152*row} nt")

def conv_geom(a, diag):
    a.c("==== conv: geometry ====")
    conv_ids(a)
    a("s_waitcnt lgkmcnt(0)")
    a("v_lshlrev_b32 v2, 4, v1")
    a("v_add_u32 v3, s23, v2")
    a("v_and_b32 v8, 15, v1")
    a("v_lshrrev_b32 v9, 4, v1")
    a("v_lshrrev_b32 v10, 1, v9")
    a("v_and_b32 v11, 1, v9")
    a("v_lshlrev_b32 v12, 4, v10")
    a("v_lshl_add_u32 v12, v11, 3, v12")
    a("v_add_u32 v12, v12, v8")
    a("v_and_b32 v13, 1, v8")
    a("v_add_u32 v12, v12, v13")
    a("v_lshlrev_b32 v12, 1, v12")
    a("v_cmp_eq_u32 vcc, 0, v13")
    a(f"v_mov_b32 v14, {CV_HO}")
    a("v_add_u32 v12, s23, v12")
    a("v_cndmask_b32 v14, 0, v14, vcc")
    a("v_add_u32 v16, v12, v14")
    for t in range(1, 4): a(f"v_add_u32 v{16+t}, {1024*t}, v16")
    a("v_sub_u32 v20, v10, v8")
    a("v_lshlrev_b32 v20, 5, v20")
    a("v_lshl_add_u32 v20, v11, 4, v20")
    a(f"v_add_u32 v20, {CV_U + 32*127 - 3584}, v20")
    a("v_add_u32 v20, s23, v20")
    AD = 24
    a("s_waitcnt lgkmcnt(0)")
    a("s_and_b32 s25, s22, 1")
    a("s_lshl_b32 s25, s25, 4")
    a("s_lshr_b32 s26, s64, s25")
    a("s_and_b32 s26, s26, 0xffff")
    a("v_sub_u32 v4, 15, v8")
    a("v_lshrrev_b32 v5, 3, v4")
    a("v_and_b32 v4, 7, v4")
    a("v_and_b32 v6, 1, v4")
    a("v_lshlrev_b32 v6, 4, v6")
    a("v_mov_b32 v7, s26")
    a("v_lshlrev_b32 v7, v6, v7")
    a("v_lshrrev_b32 v4, 1, v4")
    a("v_cmp_eq_u32 vcc, v5, v9")
    a("s_nop 1")
    a("v_cndmask_b32 v7, 0, v7, vcc")
    for j in range(4):
        a(f"v_cmp_eq_u32 vcc, {j}, v4")
        a("s_nop 1")
        a(f"v_cndmask_b32 v{AD+j}, 0, v7, vcc")

def conv_post(a, sc, diag, wait_inputs, osc=''):
    a.c("==== conv (post): long causal convolution via Toeplitz MFMA ====")
    AD = 24
    srd(a, 12, S_WS, S_WS+1, WS_SRD_BYTES)
    wait_inputs()
    UU = 64
    for j in range(4):
        a(f"buffer_load_dwordx4 v[{UU+4*j}:{UU+4*j+3}], v2, s[12:15], s24 offen offset:{1024*j}{sc}")
    a("s_waitcnt vmcnt(0)")
    for j in range(4):
        a(f"ds_write_b128 v3, v[{UU+4*j}:{UU+4*j+3}] offset:{CV_U + 1024*j}")
    QQ = 224
    srd(a, 16, S_Q, S_Q+1, 2048*1152)
    a("v_mul_u32_u24 v4, 4608, v0")
    a("s_lshl_b32 s27, s21, 4")
    a("v_mov_b32 v21, v4")
    def qload(row):
        a(f"buffer_load_dwordx4 v[{QQ+4*row}:{QQ+4*row+3}], v21, s[16:19], s27 offen offset:{1152*row} nt")
    a("s_waitcnt lgkmcnt(0)")
    stamp(a, 5, diag)
    ACCV = 32
    SA = [64, 128]; SB = [96, 160]
    def reads(s):
        out = []
        for j in range(8):
            b = 16 + (j >> 1); o = 128*(j & 1); r = SA[s] + 4*j
            out.append(f"ds_read2_b32 v[{r}:{r+1}], v{b} offset0:{o} offset1:{o+1}")
            out.append(f"ds_read2_b32 v[{r+2}:{r+3}], v{b} offset0:{o+2} offset1:{o+3}")
        B = [f"ds_read_b128 v[{SB[s]+4*i}:{SB[s]+4*i+3}], v20 offset:{512*(7-i)}" for i in range(8)]
        seq = []
        for k in range(8):
            seq += [B[k], out[2*k], out[2*k+1]]
        return seq
    def adv():
        for t in range(4): a(f"v_add_u32 v{16+t}, 64, v{16+t}")
        a("v_add_u32 v20, 64, v20")
    for r in reads(0): a(r)
    adv()
    a("s_waitcnt lgkmcnt(0)")
    for t in range(8):
        a(f"v_mfma_f32_16x16x32_bf16 v[{ACCV+4*t}:{ACCV+4*t+3}], v[{AD}:{AD+3}], v[{SB[0]+4*t}:{SB[0]+4*t+3}], 0")
    pairs = sorted([(i, j) for i in range(8) for j in range(8) if i + j <= 7], key=lambda p: (max(p), p[0]+p[1]))
    def body(s, nxt):
        rs = reads(1 - s) if nxt else []
        k = 0
        for idx, (i, j) in enumerate(pairs):
            if k < len(rs): a(rs[k]); k += 1
            t = i + j
            a(f"v_mfma_f32_16x16x32_bf16 v[{ACCV+4*t}:{ACCV+4*t+3}], v[{SA[s]+4*j}:{SA[s]+4*j+3}], v[{SB[s]+4*i}:{SB[s]+4*i+3}], v[{ACCV+4*t}:{ACCV+4*t+3}]")
        if nxt:
            adv()
            a("s_waitcnt lgkmcnt(0)")
    def qslot(hi, last):
        L = a.newlabel("ql")
        a("s_cmp_lt_u32 s3, 4")
        a(f"s_cbranch_scc{'1' if hi else '0'} {L}")
        if last: qload(3)
        else:
            for row in range(3):
                L2 = a.newlabel("qr")
                a(f"s_cmp_eq_u32 s28, {row}")
                a(f"s_cbranch_scc0 {L2}")
                qload(row)
                a.label(L2)
        a.label(L)
    a("s_mov_b32 s28, 0")
    a.label("L_conv_loop")
    qslot(False, False)
    body(0, True)
    qslot(True, False)
    body(1, True)
    a("s_add_u32 s28, s28, 1")
    a("s_cmp_lt_u32 s28, 3")
    a("s_cbranch_scc1 L_conv_loop")
    qslot(False, True)
    body(0, True)
    qslot(True, True)
    body(1, False)
    stamp(a, 6, diag)
    a("v_lshrrev_b32 v5, 2, v8")
    a("v_xor_b32 v5, v5, v9")
    a("v_lshlrev_b32 v4, 2, v8")
    a("v_add_u32 v4, v4, v5")
    a("v_lshlrev_b32 v4, 3, v4")
    a("s_lshl_b32 s25, s3, 12")
    a(f"s_add_u32 s25, s25, {CV_Y}")
    a("v_add_u32 v4, s25, v4")
    a("v_mov_b32 v14, 0xffff0000")
    for t in range(8):
        r = ACCV + 4*t; u = 64 + 2*(t & 3)
        a(f"v_cvt_pk_bf16_f32 v{u}, v{r}, v{r+1}")
        a(f"v_cvt_pk_bf16_f32 v{u+1}, v{r+2}, v{r+3}")
        a(f"ds_write_b64 v4, v[{u}:{u+1}] offset:{512*t}")
    a("s_waitcnt lgkmcnt(0)")
    a("s_barrier")
    a("v_bfe_u32 v5, v0, 4, 2")
    a("v_xor_b32 v4, v5, v0")
    a("v_lshlrev_b32 v4, 3, v4")
    a(f"v_add_u32 v4, {CV_Y}, v4")
    Y = 64
    for ch in range(8): a(f"ds_read_b64 v[{Y+2*ch}:{Y+2*ch+1}], v4 offset:{4096*ch}")
    srd(a, 16, S_OUT, S_OUT+1, 2048*2304)
    a("v_mul_u32_u24 v5, 9216, v0")
    a("s_lshl_b32 s25, s21, 4")
    a("s_add_u32 s25, s25, 1152")
    a("s_waitcnt vmcnt(0) lgkmcnt(0)")
    for row in range(4):
        d = row >> 1; hi = row & 1
        o = 96 + 4*row
        T = 112
        for k in range(4):
            t = T + 4*(k & 1)
            q = QQ + 4*row + k
            for half in range(2):
                y = Y + 2*(2*k + half) + d
                if hi: a(f"v_and_b32 v{t+half}, v14, v{y}")
                else:  a(f"v_lshlrev_b32 v{t+half}, 16, v{y}")
            a(f"v_lshlrev_b32 v{t+2}, 16, v{q}")
            a(f"v_and_b32 v{t+3}, v14, v{q}")
            a(f"v_pk_mul_f32 v[{t}:{t+1}], v[{t}:{t+1}], v[{t+2}:{t+3}]")
            a(f"v_cvt_pk_bf16_f32 v{o+k}, v{t}, v{t+1}")
        if row == 0: a(f"buffer_store_dwordx4 v[{o}:{o+3}], v5, s[16:19], s25 offen{osc}")
        elif row == 1: a(f"buffer_store_dwordx4 v[{o}:{o+3}], v5, s[16:19], s25 offen offset:2304{osc}")
        else:
            if row == 2: a("s_add_u32 s25, s25, 4608")
            a(f"buffer_store_dwordx4 v[{o}:{o+3}], v5, s[16:19], s25 offen offset:{2304*(row-2)}{osc}")

def conv_role(a, sc, diag, wait_inputs):
    raise NotImplementedError("multi-kernel variant retired")
    conv_post(a, sc, diag, wait_inputs)
```

```python
from common import *

class G1Cfg:
    def __init__(self, q, ns):
        self.q = q
        self.lab = "q" if q else "kv"
        self.NT = 12 if q else 9
        self.WB = 384 if q else 288
        self.CH = self.WB // 16
        self.NS = ns
        self.SLOT = 16384 + 64*self.WB
        self.NWI = self.CH

def g1_loader(a, c, diag):
    L = c.lab
    srd(a, 12, S_X, S_X+1, 2048*1152)
    srd(a, 16, S_W, S_W+1, 576*3456)
    a("v_lshrrev_b32 v2, 3, v1")
    a("v_and_b32 v3, 7, v1")
    a("v_xor_b32 v3, v3, v2")
    a("v_lshlrev_b32 v3, 4, v3")
    a("v_mul_u32_u24 v2, 1152, v2")
    a("v_add_u32 v2, v2, v3")
    a("s_lshl_b32 s26, s22, 7")
    a("s_lshl_b32 s27, s25, 3")
    a("s_add_u32 s26, s26, s27")
    a("s_mul_i32 s26, s26, 1152")
    a("s_lshl_b32 s29, s25, 10")
    def issue_x():
        for mm in range(4):
            a(f"s_add_u32 m0, s29, {mm*4096}")
            a(f"s_add_u32 s31, s26, {mm*36864}")
            a("buffer_load_dwordx4 v2, s[12:15], s31 offen lds")
    def issue_w(n):
        for mm in range(n):
            a(f"s_add_u32 m0, s29, {16384 + mm*4096}")
            a("s_nop 0")
            a(f"buffer_load_dwordx4 v{4+mm}, s[16:19], s28 offen lds")
    def advance():
        a("s_add_u32 s26, s26, 128")
        a(f"s_add_u32 s28, s28, {64*3456}")
        a(f"s_add_u32 s29, s29, {c.SLOT}")
        a(f"s_cmp_ge_u32 s29, {c.SLOT*c.NS}")
        a(f"s_cselect_b32 s37, {c.SLOT*c.NS}, 0")
        a("s_sub_u32 s29, s29, s37")
    issue_x()
    a("s_mov_b32 s28, 0")
    def w0(mm):
        a(f"s_add_u32 m0, s29, {16384 + mm*4096}")
        a("s_nop 0")
        a(f"buffer_load_dwordx4 v{4+mm}, s[16:19], s28 offen lds")
    nmm = (c.NWI + 3)//4
    a("s_lshl_b32 s30, s25, 6")
    if c.q:
        a("s_mul_i32 s34, s23, 384")
        for mm in range(nmm):
            a("v_add_u32 v12, s30, v1")
            if mm: a(f"v_add_u32 v12, {256*mm}, v12")
            a("v_mul_u32_u24 v13, 2731, v12")
            a("v_lshrrev_b32 v13, 16, v13")
            a("v_mul_u32_u24 v14, 24, v13")
            a("v_sub_u32 v12, v12, v14")
            a("v_bfe_u32 v14, v13, 1, 1")
            a("v_bfe_u32 v11, v13, 3, 1")
            a("v_lshl_or_b32 v14, v11, 1, v14")
            a("v_lshlrev_b32 v14, 1, v14")
            a("v_xor_b32 v12, v12, v14")
            a("v_mul_u32_u24 v13, 3456, v13")
            a("v_lshl_add_u32 v13, v12, 4, v13")
            a(f"v_add_u32 v{4+mm}, s34, v13")
            w0(mm)
    else:
        a("s_mul_i32 s33, s23, 144")
        a("s_add_u32 s34, s33, 1152")
        a("s_add_u32 s35, s33, 2160")
        a("v_mov_b32 v10, s34")
        a("v_mov_b32 v11, s35")
        for mm in range(nmm):
            a("v_add_u32 v12, s30, v1")
            if mm: a(f"v_add_u32 v12, {256*mm}, v12")
            a("v_mul_u32_u24 v13, 3641, v12")
            a("v_lshrrev_b32 v13, 16, v13")
            a("v_mul_u32_u24 v14, 18, v13")
            a("v_sub_u32 v12, v12, v14")
            a("v_and_b32 v14, 8, v13")
            a("v_xor_b32 v14, v14, v12")
            a("v_cmp_gt_u32 vcc, 16, v12")
            a("v_mul_u32_u24 v13, 3456, v13")
            a("s_nop 0")
            a("v_cndmask_b32 v12, v12, v14, vcc")
            a("v_cmp_gt_u32 vcc, 9, v12")
            a("v_lshl_add_u32 v13, v12, 4, v13")
            a("s_nop 0")
            a("v_cndmask_b32 v12, v11, v10, vcc")
            a(f"v_add_u32 v{4+mm}, v12, v13")
            if mm < 4: w0(mm)
    variants = [(nmm, None)] if c.NWI % 4 == 0 else [(nmm, "hi"), (nmm-1, "lo")]
    for nw, tag in variants:
        if tag == "hi":
            a(f"s_cmp_lt_u32 s25, {c.NWI % 4}")
            a(f"s_cbranch_scc0 L_ld_{L}_lo")
        if tag == "lo": a.label(f"L_ld_{L}_lo")
        n = 4 + nw
        if tag == "hi": w0(4)
        advance(); issue_x(); issue_w(nw)
        a("s_mov_b32 s36, 2")
        a.label(f"L_ld_{L}_{tag}_loop")
        a(f"s_waitcnt vmcnt({n})")
        a("s_barrier")
        advance(); issue_x(); issue_w(nw)
        a("s_add_u32 s36, s36, 1")
        a("s_cmp_lt_u32 s36, 9")
        a(f"s_cbranch_scc1 L_ld_{L}_{tag}_loop")
        a(f"s_waitcnt vmcnt({n})")
        a("s_barrier")
        a("s_waitcnt vmcnt(0)")
        a("s_barrier")
        a(f"s_branch L_ld_{L}_done")
    a.label(f"L_ld_{L}_done")

ACC = 64
TWICE = False
KV_MID = True
KV_T_BASE = 116736

def gemm_loop(a, c, diag, nst, nt, xaddr, waddr, wbase, woff, XF, WF, NW, D, acc_of, swap, mid=True):
    L = c.lab
    assert (2*nt) % NW == 0
    pend = []
    def xread(ks, st):
        a(f"ds_read_b128 v[{XF[ks]+4*st}:{XF[ks]+4*st+3}], v{xaddr[ks]} offset:{2048*st}"); pend.append(f"x{ks}{st}")
    def wread(s):
        ks = 1 if s < nt else 0
        t = s % nt
        r = WF + (s % NW)*4
        reg, off = woff(t)
        off += 32*ks*c.WB
        a(f"ds_read_b64_tr_b16 v[{r}:{r+1}], v{reg} offset:{off}")
        a(f"ds_read_b64_tr_b16 v[{r+2}:{r+3}], v{reg} offset:{off + 4*c.WB}")
        pend.extend([f"w{s}"]*2)
    def wait_for(names):
        names = [n for n in names if n in pend]
        if not names: return
        last = max(idx for idx, t in enumerate(pend) if t in names)
        a(f"s_waitcnt lgkmcnt({len(pend) - 1 - last})")
        del pend[:last+1]
    def advance():
        a(f"s_add_u32 s25, s25, {c.SLOT}")
        a(f"s_cmp_ge_u32 s25, {c.SLOT*c.NS}")
        a(f"s_cselect_b32 s37, {c.SLOT*c.NS}, 0")
        a("s_sub_u32 s25, s25, s37")
        for reg, base in list(zip(xaddr, wbase[:2])) + list(zip(waddr, wbase[2:])):
            a(f"v_add_u32 v{reg}, s25, v{base}")
    def section(first, look):
        ks = 0 if first else 1
        s0 = nt if first else 0
        xq = list(range(nst))
        for j in range(nt):
            s = s0 + j
            for st in range(nst):
                wait_for([f"w{s}", f"x{ks}{st}"])
                w = WF + (s % NW)*4; x = XF[ks] + 4*st; acc = acc_of(st, j)
                if swap: a(f"v_mfma_f32_16x16x32_bf16 v[{acc}:{acc+3}], v[{w}:{w+3}], v[{x}:{x+3}], v[{acc}:{acc+3}]")
                else:    a(f"v_mfma_f32_16x16x32_bf16 v[{acc}:{acc+3}], v[{x}:{x+3}], v[{w}:{w+3}], v[{acc}:{acc+3}]")
                if st == min(1, nst-1):
                    n = j + D
                    if n < nt: wread(s0 + n)
                    elif look:
                        if n == nt and not first: advance()
                        wread((s0 + n) % (2*nt))
                if st == nst-1 and look and xq:
                    if first and j >= 1: xread(1, xq.pop(0))
                    elif (not first) and j + D > nt: xread(0, xq.pop(0))
        while look and xq: xread(1 - ks if first else 0, xq.pop(0))
    a("s_mov_b32 s24, 0")
    a("s_mov_b32 s25, 0")
    for reg, base in list(zip(xaddr, wbase[:2])) + list(zip(waddr, wbase[2:])):
        a(f"v_mov_b32 v{reg}, v{base}")
    if not mid:
        a.label(f"L_g1{L}_loop")
        a("s_barrier")
        if diag:
            a("s_cmp_eq_u32 s24, 0")
            a(f"s_cbranch_scc0 L_nost_{L}")
            stamp(a, 1, diag)
            a.label(f"L_nost_{L}")
        xread(0, 0); wread(nt)
        for st in range(1, nst): xread(0, st)
        for n in range(1, D): wread(nt + n)
        section(True, True)
        section(False, False)
        assert not pend, pend
        advance()
        a("s_add_u32 s24, s24, 1")
        a("s_cmp_lt_u32 s24, 9")
        a(f"s_cbranch_scc1 L_g1{L}_loop")
        return
    a("s_barrier")
    stamp(a, 1, diag)
    xread(0, 0); wread(nt)
    for st in range(1, nst): xread(0, st)
    for n in range(1, D): wread(nt + n)
    section(True, True)
    state = list(pend)
    a.label(f"L_g1{L}_loop")
    a("s_barrier")
    section(False, True)
    section(True, True)
    assert pend == state, (pend, state)
    a("s_add_u32 s24, s24, 1")
    a("s_cmp_lt_u32 s24, 8")
    a(f"s_cbranch_scc1 L_g1{L}_loop")
    section(False, False)

def g1_compute(a, c, diag):
    a("v_and_b32 v2, 15, v1")
    a("v_lshrrev_b32 v3, 4, v1")
    a("s_lshl_b32 s24, s3, 12")
    a("v_and_b32 v4, 7, v2")
    a("v_xor_b32 v4, v4, v3")
    a("v_lshlrev_b32 v5, 7, v2")
    a("v_lshl_add_u32 v5, v4, 4, v5")
    a("v_add_u32 v6, s24, v5")
    a("v_xor_b32 v7, 64, v6")
    a("v_bfe_u32 v4, v1, 2, 2")
    a("v_lshl_add_u32 v5, v3, 3, v4")
    a(f"v_mul_u32_u24 v5, {c.WB}, v5")
    a("v_and_b32 v8, 3, v1")
    a("v_lshl_add_u32 v5, v8, 3, v5")
    a("v_add_u32 v5, 16384, v5")
    a("v_and_b32 v4, 1, v3")
    a("v_lshlrev_b32 v4, 7, v4")
    a("v_add_u32 v8, v5, v4")
    a("v_sub_u32 v9, v5, v4")
    a("v_mov_b32 v10, v5")
    for i in range(72): a(f"v_mov_b32 v{ACC+i}, 0")
    AW = 236
    woff = lambda t: (AW + (0 if t < 4 else (1 if t < 8 else 2)), 32*t)
    gemm_loop(a, c, diag, 2, 9, [12, 13], [AW, AW+1, AW+2], [6, 7, 8, 9, 10], woff, [16, 24], 32, 6, 5 if False else 4,
              lambda st, j: ACC + (st*9 + j)*4, False, mid=KV_MID)

def q_compute(a, c, diag):
    a("v_and_b32 v2, 15, v1")
    a("v_lshrrev_b32 v3, 4, v1")
    a("s_lshr_b32 s30, s3, 1")
    a("s_and_b32 s31, s3, 1")
    a("s_lshl_b32 s24, s30, 13")
    a("v_and_b32 v4, 7, v2")
    a("v_xor_b32 v4, v4, v3")
    a("v_lshlrev_b32 v5, 7, v2")
    a("v_lshl_add_u32 v5, v4, 4, v5")
    a("v_add_u32 v6, s24, v5")
    a("v_xor_b32 v7, 64, v6")
    a("v_bfe_u32 v4, v1, 2, 2")
    a("v_lshl_add_u32 v5, v3, 3, v4")
    a(f"v_mul_u32_u24 v5, {c.WB}, v5")
    a("v_and_b32 v8, 3, v1")
    a("v_lshl_add_u32 v5, v8, 3, v5")
    a("v_add_u32 v5, 16384, v5")
    a("v_lshrrev_b32 v4, 1, v4")
    a("v_and_b32 v8, 1, v3")
    a("v_lshl_or_b32 v4, v8, 1, v4")
    a("s_mul_i32 s32, s31, 6")
    for t in range(6):
        a(f"s_add_u32 s33, s32, {t}")
        a("s_and_b32 s34, s33, 3")
        a("s_lshr_b32 s33, s33, 2")
        a("s_lshl_b32 s33, s33, 7")
        a(f"v_xor_b32 v14, s34, v4")
        a(f"v_lshl_add_u32 v14, v14, 5, v5")
        a(f"v_add_u32 v{8+t}, s33, v14")
    for i in range(96): a(f"v_mov_b32 v{ACC+i}, 0")
    AW = 236
    gemm_loop(a, c, diag, 4, 6, [14, 15], [AW+t for t in range(6)], [6, 7] + [8+t for t in range(6)],
              lambda t: (AW + t, 0), [16, 32], 160, 6, 4, lambda st, j: ACC + (st*6 + j)*4, True)

def q_epilogue(a, c, sc, diag):
    a.c("-- Q epilogue --")
    a("s_barrier")
    a("v_mov_b32 v15, 0")
    a(f"global_load_dword v14, v15, s[{S_DBG}:{S_DBG+1}] sc0 sc1")
    cs = load_phi_consts(a, 16)
    T = 24
    srd(a, 12, S_WS, S_WS+1, WS_SRD_BYTES)
    a("v_and_b32 v5, 1, v3")
    a("v_lshlrev_b32 v4, 10, v5")
    a("v_lshl_add_u32 v4, v2, 4, v4")
    a("v_cmp_gt_u32 s[34:35], 2, v3")
    a("s_lshl_b32 s25, s22, 3")
    a("s_lshl_b32 s26, s30, 2")
    a("s_add_u32 s25, s25, s26")
    a("s_mul_i32 s25, s25, 18432")
    a(f"s_add_u32 s25, s25, {WS_PQ}")
    a("s_mul_i32 s27, s23, 12")
    a("s_mul_i32 s26, s31, 6")
    a("s_add_u32 s27, s27, s26")
    P = 32
    grp = 0
    def tile_off(dst, tau):
        a(f"s_add_u32 s28, s27, {tau}")
        a("s_mul_i32 s29, s28, 7282")
        a("s_lshr_b32 s29, s29, 16")
        a("s_mul_i32 s36, s29, 9")
        a("s_sub_u32 s36, s28, s36")
        a("s_lshl_b32 s36, s36, 11")
        a("s_lshl_b32 s29, s29, 8")
        a(f"s_add_u32 {dst}, s29, s36")
    for tp in range(3):
        tile_off(f"s{40-8+tp*0}" if False else f"s{84+2*tp}", 2*tp); tile_off(f"s{85+2*tp}", 2*tp+1)
        a(f"v_mov_b32 v6, s{85+2*tp}")
        a(f"v_mov_b32 v7, s{84+2*tp}")
        a("v_cndmask_b32 v6, v6, v7, s[34:35]")
        a(f"v_add_u32 v{8+tp}, v6, v4")
    jobs = [(tp, st) for tp in range(3) for st in range(4)]
    def stage1(n):
        tp, st = jobs[n]
        accA = ACC + (st*6 + 2*tp)*4; accB = accA + 4
        p = P + 4*(n % 4)
        phi8(a, accA, accB, T, cs)
        a(f"v_cvt_pk_bf16_f32 v{p}, v{accA}, v{accA+1}")
        a(f"v_cvt_pk_bf16_f32 v{p+2}, v{accB}, v{accB+1}")
        a(f"v_cvt_pk_bf16_f32 v{p+1}, v{accA+2}, v{accA+3}")
        a(f"v_cvt_pk_bf16_f32 v{p+3}, v{accB+2}, v{accB+3}")
    def swaps(n, which):
        p = P + 4*(n % 4)
        op = "v_permlane32_swap_b32" if which == 0 else "v_permlane16_swap_b32"
        a(f"{op} v{p}, v{p+2}")
        a(f"{op} v{p+1}, v{p+3}")
    def store(n):
        tp, st = jobs[n]
        p = P + 4*(n % 4)
        a(f"s_add_u32 s26, s25, {st*18432}")
        a(f"buffer_store_dwordx4 v[{p}:{p+3}], v{8+tp}, s[12:15], s26 offen{sc}")
    if TWICE:
        a("s_mov_b32 s90, 0")
        a.label("L_qtwice")
    for n in range(len(jobs) + 1):
        if n < len(jobs):
            tp, st = jobs[n]
            accA = ACC + (st*6 + 2*tp)*4; accB = accA + 4
            p = P + 4*(n % 4)
            cl, c1, ce = cs
            t = T
            q = [(accA, t), (accA+2, t+2), (accB, t+4), (accB+2, t+6)]
            for r, u in q: a(f"v_pk_mul_f32 v[{u}:{u+1}], v[{r}:{r+1}], v[{cl}:{cl+1}]")
            if n: swaps(n-1, 0)
            for r, u in q[:2]: a(f"v_pk_add_f32 v[{r}:{r+1}], v[{r}:{r+1}], v[{c1}:{c1+1}]")
            for i in range(4): a(f"v_exp_f32_e64 v{t+i}, v{t+i} clamp")
            if n: swaps(n-1, 1)
            for r, u in q[2:]: a(f"v_pk_add_f32 v[{r}:{r+1}], v[{r}:{r+1}], v[{c1}:{c1+1}]")
            for i in range(4, 8): a(f"v_exp_f32_e64 v{t+i}, v{t+i} clamp")
            if n: store(n-1)
            for r, u in q[:2]: a(f"v_pk_add_f32 v[{u}:{u+1}], v[{u}:{u+1}], v[{ce}:{ce+1}]")
            for i in range(2): a(f"v_max_f32 v{accA+i}, v{accA+i}, v{t+i}")
            for r, u in q[2:]: a(f"v_pk_add_f32 v[{u}:{u+1}], v[{u}:{u+1}], v[{ce}:{ce+1}]")
            for i in range(2, 4): a(f"v_max_f32 v{accA+i}, v{accA+i}, v{t+i}")
            for i in range(4): a(f"v_max_f32 v{accB+i}, v{accB+i}, v{t+4+i}")
            a(f"v_cvt_pk_bf16_f32 v{p}, v{accA}, v{accA+1}")
            a(f"v_cvt_pk_bf16_f32 v{p+1}, v{accA+2}, v{accA+3}")
            a(f"v_cvt_pk_bf16_f32 v{p+2}, v{accB}, v{accB+1}")
            a(f"v_cvt_pk_bf16_f32 v{p+3}, v{accB+2}, v{accB+3}")
        else:
            a("s_nop 1")
            swaps(n-1, 0)
            a("s_nop 1")
            swaps(n-1, 1)
            a("s_nop 0")
            store(n-1)
    if TWICE:
        a("s_cmp_eq_u32 s90, 0")
        a("s_cbranch_scc0 L_qtwice_done")
        stamp(a, 15, diag)
        a("s_mov_b32 s90, 1")
        a("s_branch L_qtwice")
        a.label("L_qtwice_done")

def q_touch(a):
    for tp in range(3):
        for st in range(4):
            pass
    a("v_and_b32 v12, 1, v1")
    a("v_bfe_u32 v13, v1, 1, 2")
    a("v_lshrrev_b32 v15, 3, v1")
    a("v_and_b32 v15, 3, v15")
    a("v_lshrrev_b32 v16, 5, v1")
    a("v_and_b32 v17, 1, v13")
    a("v_lshlrev_b32 v17, 10, v17")
    a("v_lshl_add_u32 v17, v12, 7, v17")
    a("v_mul_u32_u24 v15, 18432, v15")
    a("v_add_u32 v17, v17, v15")
    a("v_cmp_gt_u32 vcc, 2, v13")
    for k, (tpa, tpb) in enumerate(((0, 1), (2, 2))):
        for nm, tp in (("v18", tpa), ("v19", tpb)):
            a(f"v_mov_b32 v20, s{85+2*tp}")
            a(f"v_mov_b32 v21, s{84+2*tp}")
            a(f"v_cndmask_b32 {nm}, v20, v21, vcc")
        a("v_cmp_eq_u32 s[34:35], 0, v16")
        a("s_nop 1")
        a("v_cndmask_b32 v18, v19, v18, s[34:35]")
        a("v_add_u32 v18, v18, v17")
        a("buffer_load_dword v253, v18, s[12:15], s25 offen")

def kv_epilogue(a, c, sc, diag):
    a.c("-- KV epilogue: phi(K), V -> LDS T[col][s]; kv/z via MFMA; atomics --")
    TS = 272
    TB = KV_T_BASE
    cs = load_phi_consts(a, 16)
    T = 24
    a("v_mov_b32 v5, 0")
    a(f"global_load_dword v60, v5, s[{S_DBG}:{S_DBG+1}] sc0 sc1")
    a("s_barrier")
    a(f"v_mul_u32_u24 v4, {TS}, v2")
    a("v_lshl_add_u32 v4, v3, 3, v4")
    a("s_lshl_b32 s24, s3, 6")
    a(f"s_add_u32 s24, s24, {TB}")
    a("v_add_u32 v4, s24, v4")
    a("v_mov_b32 v6, 0x3f803f80")
    a("v_lshlrev_b32 v7, 2, v1")
    a(f"v_add_u32 v7, {TB}, v7")
    a(f"ds_write_b32 v7, v6 offset:{160*TS}")

    a("v_cmp_gt_u32 s[26:27], 8, v2")
    def put(tau, st):
        r = ACC + (st*9 + tau)*4
        p = 32 + 2*((tau*2+st) % 8)
        a(f"v_cvt_pk_bf16_f32 v{p}, v{r}, v{r+1}")
        a(f"v_cvt_pk_bf16_f32 v{p+1}, v{r+2}, v{r+3}")
        a(f"ds_write_b64 v4, v[{p}:{p+1}] offset:{16*tau*TS + st*32}")
    for tau in (5, 6, 7, 8):
        for st in range(2): put(tau, st)
    for tau in (0, 1, 2, 3, 4):
        rA = ACC + tau*4; rB = ACC + (9 + tau)*4
        if tau == 4:
            for i in range(4):
                a(f"v_mov_b32 v{48+i}, v{rA+i}"); a(f"v_mov_b32 v{52+i}, v{rB+i}")
        phi8(a, rA, rB, T, cs)
        if tau == 4:
            for i in range(4):
                a(f"v_cndmask_b32 v{rA+i}, v{48+i}, v{rA+i}, s[26:27]")
                a(f"v_cndmask_b32 v{rB+i}, v{52+i}, v{rB+i}, s[26:27]")
        put(tau, 0); put(tau, 1)
    a("s_mul_i32 s24, s3, 18")
    a("v_add_u32 v8, s24, v2")
    a(f"v_mul_u32_u24 v8, {TS}, v8")
    a("v_lshl_add_u32 v8, v3, 4, v8")
    a(f"v_add_u32 v8, {TB}, v8")
    a(f"v_add_u32 v5, {72*TS}, v8")
    a(f"v_add_u32 v6, {16*TS}, v5")
    a("v_lshlrev_b32 v7, 4, v3")
    a(f"v_add_u32 v7, {TB + 160*TS}, v7")
    a("v_cmp_eq_u32 vcc, 2, v2")
    a("s_nop 1")
    a("v_cndmask_b32 v6, v6, v7, vcc")
    a("s_waitcnt lgkmcnt(0)")
    a("s_barrier")
    stamp(a, 10, diag)
    a("v_mov_b32 v4, v8")
    F = 64
    def rd(ks):
        a(f"ds_read_b128 v[{F+ks*16}:{F+ks*16+3}], v4 offset:{64*ks}")
        a(f"ds_read_b128 v[{F+ks*16+8}:{F+ks*16+11}], v5 offset:{64*ks}")
        a(f"ds_read_b128 v[{F+ks*16+4}:{F+ks*16+7}], v4 offset:{64*ks + 16*TS}")
        a(f"ds_read_b128 v[{F+ks*16+12}:{F+ks*16+15}], v6 offset:{64*ks}")
    for ks in range(3): rd(ks)
    R = 32
    for ks in range(4):
        a(f"s_waitcnt lgkmcnt({[8, 8, 4, 0][ks]})")
        for dt in range(2):
            for et in range(2):
                r = R + (dt*2+et)*4
                A_ = F + ks*16 + dt*4; B_ = F + ks*16 + 8 + et*4
                cc = f"v[{r}:{r+3}]" if ks else "0"
                a(f"v_mfma_f32_16x16x32_bf16 v[{r}:{r+3}], v[{A_}:{A_+3}], v[{B_}:{B_+3}], {cc}")
        if ks == 0: rd(3)
    SCR = 0
    a(f"s_mul_i32 s27, s3, {18*TS}")
    a(f"s_add_u32 s27, s27, {TB}")
    a("v_mul_u32_u24 v4, 384, v3")
    a("v_lshl_add_u32 v5, v2, 2, v4")
    a("v_add_u32 v5, s27, v5")
    a("v_cmp_eq_u32 vcc, 2, v2")
    a("v_add_u32 v6, 64, v5")
    a("v_add_u32 v7, 8, v6")
    a("v_cndmask_b32 v6, v6, v7, vcc")
    a("s_nop 4")
    for i in range(4): a(f"ds_write_b32 v5, v{R+i} offset:{SCR + 96*i}")
    a("s_mov_b32 exec_lo, 0x00070007")
    a("s_mov_b32 exec_hi, 0x00070007")
    for i in range(4): a(f"ds_write_b32 v6, v{R+4+i} offset:{SCR + 96*i}")
    a("s_mov_b64 exec, 0xffff")
    for i in range(2): a(f"ds_write_b32 v5, v{R+8+i} offset:{SCR + 96*i + 1536}")
    a("s_mov_b64 exec, 7")
    for i in range(2): a(f"ds_write_b32 v6, v{R+12+i} offset:{SCR + 96*i + 1536}")
    a("s_mov_b64 exec, -1")
    a("v_lshlrev_b32 v4, 2, v1")
    a("v_add_u32 v5, s27, v4")
    a("s_waitcnt lgkmcnt(0)")
    for i in range(7): a(f"ds_read_b32 v{64+i}, v5 offset:{SCR + 256*i}")
    srd(a, 12, S_WS, S_WS+1, WS_SRD_BYTES)
    a("s_lshl_b32 s24, s23, 2")
    a("s_add_u32 s24, s24, s3")
    a("s_mul_i32 s24, s24, 1728")
    a(f"s_add_u32 s24, s24, {WS_KVS}")
    a("s_mov_b32 s38, 0")
    a.label("L_kv_flag")
    a("s_waitcnt vmcnt(0)")
    a("v_readfirstlane_b32 s25, v60")
    a("s_cmp_lg_u32 s25, 0")
    a("s_cbranch_scc1 L_kv_go")
    a("s_add_u32 s38, s38, 1")
    a("s_cmp_ge_u32 s38, 100000")
    a("s_cbranch_scc1 L_kv_go")
    a("s_sleep 1")
    a("v_mov_b32 v7, 0")
    a(f"global_load_dword v60, v7, s[{S_DBG}:{S_DBG+1}] sc0 sc1")
    a("s_branch L_kv_flag")
    a.label("L_kv_go")
    stamp(a, 11, diag)
    a("s_waitcnt lgkmcnt(0)")
    for i in range(7):
        m = 0
        for l in range(64):
            n = 64*i + l
            if n < 432 and (n % 24 < 18 or n % 24 == 20): m |= 1 << l
        a(f"s_mov_b32 exec_lo, {hex(m & 0xffffffff)}")
        a(f"s_mov_b32 exec_hi, {hex(m >> 32)}")
        a(f"buffer_atomic_add_f32 v{64+i}, v4, s[12:15], s24 offen offset:{256*i}")
    a("s_mov_b64 exec, -1")
    stamp(a, 12, diag)

def g1_role(a, q, ns, sc, diag, after, prio=0, pre=None):
    c = G1Cfg(q, ns)
    a(f"s_cmp_ge_u32 s3, 4")
    a(f"s_cbranch_scc0 L_g1{c.lab}_compute")
    a("s_sub_u32 s25, s3, 4")
    g1_loader(a, c, diag)
    after("loader")
    a.label(f"L_g1{c.lab}_compute")
    if prio: a(f"s_setprio {prio}")
    if pre: pre()
    if q: q_compute(a, c, diag)
    else: g1_compute(a, c, diag)
    stamp(a, 2, diag)
    if q: q_epilogue(a, c, sc, diag)
    else: kv_epilogue(a, c, sc, diag)
    after("compute")
```

```python
from common import *

G2_WO = 0
G2_RS = 304
G2_GS = 64*G2_RS
G2_KVB = 4*G2_GS
G2_ZT = G2_KVB + 590*48
G2_ZZ = G2_ZT + 32*288
G2_LDS = G2_ZZ + 288

V_L15, V_G, V_T16 = 9, 10, 8
TA, OA, OB, KB0, KB1 = 200, 208, 212, 216, 220
KW = 224
ZD = 233
MA = 236
PQ = 128

def swz(a, dst, row, cu, t1, t2, block=True):
    a(f"v_lshrrev_b32 v{t1}, 3, v{row}")
    if block:
        a(f"v_mul_u32_u24 v{t2}, 3641, v{row}")
        a(f"v_lshrrev_b32 v{t2}, 19, v{t2}")
        a(f"v_add_u32 v{t1}, v{t1}, v{t2}")
    a(f"v_and_b32 v{t1}, 1, v{t1}")
    a(f"v_and_b32 v{t2}, 3, v{row}")
    a(f"v_lshl_or_b32 v{t1}, v{t1}, 2, v{t2}")
    a(f"v_lshrrev_b32 v{t2}, 1, v{cu}")
    a(f"v_xor_b32 v{t1}, v{t1}, v{t2}")
    a(f"v_lshlrev_b32 v{dst}, 7, v{row}")
    a(f"v_lshl_add_u32 v{dst}, v{t1}, 4, v{dst}")
    a(f"v_and_b32 v{t2}, 1, v{cu}")
    a(f"v_lshl_add_u32 v{dst}, v{t2}, 3, v{dst}")

def mswz(a, dst, row, cu, t1, t2, block=True):
    a(f"v_lshrrev_b32 v{t1}, 3, v{row}")
    if block:
        a(f"v_mul_u32_u24 v{t2}, 3641, v{row}")
        a(f"v_lshrrev_b32 v{t2}, 19, v{t2}")
        a(f"v_add_u32 v{t1}, v{t1}, v{t2}")
    a(f"v_and_b32 v{t1}, 1, v{t1}")
    a(f"v_bfe_u32 v{t2}, v{row}, 1, 1")
    a(f"v_lshl_or_b32 v{t1}, v{t1}, 1, v{t2}")
    a(f"v_bfe_u32 v{t2}, v{row}, 2, 1")
    a(f"v_lshl_or_b32 v{t1}, v{t1}, 1, v{t2}")
    a(f"v_and_b32 v{t2}, 1, v{row}")
    a(f"v_lshl_or_b32 v{t1}, v{t1}, 1, v{t2}")
    a(f"v_xor_b32 v{t1}, v{t1}, v{cu}")
    a(f"v_lshlrev_b32 v{dst}, 7, v{row}")
    a(f"v_lshl_add_u32 v{dst}, v{t1}, 3, v{dst}")

def g2_ids(a):
    a("s_and_b32 s22, s20, 15")
    a("s_lshr_b32 s23, s20, 4")

def g2_dma_setup(a, first_wave):
    g2_ids(a)
    srd(a, 16, S_WO, S_WO+1, 576*1152)
    a("v_lshrrev_b32 v2, 3, v1")
    a("v_and_b32 v3, 7, v1")
    a("v_and_b32 v4, 3, v2")
    a("v_xor_b32 v3, v3, v4")
    a("v_lshlrev_b32 v3, 4, v3")
    a("v_mul_u32_u24 v2, 1152, v2")
    a("v_add_u32 v2, v2, v3")
    a("s_lshl_b32 s82, s23, 7")
    a(f"s_sub_u32 s83, s3, {first_wave}")

def g2_dma_pieces(a, nwaves, limit):
    L = a.newlabel("g2wo")
    a.label(L)
    a("s_mul_i32 s26, s83, 3641")
    a("s_lshr_b32 s26, s26, 16")
    a("s_add_u32 s26, s26, s83")
    a("s_and_b32 s26, s26, 1")
    a("s_lshl_b32 s26, s26, 6")
    a("v_xor_b32 v3, s26, v2")
    a("s_lshl_b32 m0, s83, 10")
    a("s_mul_i32 s25, s83, 9216")
    a("s_add_u32 s25, s25, s82")
    a("buffer_load_dwordx4 v3, s[16:19], s25 offen lds")
    a(f"s_add_u32 s83, s83, {nwaves}")
    a(f"s_cmp_lt_u32 s83, {limit}")
    a(f"s_cbranch_scc1 {L}")

def g2_dma_zero(a, first_wave, nwaves):
    for i in range(4): a(f"v_mov_b32 v{4+i}, 0")
    a(f"v_subrev_u32 v12, {64*first_wave}, v0")
    a("v_lshlrev_b32 v13, 4, v12")
    nthr = 64*nwaves
    a("v_cmp_gt_u32 vcc, 112, v12")
    a("s_and_saveexec_b64 s[26:27], vcc")
    a(f"v_add_u32 v11, {576*128}, v13")
    a("ds_write_b128 v11, v[4:7]")
    a("s_mov_b64 exec, -1")
    a(f"v_add_u32 v11, {G2_KVB}, v13")
    n16 = (590*48 + 9504) // 16
    k = 0
    while k*nthr < n16:
        rem = n16 - k*nthr
        if rem < nthr:
            a(f"s_movk_i32 s38, {rem}")
            a("v_cmp_gt_u32 vcc, s38, v12")
            a("s_and_saveexec_b64 s[26:27], vcc")
        a(f"ds_write_b128 v11, v[4:7] offset:{k*nthr*16}")
        k += 1
    a("s_mov_b64 exec, -1")

def g2_dma(a, first_wave, nwaves):
    g2_dma_setup(a, first_wave)
    g2_dma_pieces(a, nwaves, 72)
    g2_dma_zero(a, first_wave, nwaves)

def g2_addr(a, diag):
    a.c("==== G2 (addr) ====")
    g2_ids(a)
    a(f"v_lshlrev_b32 v{V_T16}, 4, v0")
    a(f"v_and_b32 v{V_L15}, 15, v1")
    a(f"v_lshrrev_b32 v{V_G}, 4, v1")
    a(f"v_lshrrev_b32 v12, 2, v{V_L15}")
    a(f"v_and_b32 v13, 3, v{V_L15}")
    a("v_lshl_add_u32 v13, v12, 3, v13")
    a("v_mul_u32_u24 v13, 288, v13")
    a(f"v_add_u32 v13, {G2_ZT}, v13")
    a(f"v_add_u32 v14, {4*288}, v13")
    a(f"v_mov_b32 v15, {G2_ZZ}")
    a(f"v_cmp_eq_u32 vcc, v12, v{V_G}")
    a("s_nop 1")
    a(f"v_cndmask_b32 v{ZD}, v15, v13, vcc")
    a(f"v_cndmask_b32 v{ZD+1}, v15, v14, vcc")
    a("s_mul_i32 s24, s3, 18")
    a("v_bfe_u32 v12, v1, 2, 2")
    a("v_and_b32 v21, 3, v1")
    a(f"v_lshl_add_u32 v20, v{V_G}, 3, v12")
    a("v_add_u32 v20, s24, v20")
    for hh in range(2):
        if hh: a("v_add_u32 v20, 4, v20")
        swz(a, 23, 20, 21, 24, 25, block=False)
        for t in range(4): a(f"v_xor_b32 v{TA+4*hh+t}, {32*t}, v23")
    a(f"v_add_u32 v20, s24, v{V_L15}")
    a(f"v_mul_u32_u24 v23, {G2_RS}, v{V_L15}")
    a("s_mul_i32 s25, s3, 36")
    a("v_add_u32 v23, s25, v23")
    a(f"v_lshl_add_u32 v{OA}, v{V_G}, 3, v23")
    for ft in range(1, 4): a(f"v_add_u32 v{OA+ft}, {16*G2_RS*ft}, v{OA}")
    a(f"v_mul_u32_u24 v24, {G2_GS}, v{V_G}")
    a("v_add_u32 v24, v24, v23")
    a(f"v_add_u32 v{OB}, 32, v24")
    a(f"v_lshrrev_b32 v24, 2, v{V_L15}")
    a(f"v_and_b32 v25, 3, v{V_L15}")
    a("s_add_u32 s25, s24, 16")
    a(f"v_mul_u32_u24 v22, 48, v20")
    a(f"v_lshl_add_u32 v22, v{V_G}, 4, v22")
    a(f"v_add_u32 v22, {G2_KVB}, v22")
    a(f"v_mov_b32 v15, {G2_ZZ}")
    a(f"v_cmp_eq_u32 s[34:35], 3, v{V_G}")
    a("v_cmp_gt_u32 s[38:39], 2, v25")
    a("v_add_u32 v23, s25, v25")
    a("v_mul_u32_u24 v23, 48, v23")
    a(f"v_lshl_add_u32 v23, v{V_G}, 4, v23")
    a(f"v_add_u32 v23, {G2_KVB}, v23")
    a("s_andn2_b64 s[38:39], s[38:39], s[34:35]")
    for g in range(4):
        a(f"v_add_u32 v28, {6912*g}, v22")
        a(f"v_cndmask_b32 v{KB0+g}, v28, v15, s[34:35]")
        a(f"v_cmp_eq_u32 vcc, {g}, v24")
        a(f"v_add_u32 v28, {6912*g}, v23")
        a("s_nop 0")
        a(f"s_and_b64 s[36:37], vcc, s[38:39]")
        a(f"v_cndmask_b32 v{KB1+g}, v15, v28, s[36:37]")
    for i in range(7):
        a(f"v_add_u32 v12, {512*i}, v0")
        a("v_mul_u32_u24 v13, 10923, v12")
        a("v_lshrrev_b32 v13, 16, v13")
        a("v_mul_u32_u24 v14, 6, v13")
        a("v_sub_u32 v14, v12, v14")
        a(f"v_cmp_eq_u32 s[{68+2*i}:{69+2*i}], 5, v14")
        a("v_mul_u32_u24 v14, 3641, v13")
        a("v_lshrrev_b32 v15, 16, v14")
        a("v_lshrrev_b32 v14, 19, v14")
        a("v_mul_u32_u24 v14, 144, v14")
        a("v_sub_u32 v14, v13, v14")
        a("v_mul_u32_u24 v15, 288, v15")
        a("v_lshl_add_u32 v14, v14, 1, v15")
        a(f"v_add_u32 v14, {G2_ZT}, v14")
        a("v_lshlrev_b32 v12, 3, v12")
        a(f"v_add_u32 v12, {G2_KVB}, v12")
        a(f"v_cndmask_b32 v{KW+i}, v12, v14, s[{68+2*i}:{69+2*i}]")
    a(f"v_mul_u32_u24 v12, {G2_RS}, v{V_L15}")
    a(f"v_mul_u32_u24 v13, {G2_GS}, v{V_G}")
    a(f"v_add_u32 v{MA}, v12, v13")

def g2_post(a, sc, diag, wait_kv, wait_pq, opts={}):
    a.c("==== G2 (post): tables, den, fold, normalise, main GEMM ====")
    srd(a, 12, S_WS, S_WS+1, WS_SRD_BYTES)
    a(f"s_mov_b32 s28, s{S_WS}"); a(f"s_and_b32 s29, s{S_WS+1}, 0xffff")
    a(f"s_mov_b32 s30, {WS_KVS + KVS_BYTES}"); a("s_mov_b32 s31, 0x20000")
    a("s_lshl_b32 s25, s22, 3")
    a("s_add_u32 s25, s25, s3")
    a("s_mul_i32 s25, s25, 18432")
    a(f"s_add_u32 s25, s25, {WS_PQ}")
    a("v_lshlrev_b32 v11, 4, v1")
    pq_list = []
    for ks in range(18):
        pq_list.append((f"buffer_load_dwordx4 v[{PQ+4*ks}:{PQ+4*ks+3}], v11, s[12:15], s25 offen offset:{1024*(ks % 4)}{sc}", ks % 4 == 3))
    issued = [0]
    def pq_issue(n):
        for ins, adv in pq_list[issued[0]:issued[0]+n]:
            a(ins)
            if adv: a("s_add_u32 s25, s25, 4096")
        issued[0] = min(18, issued[0] + n)
    def pq_loads(): pq_issue(18)
    KV = 80
    def kv_loads():
        for i in range(7):
            a(f"s_mov_b32 s26, {WS_KVS + i*8192}")
            a(f"buffer_load_dwordx4 v[{KV+4*i}:{KV+4*i+3}], v{V_T16}, s[28:31], s26 offen{sc}")
    def tables(per_step):
        for i in range(7):
            k = KV + 4*i
            a(f"s_waitcnt vmcnt({issued[0] + 6 - i})")
            a(f"v_cvt_pk_bf16_f32 v{k}, v{k}, v{k+1}")
            a(f"v_cvt_pk_bf16_f32 v{k+1}, v{k+2}, v{k+3}")
            if i == 6:
                a("s_movk_i32 s38, 384")
                a("v_cmp_gt_u32 vcc, s38, v0")
                a("s_nop 0")
                a(f"s_and_b64 s[26:27], vcc, s[{68+2*i}:{69+2*i}]")
                a(f"s_andn2_b64 exec, vcc, s[{68+2*i}:{69+2*i}]")
                a(f"ds_write_b64 v{KW+i}, v[{k}:{k+1}]")
                a("s_mov_b64 exec, s[26:27]")
            else:
                a(f"s_andn2_b64 exec, -1, s[{68+2*i}:{69+2*i}]")
                a(f"ds_write_b64 v{KW+i}, v[{k}:{k+1}]")
                a(f"s_mov_b64 exec, s[{68+2*i}:{69+2*i}]")
            a(f"ds_write_b16 v{KW+i}, v{k}")
            a("s_mov_b64 exec, -1")
            pq_issue(per_step)
    AF4 = [16, 32, 48, 64]
    a("s_waitcnt vmcnt(0) lgkmcnt(0)")
    a("s_barrier")
    n = 0
    for g in range(4):
        for ft in range(4):
            t = ft ^ (2*(g & 1))
            for hh in range(2):
                r = AF4[g] + 4*ft + 2*hh
                a(f"ds_read_b64_tr_b16 v[{r}:{r+1}], v{TA+4*hh+t} offset:{18432*g}")
                n += 1
                if n % 12 == 0: a("s_waitcnt lgkmcnt(4)")
    early = opts.get("pq_early", 8) if wait_pq is not None else 0
    if wait_pq is not None:
        a("s_cmp_eq_u32 s3, 0")
        a("s_cbranch_scc0 L_g2_nopoll1")
        wait_pq()
        a.label("L_g2_nopoll1")
        a("s_barrier")
        a("s_cmp_eq_u32 s3, 0")
        a("s_cbranch_scc1 L_g2_poll2")
        a("s_mov_b32 s91, s25")
        for ins, adv in pq_list[:early]:
            a(ins)
            if adv: a("s_add_u32 s25, s25, 4096")
        a("s_branch L_g2_nopoll2")
        a.label("L_g2_poll2")
        wait_kv()
        a.label("L_g2_nopoll2")
    a("s_waitcnt lgkmcnt(0)")
    a("s_barrier")
    stamp(a, 13, diag)
    if opts.get("touch", 0):
        a("s_cmp_lt_u32 s3, 3")
        a("s_cbranch_scc0 L_g2_notouch")
        a("s_cmp_eq_u32 s3, 2")
        a("s_cbranch_scc1 L_g2_touchkv")
        a("s_mul_i32 s26, s22, 147456")
        a("s_lshl_b32 s27, s23, 14")
        a("s_add_u32 s26, s26, s27")
        a("s_lshl_b32 s27, s3, 13")
        a("s_add_u32 s26, s26, s27")
        a(f"s_add_u32 s26, s26, {WS_PQ}")
        a("v_lshlrev_b32 v12, 7, v1")
        a(f"buffer_load_dword v253, v12, s[12:15], s26 offen{sc}")
        a("s_branch L_g2_notouch")
        a.label("L_g2_touchkv")
        a("s_lshr_b32 s26, s22, 3")
        a("s_mul_i32 s26, s26, 9")
        a("s_add_u32 s26, s26, s23")
        a("s_mul_i32 s26, s26, 3072")
        a(f"s_add_u32 s26, s26, {WS_KVS}")
        a("v_lshlrev_b32 v12, 7, v1")
        a("s_mov_b64 exec, 0xffffff")
        a(f"buffer_load_dword v253, v12, s[12:15], s26 offen{sc}")
        a("s_mov_b64 exec, -1")
        a.label("L_g2_notouch")
    kv_loads()
    pq_issue(opts.get("pq0", 0))
    tables(opts.get("pq1", 0))
    if opts.get("allwait"): a("s_waitcnt vmcnt(0)")
    a("s_waitcnt lgkmcnt(0)")
    a("s_barrier")
    stamp(a, 5, diag)
    if opts.get("delay5"):
        for _ in range(opts["delay5"]): a("s_sleep 8")
        stamp(a, 10, diag)
    if opts.get("twice2"):
        a("s_mov_b32 s90, 0")
        a.label("L_g2twice")
        stamp(a, 14, diag)
    BF = [112, 120]; MO = 80; M1 = 96
    def fold_read_ops(g):
        s = g & 1
        return [f"ds_read_b128 v[{BF[s]}:{BF[s]+3}], v{KB0+g}", f"ds_read_b128 v[{BF[s]+4}:{BF[s]+7}], v{KB1+g}"]
    def fold_out_ops(g):
        cv, wr = [], []
        for ft in range(4):
            r = MO + 4*ft
            cv += [f"v_cvt_pk_bf16_f32 v{r}, v{r}, v{r+1}", f"v_cvt_pk_bf16_f32 v{r+1}, v{r+2}, v{r+3}"]
            wr.append(f"ds_write2_b32 v{OA+ft}, v{r}, v{r+1} offset0:0 offset1:1")
        return cv, wr
    def next_block():
        for ft in range(4): a(f"v_add_u32 v{OA+ft}, {G2_GS}, v{OA+ft}")
    for x in fold_read_ops(0): a(x)
    for g in range(4):
        s = g & 1
        a("s_waitcnt lgkmcnt(0)" if g < 2 or opts.get("fnow") else "s_waitcnt lgkmcnt(1)")
        if opts.get("fst2") and g in (0, 1): stamp(a, {0: 14, 1: 15}[g], diag)
        pq_issue(opts.get("pq2", 0))
        rd = fold_read_ops(g + 1) if g + 1 < 4 else []
        cv, wr = fold_out_ops(g - 1) if g else ([], [])
        A_ = AF4[g]
        m0 = [f"v_mfma_f32_16x16x32_bf16 v[{MO+4*ft}:{MO+4*ft+3}], v[{BF[s]}:{BF[s]+3}], v[{A_+4*ft}:{A_+4*ft+3}], 0" for ft in range(4)]
        m1 = []
        for ft in range(4):
            r = M1 + 4*ft
            c = f"v[{r}:{r+3}]" if g else "0"
            m1.append(f"v_mfma_f32_16x16x32_bf16 v[{r}:{r+3}], v[{BF[s]+4}:{BF[s]+7}], v[{A_+4*ft}:{A_+4*ft+3}], {c}")
        W = lambda k: a(wr[k]) if wr else None
        C = lambda k: (a(cv[2*k]), a(cv[2*k+1])) if cv else None
        a(m1[0]); a(m1[1]); C(0)
        a(m1[2]); C(1); W(0)
        a(m1[3]); C(2); W(1)
        a(m0[0]); C(3); W(2)
        for x in rd: a(x)
        a(m0[1]); W(3)
        if wr: next_block()
        a(m0[2]); a(m0[3])
    if opts.get("fst2"): stamp(a, 12, diag)
    a("s_nop 7")
    cv, wr = fold_out_ops(3)
    for k in range(4):
        a(cv[2*k]); a(cv[2*k+1])
        if k and wr: a(wr[k-1])
    if wr: a(wr[3])
    for ft in range(4):
        r = M1 + 4*ft
        a(f"v_cvt_pk_bf16_f32 v{r}, v{r}, v{r+1}")
    for ft in range(4):
        r = M1 + 4*ft
        a(f"ds_write_b32 v{OB}, v{r} offset:{16*G2_RS*ft}")
    if early:
        assert issued[0] == 0
        a("s_cmp_eq_u32 s3, 0")
        a("s_cbranch_scc0 L_g2_pqrest")
        for ins, adv in pq_list[:early]:
            a(ins)
            if adv: a("s_add_u32 s25, s25, 4096")
        a.label("L_g2_pqrest")
        issued[0] = early
    pq_issue(18)
    ZF = 32; DEN = 16; RD = 24
    a("s_waitcnt lgkmcnt(0)")
    order = list(range(18))
    ZF2 = {i: ZF + 4*(n % 12) for n, i in enumerate(order)}
    def zr(n):
        i = order[n]; th = i // 9
        a(f"ds_read_b128 v[{ZF2[i]}:{ZF2[i]+3}], v{ZD+th} offset:{16*i}")
    for n in range(11): zr(n)
    nst = 0
    for n in range(18):
        i = order[n]; th, k = divmod(i, 9)
        outstanding = min(18, n + 11) - n - 1
        a(f"s_waitcnt vmcnt({17 - i}) lgkmcnt({outstanding})")
        c = f"v[{DEN+4*th}:{DEN+4*th+3}]" if k else "0"
        a(f"v_mfma_f32_16x16x32_bf16 v[{DEN+4*th}:{DEN+4*th+3}], v[{ZF2[i]}:{ZF2[i]+3}], v[{PQ+4*i}:{PQ+4*i+3}], {c}")
        if n + 11 < 18: zr(n + 11)
    if not opts.get("fst2"): stamp(a, 12, diag)
    a("s_nop 7")
    for x in range(8):
        a(f"v_add_f32 v{RD+x}, {hex(EPS)}, v{DEN+x}")
    for x in range(8):
        a(f"v_rcp_f32 v{RD+x}, v{RD+x}")
    a("v_mov_b32 v14, 0xffff0000")
    def norm(ks):
        for p in range(4):
            x = (8*ks + 2*p)//18
            src = PQ + 4*ks + p; t = 32 + 2*p
            rd = RD + x
            a(f"v_lshlrev_b32 v{t}, 16, v{src}")
            a(f"v_and_b32 v{t+1}, v14, v{src}")
            if rd % 2 == 0: a(f"v_pk_mul_f32 v[{t}:{t+1}], v[{t}:{t+1}], v[{rd}:{rd+1}] op_sel_hi:[1,0]")
            else:           a(f"v_pk_mul_f32 v[{t}:{t+1}], v[{t}:{t+1}], v[{rd-1}:{rd}] op_sel:[0,1] op_sel_hi:[1,1]")
        for p in range(4):
            a(f"v_cvt_pk_bf16_f32 v{PQ+4*ks+p}, v{32+2*p}, v{32+2*p+1}")
    if not opts.get("nonorm"):
        for ks in range(18): norm(ks)
    stamp(a, 9, diag)
    a("s_waitcnt lgkmcnt(0)")
    a("s_barrier")
    stamp(a, 6, diag)
    OUT = 16; NSET = 4; MF = [64, 80, 96, 112]
    pend = []
    def mrd(ks, ft):
        s = ks % NSET
        a(f"ds_read_b128 v[{MF[s]+4*ft}:{MF[s]+4*ft+3}], v{MA} offset:{16*G2_RS*ft + 16*ks}"); pend.append((ks, ft))
    LOOK = 10
    seq = [(ks, ft) for ks in range(18) for ft in range(4)]
    for x in seq[:LOOK]: mrd(*x)
    for n, (ks, ft) in enumerate(seq):
        if ft % 2 == 0:
            last = max(i for i, t in enumerate(pend) if t == (ks, ft + 1))
            a(f"s_waitcnt lgkmcnt({len(pend)-1-last})")
            del pend[:last+1]
        s = ks % NSET
        c = f"v[{OUT+4*ft}:{OUT+4*ft+3}]" if ks else "0"
        a(f"v_mfma_f32_16x16x32_bf16 v[{OUT+4*ft}:{OUT+4*ft+3}], v[{MF[s]+4*ft}:{MF[s]+4*ft+3}], v[{PQ+4*ks}:{PQ+4*ks+3}], {c}")
        if n + LOOK < len(seq): mrd(*seq[n + LOOK])
    stamp(a, 7, diag)
    if opts.get("twice2"):
        a("s_cmp_eq_u32 s90, 0")
        a("s_cbranch_scc0 L_g2twice_done")
        stamp(a, 15, diag)
        a("s_mov_b32 s90, 1")
        a("s_barrier")
        a("s_branch L_g2twice")
        a.label("L_g2twice_done")
    srd(a, 16, S_OUT, S_OUT+1, 2048*2304)
    a("s_lshl_b32 s25, s22, 7")
    a("s_lshl_b32 s26, s3, 4")
    a("s_add_u32 s25, s25, s26")
    a("s_mul_i32 s25, s25, 2304")
    a("s_lshl_b32 s26, s23, 7")
    a("s_add_u32 s25, s25, s26")
    a(f"v_mul_u32_u24 v4, 2304, v{V_L15}")
    a(f"v_lshl_add_u32 v4, v{V_G}, 4, v4")
    for pr in range(2):
        A_ = OUT + 8*pr; B_ = A_ + 4; p = 64 + 4*pr
        a(f"v_cvt_pk_bf16_f32 v{p}, v{A_}, v{A_+1}")
        a(f"v_cvt_pk_bf16_f32 v{p+1}, v{A_+2}, v{A_+3}")
        a(f"v_cvt_pk_bf16_f32 v{p+2}, v{B_}, v{B_+1}")
        a(f"v_cvt_pk_bf16_f32 v{p+3}, v{B_+2}, v{B_+3}")
        a("s_nop 1")
        a(f"v_permlane32_swap_b32 v{p}, v{p+2}")
        a(f"v_permlane32_swap_b32 v{p+1}, v{p+3}")
        a("s_nop 1")
        a(f"v_permlane16_swap_b32 v{p}, v{p+2}")
        a(f"v_permlane16_swap_b32 v{p+1}, v{p+3}")
        a("s_nop 1")
        a(f"buffer_store_dwordx4 v[{p}:{p+3}], v4, s[16:19], s25 offen offset:{64*pr}{opts.get('osc_a', '')}")

def g2_role(a, sc, diag, wait_kv, wait_pq, opts={}):
    g2_dma(a, 0, 8)
    g2_addr(a, diag)
    g2_post(a, sc, diag, wait_kv, wait_pq, opts)
```

```python
import sys
from common import *
from g1 import *
from prep import *
from conv import *
from g2 import *
from sync import *
NAME = "concat_heads__linear_attn_block__ssm_conv_h3__prompt"
LDS = 163840

def kd(a, name, vgpr, sgpr=102, acc=None):
    a.raw(f".amdhsa_kernel {name}")
    a.raw(f"  .amdhsa_next_free_vgpr {vgpr}")
    a.raw(f"  .amdhsa_next_free_sgpr {sgpr}")
    a.raw(f"  .amdhsa_accum_offset {acc or vgpr}")
    a.raw("  .amdhsa_group_segment_fixed_size 0")
    a.raw("  .amdhsa_kernarg_size 96")
    a.raw("  .amdhsa_user_sgpr_count 2")
    a.raw("  .amdhsa_user_sgpr_kernarg_segment_ptr 1")
    a.raw("  .amdhsa_system_sgpr_workgroup_id_x 1")
    a.raw(".end_amdhsa_kernel")

def phase1_ids(a):
    a(f"s_cmp_ge_u32 s2, {ID_B}")
    a("s_cbranch_scc1 L_roleB")
    a(f"s_cmp_ge_u32 s2, {ID_Q}")
    a("s_cbranch_scc1 L_roleQ")

def k1(a, diag, nskv, nsq, opts):
    name = "k1_kernel"
    entry(a, name, ID_Z + 1)
    if opts.get("pf"):
        a("s_cmp_eq_u32 s3, 3")
        a("s_cbranch_scc0 L_k1_nopf")
        code_prefetch(a, name, f"L_{name}_exit", "k1")
        a.label("L_k1_nopf")
    stamp(a, 0, diag)
    phase1_ids(a)
    a("s_and_b32 s20, s2, 7"); a("s_lshr_b32 s21, s2, 3")
    a("s_lshr_b32 s22, s20, 1"); a("s_lshl_b32 s22, s22, 2"); a("s_and_b32 s23, s21, 3"); a("s_add_u32 s22, s22, s23")
    a("s_and_b32 s23, s20, 1"); a("s_lshl_b32 s23, s23, 2"); a("s_lshr_b32 s24, s21, 2"); a("s_add_u32 s23, s23, s24")
    g1_role(a, False, nskv, "", diag, lambda k: a("s_endpgm"))
    a.label("L_roleQ")
    a("s_and_b32 s20, s2, 7"); a(f"s_sub_u32 s21, s2, {ID_Q}"); a("s_lshr_b32 s21, s21, 3")
    a("s_lshl_b32 s22, s20, 1"); a("s_and_b32 s23, s21, 1"); a("s_add_u32 s22, s22, s23")
    a("s_lshr_b32 s23, s21, 1")
    g1_role(a, True, nsq, "", diag, lambda k: a("s_endpgm"))
    a.label("L_roleB")
    a(f"s_cmp_eq_u32 s2, {ID_Z}")
    a("s_cbranch_scc1 L_roleZ")
    a(f"s_sub_u32 s20, s2, {ID_B}")
    a("s_cmp_ge_u32 s3, 4")
    a("s_cbranch_scc1 L_k1_kernel_exit")
    prep_role(a, "", diag)
    if diag: a("s_waitcnt vmcnt(0)")
    stamp(a, 3, diag)
    a("s_endpgm")
    a.label("L_roleZ")
    z_role(a, diag)
    if opts.get("wopf", 0):
        for k in range(11):
            a(f"v_add_u32 v2, {512*k}, v0")
            a(f"s_movk_i32 s22, 5184")
            a("v_cmp_gt_u32 vcc, s22, v2")
            a("v_lshlrev_b32 v2, 7, v2")
            a("s_mov_b64 exec, vcc")
            L = a.newlabel("wopf")
            a(f"s_cbranch_execz {L}")
            a(f"global_load_dword v253, v2, s[{S_WO}:{S_WO+1}]")
            a.label(L)
            a("s_mov_b64 exec, -1")
    a.label(f"L_{name}_exit")
    a("s_endpgm")

def k2(a, diag, opts):
    name = "k2_kernel"
    entry(a, name, ID_Z)
    if opts.get("pf"):
        a("s_cmp_eq_u32 s3, 3")
        a("s_cbranch_scc0 L_k2_nopf")
        code_prefetch(a, name, f"L_{name}_exit", "k2")
        a.label("L_k2_nopf")
    stamp(a, 4, diag)
    a(f"s_cmp_ge_u32 s2, {ID_B}")
    a("s_cbranch_scc1 L_k2_conv")
    a("s_cmp_lt_u32 s2, 96")
    a("s_cbranch_scc1 L_k2_lo")
    a(f"s_cmp_lt_u32 s2, {ID_Q}")
    a(f"s_cbranch_scc1 L_{name}_exit")
    a("s_sub_u32 s20, s2, 32")
    a("s_branch L_k2_g2")
    a.label("L_k2_lo")
    a("s_mov_b32 s20, s2")
    a.label("L_k2_g2")
    g2_role(a, "", diag, None, None, opts)
    if diag: a("s_waitcnt vmcnt(0)")
    stamp(a, 8, diag)
    a("s_endpgm")
    a.label("L_k2_conv")
    a(f"s_sub_u32 s20, s2, {ID_B}")
    conv_role(a, "", diag, lambda: None)
    if diag: a("s_waitcnt vmcnt(0)")
    stamp(a, 8, diag)
    a.label(f"L_{name}_exit")
    a("s_endpgm")

def k3(a, sel):
    name = "k3_kernel"
    entry(a, name, 1)
    a("s_cmp_eq_u32 s3, 0")
    a(f"s_cbranch_scc0 L_{name}_exit")
    a(f"v_mov_b32 v2, {WS_STAMP}")
    a(f"global_load_dword v3, v2, s[{S_WS}:{S_WS+1}] sc0 sc1")
    a("v_mov_b32 v4, 0")
    for i, (wg, idx) in enumerate(sel):
        a(f"v_cmp_eq_u32 vcc, {i}, v1")
        a(f"v_mov_b32 v5, {WS_STAMP + wg*128 + idx*8}")
        a("s_nop 0")
        a("v_cndmask_b32 v4, v4, v5, vcc")
    a("v_cmp_gt_u32 vcc, 16, v1")
    a("s_and_saveexec_b64 s[20:21], vcc")
    a(f"global_load_dword v6, v4, s[{S_WS}:{S_WS+1}] sc0 sc1")
    a("s_waitcnt vmcnt(0)")
    a("v_sub_u32 v6, v6, v3")
    a("v_lshlrev_b32 v7, 2, v1")
    a(f"global_store_dword v7, v6, s[{S_DBG}:{S_DBG+1}]")
    a.label(f"L_{name}_exit")
    a("s_endpgm")

def fused(a, diag, opts):
    name = NAME + "_kernel"
    sc = {0: " sc0 sc1", 1: " sc1", 2: ""}[opts.get("sc", 1)]
    entry(a, name, ID_Z + 1)
    if opts.get("pf", 0):
        a("s_cmp_eq_u32 s3, 3")
        a("s_cbranch_scc0 L_nopf")
        code_prefetch(a, name, f"L_{name}_exit", "k")
        a.label("L_nopf")
    stamp(a, 0, diag)
    if diag and opts.get("xcc"):
        a("s_getreg_b32 s96, hwreg(HW_REG_XCC_ID)")
        a("s_getreg_b32 s97, hwreg(HW_REG_HW_ID)")
        a("v_mov_b32 v250, s96"); a("v_mov_b32 v251, s97")
        a("s_lshl_b32 s98, s2, 7")
        a(f"s_add_u32 s98, s98, {WS_STAMP + 15*8}")
        a("v_mov_b32 v252, s98")
        a("s_mov_b64 exec, 1")
        a(f"global_store_dwordx2 v252, v[250:251], s[{S_WS}:{S_WS+1}]")
        a("s_mov_b64 exec, -1")
    phase1_ids(a)
    def g2_index():
        a("s_sub_u32 s20, s2, 32")
        a(f"s_cmp_ge_u32 s2, {ID_Q}")
        a("s_cselect_b32 s20, s20, s2")
        a("s_cmp_ge_u32 s20, 96")
        a("s_cselect_b32 s21, 1, 0")
        a(f"s_cmp_ge_u32 s2, {ID_Q}")
        a("s_cselect_b32 s21, 0, s21")
        a("s_cmp_eq_u32 s21, 1")
    def after_g1(q):
        def f(kind):
            L = "q" if q else "kv"
            if kind == "loader":
                a("s_barrier")
                g2_index()
                a("s_cbranch_scc1 L_%s_idle" % L)
                n1 = opts.get("dma1_q" if q else "dma1_kv", 40 if q else 72)
                g2_dma_setup(a, 4)
                g2_dma_pieces(a, 4, n1)
                if not q: a("s_barrier")
                if n1 < 72: g2_dma_pieces(a, 4, 72)
                g2_dma_zero(a, 4, 4)
                g2_addr(a, diag)
                a("s_barrier")
                a("s_branch L_A_post")
                a.label("L_%s_idle" % L)
                if not q: a("s_barrier")
                a("s_barrier")
                a("s_endpgm")
            else:
                if q: stamp(a, 14, diag)
                g2_index()
                a(f"s_cselect_b32 s65, 1, 0")
                if not q:
                    a("s_cbranch_scc1 L_%s_noaddr" % L)
                    g2_addr(a, diag)
                    a.label("L_%s_noaddr" % L)
                a("s_waitcnt vmcnt(0)")
                stamp(a, 3, diag)
                if q and opts.get("qtouch", 1):
                    q_touch(a)
                a("s_barrier")
                a("s_cmp_eq_u32 s3, 0")
                a("s_cbranch_scc0 L_%s_noflag" % L)
                if q:
                    a("v_readfirstlane_b32 s66, v14")
                    a("s_cmp_lg_u32 s66, 0")
                    a("s_cbranch_scc1 L_q_dbgok")
                    wait_dbg(a)
                    a.label("L_q_dbgok")
                    a(f"s_sub_u32 s21, s2, {ID_Q - FL_Q}")
                else:
                    a(f"s_add_u32 s21, s2, {FL_KV}")
                flag_store(a, "s21")
                a.label("L_%s_noflag" % L)
                if q:
                    g2_addr(a, diag)
                else:
                    a("s_cmp_eq_u32 s65, 1")
                    a(f"s_cbranch_scc1 L_{name}_exit")
                a("s_branch L_A_post")
        return f
    a("s_and_b32 s20, s2, 7"); a("s_lshr_b32 s21, s2, 3")
    a("s_lshr_b32 s22, s20, 1"); a("s_lshl_b32 s22, s22, 2"); a("s_and_b32 s23, s21, 3"); a("s_add_u32 s22, s22, s23")
    a("s_and_b32 s23, s20, 1"); a("s_lshl_b32 s23, s23, 2"); a("s_lshr_b32 s24, s21, 2"); a("s_add_u32 s23, s23, s24")
    g1_role(a, False, opts.get('nskv', 3), sc, diag, after_g1(False), opts.get("prio", 0))
    a.label("L_roleQ")
    a("s_and_b32 s20, s2, 7"); a(f"s_sub_u32 s21, s2, {ID_Q}"); a("s_lshr_b32 s21, s21, 3")
    a("s_and_b32 s23, s21, 1"); a("s_lshl_b32 s23, s23, 3"); a("s_add_u32 s22, s20, s23")
    a("s_lshr_b32 s23, s21, 1")
    g1_role(a, True, 4, sc, diag, after_g1(True), opts.get("prio", 0))
    a.label("L_A_post")
    if opts.get("prio", 0): a("s_setprio 0")
    stamp(a, 4, diag)
    g2_ids(a)
    def wait_pq():
        a("v_min_u32 v250, 2, v1")
        a("v_lshlrev_b32 v250, 4, v250")
        a("s_lshr_b32 s66, s22, 3")
        a("s_lshl_b32 s66, s66, 3")
        a("s_and_b32 s67, s22, 7")
        a("s_add_u32 s66, s66, s67")
        a(f"s_add_u32 s66, s66, {FL_Q}")
        a("v_add_u32 v250, s66, v250")
        a("v_lshlrev_b32 v250, 6, v250")
        a(f"v_add_u32 v250, {WS_FLAG}, v250")
        poll(a, [250])
    def wait_kv():
        a("v_lshlrev_b32 v251, 6, v1")
        a(f"v_add_u32 v252, {WS_FLAG + (FL_KV+64)*64}, v251")
        a(f"v_add_u32 v251, {WS_FLAG + FL_KV*64}, v251")
        poll(a, [251, 252])
    g2_post(a, opts.get("ldsc", sc), diag, wait_kv, wait_pq, opts)
    diag_delay(a, opts.get("dlyA", 0))
    if diag: a("s_waitcnt vmcnt(0)")
    stamp(a, 8, diag)
    a("s_endpgm")
    a.label("L_roleB")
    a(f"s_cmp_eq_u32 s2, {ID_Z}")
    a("s_cbranch_scc1 L_roleZ")
    a(f"s_sub_u32 s20, s2, {ID_B}")
    if opts.get("dpf", 1):
        data_prefetch(a, "s20", N_B, opts.get("dpf_skip", 1))
        if opts.get("bwait", 0) >= 0: a(f"s_waitcnt vmcnt({opts.get('bwait', 0)})")
    conv_ids(a)
    conv_dload(a)
    a("s_cmp_ge_u32 s3, 4")
    a("s_cbranch_scc1 L_B_other")
    prep_role(a, sc, diag)
    a("s_waitcnt vmcnt(0)")
    a("s_branch L_B_noprep")
    a.label("L_B_other")
    conv_filters(a)
    a("s_cmp_eq_u32 s3, 7")
    a("s_cbranch_scc0 L_B_noprep")
    wait_dbg(a)
    a.label("L_B_noprep")
    stamp(a, 3, diag)
    a("s_barrier")
    a("s_cmp_eq_u32 s3, 7")
    a("s_cbranch_scc0 L_B_geom")
    flag_store(a, "s20")
    a.label("L_B_geom")
    conv_geom(a, diag)
    a("s_cmp_eq_u32 s3, 7")
    a("s_cbranch_scc0 L_B_wait")
    a("s_lshr_b32 s66, s21, 3")
    a("s_lshl_b32 s66, s66, 3")
    a("v_and_b32 v248, 7, v1")
    a("v_add_u32 v248, s66, v248")
    a("v_lshlrev_b32 v248, 6, v248")
    a(f"v_add_u32 v248, {WS_FLAG + FL_PREP*64}, v248")
    poll(a, [248])
    a.label("L_B_wait")
    a("s_barrier")
    stamp(a, 4, diag)
    conv_post(a, sc, diag, lambda: None, opts.get("osc_b", ""))
    diag_delay(a, opts.get("dlyB", 0))
    if diag: a("s_waitcnt vmcnt(0)")
    stamp(a, 8, diag)
    a("s_endpgm")
    a.label("L_roleZ")
    z_role(a, diag)
    if opts.get("wopf", 0):
        for k in range(11):
            a(f"v_add_u32 v2, {512*k}, v0")
            a(f"s_movk_i32 s22, 5184")
            a("v_cmp_gt_u32 vcc, s22, v2")
            a("v_lshlrev_b32 v2, 7, v2")
            a("s_mov_b64 exec, vcc")
            L = a.newlabel("wopf")
            a(f"s_cbranch_execz {L}")
            a(f"global_load_dword v253, v2, s[{S_WO}:{S_WO+1}]")
            a.label(L)
            a("s_mov_b64 exec, -1")
    a.label(f"L_{name}_exit")
    a("s_endpgm")
    a.raw(".fill 1024, 4, 0xbf810000")

def main_fused(out, diag, opts):
    import g1 as _g1
    _g1.TWICE = bool(opts.get('twice'))
    _g1.KV_MID = bool(opts.get('kvmid', 0))
    a = A()
    a.raw(f"; @launch grid=({ID_Z+1},1,1) block=(512,1,1) lds={LDS}")
    a.raw('.amdgcn_target "amdgcn-amd-amdhsa--gfx950"')
    a.raw(".text")
    fused(a, diag, opts)
    a.raw('.section .rodata,"a"')
    a.raw(".p2align 6")
    kd(a, NAME + "_kernel", 256)
    open(out, "w").write(a.text())

def main(out, diag, opts):
    a = A()
    a.raw(f"; @launch kernel=k1_kernel grid=({ID_Z+1},1,1) block=(512,1,1) lds={LDS}")
    a.raw(f"; @launch kernel=k2_kernel grid=({ID_Z},1,1) block=(512,1,1) lds={LDS}")
    if opts.get("k3"): a.raw("; @launch kernel=k3_kernel grid=(1,1,1) block=(64,1,1) lds=0")
    a.raw('.amdgcn_target "amdgcn-amd-amdhsa--gfx950"')
    a.raw(".text")
    k1(a, diag, opts.get("nskv", 4), opts.get("nsq", 3), opts)
    k2(a, diag, opts)
    if opts.get("k3"):
        k3(a, [(0,1),(0,2),(0,3),(130,2),(130,3),(180,3),(0,4),(0,5),(0,6),(0,7),(0,8),(180,4),(180,5),(180,6),(180,8),(247,8)])
    a.raw('.section .rodata,"a"')
    a.raw(".p2align 6")
    kd(a, "k1_kernel", 256)
    a.raw(".p2align 6")
    kd(a, "k2_kernel", 256)
    if opts.get("k3"):
        a.raw(".p2align 6")
        kd(a, "k3_kernel", 256)
    open(out, "w").write(a.text())

if __name__ == "__main__":
    out = sys.argv[1]; diag = "diag" in sys.argv
    opts = {k: (int(v) if v.lstrip("-").isdigit() else ("" if v == "none" else " " + v.replace("+", " "))) for k, v in (x.split("=") for x in sys.argv[2:] if "=" in x)}
    (main if opts.get('multi') else main_fused)(out, diag, opts)
```

```python
from asmlib import *

WS_UT  = 0x000000
WS_QT  = 0x240000
WS_PQ  = 0x480000
WS_KVS = 0x6C0000
KVS_BYTES = 576*24*4
WS_Z = WS_KVS + KVS_BYTES
WS_FLAG = 0x6D0000
WS_STAMP = 0x800000
WS_SRD_BYTES = 0x800000

LOG2E = 0x3fb8aa3b
EPS = 0x358637bd
ONE_EPS = 0x3f800008

S_X, S_W, S_WO, S_Q, S_K, S_V, S_SH, S_H = 40, 42, 44, 46, 48, 50, 52, 54
S_D, S_OUT, S_DBG, S_WS = 56, 58, 60, 62

N_KV, N_Q, N_B = 128, 48, 72
ID_Q, ID_B, ID_Z = 128, 176, 248

def stamp(a, idx, on):
    if not on: return
    a("s_memrealtime s[96:97]")
    a("s_waitcnt lgkmcnt(0)")
    a("v_mov_b32 v250, s96")
    a("v_mov_b32 v251, s97")
    a("s_lshl_b32 s98, s2, 7")
    a(f"s_add_u32 s98, s98, {WS_STAMP + idx*8}")
    a("v_mov_b32 v252, s98")
    a("s_mov_b64 s[96:97], exec")
    a("s_mov_b64 exec, 1")
    a(f"global_store_dwordx2 v252, v[250:251], s[{S_WS}:{S_WS+1}]")
    a("s_mov_b64 exec, s[96:97]")

def entry(a, name, nwg, early=None):
    a.raw(f".globl {name}")
    a.raw(".p2align 8")
    a.raw(f".type {name},@function")
    a.label(name)
    a(f"s_cmp_ge_u32 s2, {nwg}")
    a(f"s_cbranch_scc1 L_{name}_exit")
    a("s_load_dwordx16 s[40:55], s[0:1], 0")
    a("s_load_dwordx8 s[56:63], s[0:1], 64")
    a("v_lshrrev_b32 v1, 6, v0")
    a("s_nop 0")
    a("v_readfirstlane_b32 s3, v1")
    a("v_and_b32 v1, 63, v0")
    if early: early()
    a("s_waitcnt lgkmcnt(0)")

def phi4(a, r, t, consts):
    cl, c1, ce = consts
    a(f"v_pk_mul_f32 v[{t}:{t+1}], v[{r}:{r+1}], v[{cl}:{cl+1}]")
    a(f"v_pk_mul_f32 v[{t+2}:{t+3}], v[{r+2}:{r+3}], v[{cl}:{cl+1}]")
    for i in range(4): a(f"v_exp_f32_e64 v{t+i}, v{t+i} clamp")
    a(f"v_pk_add_f32 v[{r}:{r+1}], v[{r}:{r+1}], v[{c1}:{c1+1}]")
    a(f"v_pk_add_f32 v[{r+2}:{r+3}], v[{r+2}:{r+3}], v[{c1}:{c1+1}]")
    a(f"v_pk_add_f32 v[{t}:{t+1}], v[{t}:{t+1}], v[{ce}:{ce+1}]")
    a(f"v_pk_add_f32 v[{t+2}:{t+3}], v[{t+2}:{t+3}], v[{ce}:{ce+1}]")
    for i in range(4): a(f"v_max_f32 v{r+i}, v{r+i}, v{t+i}")

def phi8(a, rA, rB, t, consts):
    cl, c1, ce = consts
    q = [(rA, t), (rA+2, t+2), (rB, t+4), (rB+2, t+6)]
    for r, u in q: a(f"v_pk_mul_f32 v[{u}:{u+1}], v[{r}:{r+1}], v[{cl}:{cl+1}]")
    for r, u in q[:2]: a(f"v_pk_add_f32 v[{r}:{r+1}], v[{r}:{r+1}], v[{c1}:{c1+1}]")
    for i in range(4): a(f"v_exp_f32_e64 v{t+i}, v{t+i} clamp")
    for r, u in q[2:]: a(f"v_pk_add_f32 v[{r}:{r+1}], v[{r}:{r+1}], v[{c1}:{c1+1}]")
    for i in range(4, 8): a(f"v_exp_f32_e64 v{t+i}, v{t+i} clamp")
    for r, u in q[:2]: a(f"v_pk_add_f32 v[{u}:{u+1}], v[{u}:{u+1}], v[{ce}:{ce+1}]")
    for i in range(2): a(f"v_max_f32 v{rA+i}, v{rA+i}, v{t+i}")
    for r, u in q[2:]: a(f"v_pk_add_f32 v[{u}:{u+1}], v[{u}:{u+1}], v[{ce}:{ce+1}]")
    for i in range(2, 4): a(f"v_max_f32 v{rA+i}, v{rA+i}, v{t+i}")
    for i in range(4): a(f"v_max_f32 v{rB+i}, v{rB+i}, v{t+4+i}")

def load_phi_consts(a, base):
    for i, c in enumerate((LOG2E, LOG2E, ONE_EPS, ONE_EPS, EPS, EPS)):
        a(f"v_mov_b32 v{base+i}, {hex(c)}")
    return (base, base+2, base+4)

def code_prefetch(a, start, end, tag):
    a("s_getpc_b64 s[20:21]")
    a.label(f"L_pf_{tag}")
    a(f"s_sub_u32 s20, s20, L_pf_{tag}-{start}")
    a("s_subb_u32 s21, s21, 0")
    a("s_lshr_b32 s22, s2, 3")
    a("s_and_b32 s22, s22, 31")
    a(f"s_mul_i32 s22, s22, (({end}-{start}+4095)/4096)")
    a("v_add_u32 v2, s22, v1")
    a("v_lshlrev_b32 v2, 7, v2")
    a(f"v_cmp_gt_u32 vcc, (({end}-{start}+4095)/4096), v1")
    a("s_and_saveexec_b64 s[22:23], vcc")
    a("global_load_dword v255, v2, s[20:21]")
    a("s_mov_b64 exec, -1")

def data_prefetch(a, idx, nwg, first_thread=0, nthr=512, with_wo=True):
    lists = [(S_W, 576*27, 253), (S_X, 2048*9, 254)] + ([(S_WO, 576*9, 255)] if with_wo else [])
    total = sum(n for _, n, _ in lists)
    per = -(-total // nwg)
    a(f"v_subrev_u32 v5, {first_thread}, v0")
    for k in range(-(-per // nthr)):
        a(f"s_mul_i32 s21, {idx}, {per}")
        if k: a(f"s_add_u32 s21, s21, {nthr*k}")
        a("v_add_u32 v4, s21, v5")
        a(f"s_movk_i32 s22, {min(nthr, per - nthr*k)}")
        a("v_cmp_gt_u32 s[26:27], s22, v5")
        for ptr, n, dst in lists:
            a(f"s_mov_b32 s22, {n}")
            a("v_cmp_gt_u32 vcc, s22, v4")
            a("v_lshlrev_b32 v2, 7, v4")
            a("s_and_b64 exec, vcc, s[26:27]")
            L = a.newlabel("dpf")
            a(f"s_cbranch_execz {L}")
            a(f"global_load_dword v{dst}, v2, s[{ptr}:{ptr+1}]")
            a.label(L)
            a("s_mov_b64 exec, -1")
            a(f"v_subrev_u32 v4, {n}, v4")

def code_prefetch_all(a, start, end, tag, dst=255):
    a("s_getpc_b64 s[26:27]")
    a.label(f"L_pfa_{tag}")
    a(f"s_sub_u32 s26, s26, L_pfa_{tag}-{start}")
    a("s_subb_u32 s27, s27, 0")
    a("v_lshlrev_b32 v252, 7, v1")
    a(f"global_load_dword v{dst}, v252, s[26:27]")
    a(f"global_load_dword v{dst}, v252, s[26:27] offset:64")
    a("v_add_u32 v252, 8192, v252")
    a(f"v_cmp_gt_u32 vcc, ({end}-{start}), v252")
    a("s_and_saveexec_b64 s[28:29], vcc")
    a(f"s_cbranch_execz L_pfa_{tag}_x")
    a(f"global_load_dword v{dst}, v252, s[26:27]")
    a.label(f"L_pfa_{tag}_x")
    a("s_mov_b64 exec, -1")

def diag_delay(a, us):
    if not us: return
    L = a.newlabel("dly")
    a("s_memrealtime s[90:91]")
    a("s_waitcnt lgkmcnt(0)")
    a(f"s_add_u32 s92, s90, {us*100}")
    a.label(L)
    a("s_memrealtime s[90:91]")
    a("s_waitcnt lgkmcnt(0)")
    a("s_sub_u32 s93, s92, s90")
    a("s_cmp_gt_i32 s93, 0")
    a(f"s_cbranch_scc1 {L}")
```

```python
from common import *

G2_WO = 0
G2_RS = 304
G2_GS = 64*G2_RS
G2_KVB = 4*G2_GS
G2_ZT = G2_KVB + 590*48
G2_ZZ = G2_ZT + 32*288
G2_LDS = G2_ZZ + 288

V_L15, V_G, V_T16 = 213, 214, 215
TA, OA, OB, KB0, KB1 = 200, 208, 212, 216, 220
KW = 224
ZD = 233
MA = 235
PQ = 128

def swz(a, dst, row, cu, t1, t2, block=True):
    a(f"v_lshrrev_b32 v{t1}, 3, v{row}")
    if block:
        a(f"v_mul_u32_u24 v{t2}, 3641, v{row}")
        a(f"v_lshrrev_b32 v{t2}, 19, v{t2}")
        a(f"v_add_u32 v{t1}, v{t1}, v{t2}")
    a(f"v_and_b32 v{t1}, 1, v{t1}")
    a(f"v_and_b32 v{t2}, 3, v{row}")
    a(f"v_lshl_or_b32 v{t1}, v{t1}, 2, v{t2}")
    a(f"v_lshrrev_b32 v{t2}, 1, v{cu}")
    a(f"v_xor_b32 v{t1}, v{t1}, v{t2}")
    a(f"v_lshlrev_b32 v{dst}, 7, v{row}")
    a(f"v_lshl_add_u32 v{dst}, v{t1}, 4, v{dst}")
    a(f"v_and_b32 v{t2}, 1, v{cu}")
    a(f"v_lshl_add_u32 v{dst}, v{t2}, 3, v{dst}")

def mswz(a, dst, row, cu, t1, t2, block=True):
    a(f"v_lshrrev_b32 v{t1}, 3, v{row}")
    if block:
        a(f"v_mul_u32_u24 v{t2}, 3641, v{row}")
        a(f"v_lshrrev_b32 v{t2}, 19, v{t2}")
        a(f"v_add_u32 v{t1}, v{t1}, v{t2}")
    a(f"v_and_b32 v{t1}, 1, v{t1}")
    a(f"v_bfe_u32 v{t2}, v{row}, 1, 1")
    a(f"v_lshl_or_b32 v{t1}, v{t1}, 1, v{t2}")
    a(f"v_bfe_u32 v{t2}, v{row}, 2, 1")
    a(f"v_lshl_or_b32 v{t1}, v{t1}, 1, v{t2}")
    a(f"v_and_b32 v{t2}, 1, v{row}")
    a(f"v_lshl_or_b32 v{t1}, v{t1}, 1, v{t2}")
    a(f"v_xor_b32 v{t1}, v{t1}, v{cu}")
    a(f"v_lshlrev_b32 v{dst}, 7, v{row}")
    a(f"v_lshl_add_u32 v{dst}, v{t1}, 3, v{dst}")

def g2_ids(a):
    a("s_and_b32 s22, s20, 15")
    a("s_lshr_b32 s23, s20, 4")

def g2_dma_setup(a, first_wave):
    g2_ids(a)
    srd(a, 16, S_WO, S_WO+1, 576*1152)
    a("v_lshrrev_b32 v2, 3, v1")
    a("v_and_b32 v3, 7, v1")
    a("v_and_b32 v4, 3, v2")
    a("v_xor_b32 v3, v3, v4")
    a("v_lshlrev_b32 v3, 4, v3")
    a("v_mul_u32_u24 v2, 1152, v2")
    a("v_add_u32 v2, v2, v3")
    a("s_lshl_b32 s82, s23, 7")
    a(f"s_sub_u32 s83, s3, {first_wave}")

def g2_dma_pieces(a, nwaves, limit):
    L = a.newlabel("g2wo")
    a.label(L)
    a("s_mul_i32 s26, s83, 3641")
    a("s_lshr_b32 s26, s26, 16")
    a("s_add_u32 s26, s26, s83")
    a("s_and_b32 s26, s26, 1")
    a("s_lshl_b32 s26, s26, 6")
    a("v_xor_b32 v3, s26, v2")
    a("s_lshl_b32 m0, s83, 10")
    a("s_mul_i32 s25, s83, 9216")
    a("s_add_u32 s25, s25, s82")
    a("buffer_load_dwordx4 v3, s[16:19], s25 offen lds")
    a(f"s_add_u32 s83, s83, {nwaves}")
    a(f"s_cmp_lt_u32 s83, {limit}")
    a(f"s_cbranch_scc1 {L}")

def g2_dma_zero(a, first_wave, nwaves):
    for i in range(4): a(f"v_mov_b32 v{4+i}, 0")
    a(f"v_subrev_u32 v12, {64*first_wave}, v0")
    a("v_lshlrev_b32 v13, 4, v12")
    nthr = 64*nwaves
    a("v_cmp_gt_u32 vcc, 112, v12")
    a("s_and_saveexec_b64 s[26:27], vcc")
    a(f"v_add_u32 v11, {576*128}, v13")
    a("ds_write_b128 v11, v[4:7]")
    a("s_mov_b64 exec, -1")
    a(f"v_add_u32 v11, {G2_KVB}, v13")
    n16 = (590*48 + 9504) // 16
    k = 0
    while k*nthr < n16:
        rem = n16 - k*nthr
        if rem < nthr:
            a(f"s_movk_i32 s38, {rem}")
            a("v_cmp_gt_u32 vcc, s38, v12")
            a("s_and_saveexec_b64 s[26:27], vcc")
        a(f"ds_write_b128 v11, v[4:7] offset:{k*nthr*16}")
        k += 1
    a("s_mov_b64 exec, -1")

def g2_dma(a, first_wave, nwaves):
    g2_dma_setup(a, first_wave)
    g2_dma_pieces(a, nwaves, 72)
    g2_dma_zero(a, first_wave, nwaves)

def g2_addr(a, diag):
    a.c("==== G2 (addr) ====")
    a(f"v_lshlrev_b32 v{V_T16}, 4, v0")
    a(f"v_and_b32 v{V_L15}, 15, v1")
    a(f"v_lshrrev_b32 v{V_G}, 4, v1")
    a(f"v_lshrrev_b32 v12, 2, v{V_L15}")
    a(f"v_and_b32 v13, 3, v{V_L15}")
    a("v_lshl_add_u32 v13, v12, 3, v13")
    a("v_mul_u32_u24 v13, 288, v13")
    a(f"v_add_u32 v13, {G2_ZT}, v13")
    a(f"v_add_u32 v14, {4*288}, v13")
    a(f"v_mov_b32 v15, {G2_ZZ}")
    a(f"v_cmp_eq_u32 vcc, v12, v{V_G}")
    a("s_nop 1")
    a(f"v_cndmask_b32 v{ZD}, v15, v13, vcc")
    a(f"v_cndmask_b32 v{ZD+1}, v15, v14, vcc")
    a("s_mul_i32 s24, s3, 18")
    a("v_bfe_u32 v12, v1, 2, 2")
    a("v_and_b32 v21, 3, v1")
    a(f"v_lshl_add_u32 v20, v{V_G}, 3, v12")
    a("v_add_u32 v20, s24, v20")
    for hh in range(2):
        if hh: a("v_add_u32 v20, 4, v20")
        swz(a, 23, 20, 21, 24, 25, block=False)
        for t in range(4): a(f"v_xor_b32 v{TA+4*hh+t}, {32*t}, v23")
    a(f"v_add_u32 v20, s24, v{V_L15}")
    a(f"v_mul_u32_u24 v23, {G2_RS}, v{V_L15}")
    a("s_mul_i32 s25, s3, 36")
    a("v_add_u32 v23, s25, v23")
    a(f"v_lshl_add_u32 v{OA}, v{V_G}, 3, v23")
    for ft in range(1, 4): a(f"v_add_u32 v{OA+ft}, {16*G2_RS*ft}, v{OA}")
    a(f"v_mul_u32_u24 v24, {G2_GS}, v{V_G}")
    a("v_add_u32 v24, v24, v23")
    a(f"v_add_u32 v{OB}, 32, v24")
    a(f"v_lshrrev_b32 v24, 2, v{V_L15}")
    a(f"v_and_b32 v25, 3, v{V_L15}")
    a("s_add_u32 s25, s24, 16")
    a(f"v_mul_u32_u24 v22, 48, v20")
    a(f"v_lshl_add_u32 v22, v{V_G}, 4, v22")
    a(f"v_add_u32 v22, {G2_KVB}, v22")
    a(f"v_mov_b32 v15, {G2_ZZ}")
    a(f"v_cmp_eq_u32 s[34:35], 3, v{V_G}")
    a("v_cmp_gt_u32 s[38:39], 2, v25")
    a("v_add_u32 v23, s25, v25")
    a("v_mul_u32_u24 v23, 48, v23")
    a(f"v_lshl_add_u32 v23, v{V_G}, 4, v23")
    a(f"v_add_u32 v23, {G2_KVB}, v23")
    a("s_andn2_b64 s[38:39], s[38:39], s[34:35]")
    for g in range(4):
        a(f"v_add_u32 v28, {6912*g}, v22")
        a(f"v_cndmask_b32 v{KB0+g}, v28, v15, s[34:35]")
        a(f"v_cmp_eq_u32 vcc, {g}, v24")
        a(f"v_add_u32 v28, {6912*g}, v23")
        a("s_nop 0")
        a(f"s_and_b64 s[36:37], vcc, s[38:39]")
        a(f"v_cndmask_b32 v{KB1+g}, v15, v28, s[36:37]")
    for i in range(7):
        a(f"v_add_u32 v12, {512*i}, v0")
        a("v_mul_u32_u24 v13, 10923, v12")
        a("v_lshrrev_b32 v13, 16, v13")
        a("v_mul_u32_u24 v14, 6, v13")
        a("v_sub_u32 v14, v12, v14")
        a(f"v_cmp_eq_u32 s[{68+2*i}:{69+2*i}], 5, v14")
        a("v_mul_u32_u24 v14, 3641, v13")
        a("v_lshrrev_b32 v15, 16, v14")
        a("v_lshrrev_b32 v14, 19, v14")
        a("v_mul_u32_u24 v14, 144, v14")
        a("v_sub_u32 v14, v13, v14")
        a("v_mul_u32_u24 v15, 288, v15")
        a("v_lshl_add_u32 v14, v14, 1, v15")
        a(f"v_add_u32 v14, {G2_ZT}, v14")
        a("v_lshlrev_b32 v12, 3, v12")
        a(f"v_add_u32 v12, {G2_KVB}, v12")
        a(f"v_cndmask_b32 v{KW+i}, v12, v14, s[{68+2*i}:{69+2*i}]")
    a(f"v_mul_u32_u24 v12, {G2_RS}, v{V_L15}")
    a(f"v_mul_u32_u24 v13, {G2_GS}, v{V_G}")
    a(f"v_add_u32 v{MA}, v12, v13")

def g2_post(a, sc, diag, wait_kv, wait_pq, opts={}):
    a.c("==== G2 (post): tables, den, fold, normalise, main GEMM ====")
    srd(a, 12, S_WS, S_WS+1, WS_SRD_BYTES)
    a(f"s_mov_b32 s28, s{S_WS}"); a(f"s_and_b32 s29, s{S_WS+1}, 0xffff")
    a(f"s_mov_b32 s30, {WS_KVS + KVS_BYTES}"); a("s_mov_b32 s31, 0x20000")
    a("s_lshl_b32 s25, s22, 3")
    a("s_add_u32 s25, s25, s3")
    a("s_mul_i32 s25, s25, 18432")
    a(f"s_add_u32 s25, s25, {WS_PQ}")
    a("v_lshlrev_b32 v11, 4, v1")
    pq_list = []
    for ks in range(18):
        pq_list.append((f"buffer_load_dwordx4 v[{PQ+4*ks}:{PQ+4*ks+3}], v11, s[12:15], s25 offen offset:{1024*(ks % 4)}{sc}", ks % 4 == 3))
    issued = [0]
    def pq_issue(n):
        for ins, adv in pq_list[issued[0]:issued[0]+n]:
            a(ins)
            if adv: a("s_add_u32 s25, s25, 4096")
        issued[0] = min(18, issued[0] + n)
    def pq_loads(): pq_issue(18)
    KV = 80
    def kv_loads():
        for i in range(7):
            a(f"s_mov_b32 s26, {WS_KVS + i*8192}")
            a(f"buffer_load_dwordx4 v[{KV+4*i}:{KV+4*i+3}], v{V_T16}, s[28:31], s26 offen{sc}")
    def tables(per_step):
        for i in range(7):
            k = KV + 4*i
            a(f"s_waitcnt vmcnt({issued[0] + 6 - i})")
            a(f"v_cvt_pk_bf16_f32 v{k}, v{k}, v{k+1}")
            a(f"v_cvt_pk_bf16_f32 v{k+1}, v{k+2}, v{k+3}")
            if i == 6:
                a("s_movk_i32 s38, 384")
                a("v_cmp_gt_u32 vcc, s38, v0")
                a("s_nop 0")
                a(f"s_and_b64 s[26:27], vcc, s[{68+2*i}:{69+2*i}]")
                a(f"s_andn2_b64 exec, vcc, s[{68+2*i}:{69+2*i}]")
                a(f"ds_write_b64 v{KW+i}, v[{k}:{k+1}]")
                a("s_mov_b64 exec, s[26:27]")
            else:
                a(f"s_andn2_b64 exec, -1, s[{68+2*i}:{69+2*i}]")
                a(f"ds_write_b64 v{KW+i}, v[{k}:{k+1}]")
                a(f"s_mov_b64 exec, s[{68+2*i}:{69+2*i}]")
            a(f"ds_write_b16 v{KW+i}, v{k}")
            a("s_mov_b64 exec, -1")
            pq_issue(per_step)
    AF4 = [16, 32, 48, 64]
    a("s_waitcnt lgkmcnt(0)")
    a("s_barrier")
    n = 0
    for g in range(4):
        for ft in range(4):
            t = ft ^ (2*(g & 1))
            for hh in range(2):
                r = AF4[g] + 4*ft + 2*hh
                a(f"ds_read_b64_tr_b16 v[{r}:{r+1}], v{TA+4*hh+t} offset:{18432*g}")
                n += 1
                if n % 12 == 0: a("s_waitcnt lgkmcnt(4)")
    early = opts.get("pq_early", 8) if wait_pq is not None else 0
    if wait_pq is not None:
        a("s_cmp_eq_u32 s3, 0")
        a("s_cbranch_scc0 L_g2_nopoll1")
        wait_pq()
        a.label("L_g2_nopoll1")
        a("s_barrier")
        a("s_cmp_eq_u32 s3, 0")
        a("s_cbranch_scc1 L_g2_poll2")
        a("s_mov_b32 s91, s25")
        for ins, adv in pq_list[:early]:
            a(ins)
            if adv: a("s_add_u32 s25, s25, 4096")
        a("s_branch L_g2_nopoll2")
        a.label("L_g2_poll2")
        wait_kv()
        a.label("L_g2_nopoll2")
    a("s_waitcnt lgkmcnt(0)")
    a("s_barrier")
    stamp(a, 13, diag)
    if opts.get("touch", 0):
        a("s_cmp_lt_u32 s3, 3")
        a("s_cbranch_scc0 L_g2_notouch")
        a("s_cmp_eq_u32 s3, 2")
        a("s_cbranch_scc1 L_g2_touchkv")
        a("s_mul_i32 s26, s22, 147456")
        a("s_lshl_b32 s27, s23, 14")
        a("s_add_u32 s26, s26, s27")
        a("s_lshl_b32 s27, s3, 13")
        a("s_add_u32 s26, s26, s27")
        a(f"s_add_u32 s26, s26, {WS_PQ}")
        a("v_lshlrev_b32 v12, 7, v1")
        a(f"buffer_load_dword v253, v12, s[12:15], s26 offen{sc}")
        a("s_branch L_g2_notouch")
        a.label("L_g2_touchkv")
        a("s_lshr_b32 s26, s22, 3")
        a("s_mul_i32 s26, s26, 9")
        a("s_add_u32 s26, s26, s23")
        a("s_mul_i32 s26, s26, 3072")
        a(f"s_add_u32 s26, s26, {WS_KVS}")
        a("v_lshlrev_b32 v12, 7, v1")
        a("s_mov_b64 exec, 0xffffff")
        a(f"buffer_load_dword v253, v12, s[12:15], s26 offen{sc}")
        a("s_mov_b64 exec, -1")
        a.label("L_g2_notouch")
    kv_loads()
    pq_issue(opts.get("pq0", 0))
    tables(opts.get("pq1", 0))
    if opts.get("allwait"): a("s_waitcnt vmcnt(0)")
    a("s_waitcnt lgkmcnt(0)")
    a("s_barrier")
    stamp(a, 5, diag)
    if opts.get("delay5"):
        for _ in range(opts["delay5"]): a("s_sleep 8")
        stamp(a, 10, diag)
    if opts.get("twice2"):
        a("s_mov_b32 s90, 0")
        a.label("L_g2twice")
        stamp(a, 14, diag)
    def late_pq():
        if early and issued[0] == 0:
            a("s_cmp_eq_u32 s3, 0")
            a("s_cbranch_scc0 L_g2_pqrest")
            for ins, adv in pq_list[:early]:
                a(ins)
                if adv: a("s_add_u32 s25, s25, 4096")
            a.label("L_g2_pqrest")
            issued[0] = early
        pq_issue(18)
    if opts.get("late_pre", 0): late_pq()
    BF = [112, 120]; MO = 80; M1 = 96
    def fold_read_ops(g):
        s = g & 1
        return [f"ds_read_b128 v[{BF[s]}:{BF[s]+3}], v{KB0+g}", f"ds_read_b128 v[{BF[s]+4}:{BF[s]+7}], v{KB1+g}"]
    def fold_out_ops(g):
        cv, wr = [], []
        for ft in range(4):
            r = MO + 4*ft
            cv += [f"v_cvt_pk_bf16_f32 v{r}, v{r}, v{r+1}", f"v_cvt_pk_bf16_f32 v{r+1}, v{r+2}, v{r+3}"]
            wr.append(f"ds_write2_b32 v{OA+ft}, v{r}, v{r+1} offset0:0 offset1:1")
        return cv, wr
    def next_block():
        for ft in range(4): a(f"v_add_u32 v{OA+ft}, {G2_GS}, v{OA+ft}")
    for x in fold_read_ops(0): a(x)
    for g in range(4):
        s = g & 1
        a("s_waitcnt lgkmcnt(0)" if g < 2 or opts.get("fnow") else "s_waitcnt lgkmcnt(1)")
        if opts.get("fst2") and g in (0, 1): stamp(a, {0: 14, 1: 15}[g], diag)
        pq_issue(opts.get("pq2", 0))
        rd = fold_read_ops(g + 1) if g + 1 < 4 else []
        cv, wr = fold_out_ops(g - 1) if g else ([], [])
        A_ = AF4[g]
        m0 = [f"v_mfma_f32_16x16x32_bf16 v[{MO+4*ft}:{MO+4*ft+3}], v[{BF[s]}:{BF[s]+3}], v[{A_+4*ft}:{A_+4*ft+3}], 0" for ft in range(4)]
        m1 = []
        for ft in range(4):
            r = M1 + 4*ft
            c = f"v[{r}:{r+3}]" if g else "0"
            m1.append(f"v_mfma_f32_16x16x32_bf16 v[{r}:{r+3}], v[{BF[s]+4}:{BF[s]+7}], v[{A_+4*ft}:{A_+4*ft+3}], {c}")
        W = lambda k: a(wr[k]) if wr else None
        C = lambda k: (a(cv[2*k]), a(cv[2*k+1])) if cv else None
        a(m1[0]); a(m1[1]); C(0)
        a(m1[2]); C(1); W(0)
        a(m1[3]); C(2); W(1)
        a(m0[0]); C(3); W(2)
        for x in rd: a(x)
        a(m0[1]); W(3)
        if wr: next_block()
        a(m0[2]); a(m0[3])
    if opts.get("fst2"): stamp(a, 12, diag)
    a("s_nop 7")
    cv, wr = fold_out_ops(3)
    for k in range(4):
        a(cv[2*k]); a(cv[2*k+1])
        if k and wr: a(wr[k-1])
    if wr: a(wr[3])
    for ft in range(4):
        r = M1 + 4*ft
        a(f"v_cvt_pk_bf16_f32 v{r}, v{r}, v{r+1}")
    for ft in range(4):
        r = M1 + 4*ft
        a(f"ds_write_b32 v{OB}, v{r} offset:{16*G2_RS*ft}")
    late_pq()
    ZF = 32; DEN = 16; RD = 24
    a("s_waitcnt lgkmcnt(0)")
    order = list(range(18))
    ZF2 = {i: ZF + 4*(n % 12) for n, i in enumerate(order)}
    def zr(n):
        i = order[n]; th = i // 9
        a(f"ds_read_b128 v[{ZF2[i]}:{ZF2[i]+3}], v{ZD+th} offset:{16*i}")
    for n in range(11): zr(n)
    nst = 0
    for n in range(18):
        i = order[n]; th, k = divmod(i, 9)
        outstanding = min(18, n + 11) - n - 1
        a(f"s_waitcnt vmcnt({17 - i}) lgkmcnt({outstanding})")
        c = f"v[{DEN+4*th}:{DEN+4*th+3}]" if k else "0"
        a(f"v_mfma_f32_16x16x32_bf16 v[{DEN+4*th}:{DEN+4*th+3}], v[{ZF2[i]}:{ZF2[i]+3}], v[{PQ+4*i}:{PQ+4*i+3}], {c}")
        if n + 11 < 18: zr(n + 11)
    if not opts.get("fst2"): stamp(a, 12, diag)
    a("s_nop 7")
    for x in range(8):
        a(f"v_add_f32 v{RD+x}, {hex(EPS)}, v{DEN+x}")
    for x in range(8):
        a(f"v_rcp_f32 v{RD+x}, v{RD+x}")
    a("v_mov_b32 v14, 0xffff0000")
    def norm(ks):
        for p in range(4):
            x = (8*ks + 2*p)//18
            src = PQ + 4*ks + p; t = 32 + 2*p
            rd = RD + x
            a(f"v_lshlrev_b32 v{t}, 16, v{src}")
            a(f"v_and_b32 v{t+1}, v14, v{src}")
            if rd % 2 == 0: a(f"v_pk_mul_f32 v[{t}:{t+1}], v[{t}:{t+1}], v[{rd}:{rd+1}] op_sel_hi:[1,0]")
            else:           a(f"v_pk_mul_f32 v[{t}:{t+1}], v[{t}:{t+1}], v[{rd-1}:{rd}] op_sel:[0,1] op_sel_hi:[1,1]")
        for p in range(4):
            a(f"v_cvt_pk_bf16_f32 v{PQ+4*ks+p}, v{32+2*p}, v{32+2*p+1}")
    if not opts.get("nonorm"):
        for ks in range(18): norm(ks)
    stamp(a, 9, diag)
    a("s_waitcnt lgkmcnt(0)")
    a("s_barrier")
    stamp(a, 6, diag)
    OUT = 16; NSET = 4; MF = [64, 80, 96, 112]
    pend = []
    def mrd(ks, ft):
        s = ks % NSET
        a(f"ds_read_b128 v[{MF[s]+4*ft}:{MF[s]+4*ft+3}], v{MA} offset:{16*G2_RS*ft + 16*ks}"); pend.append((ks, ft))
    LOOK = 10
    seq = [(ks, ft) for ks in range(18) for ft in range(4)]
    for x in seq[:LOOK]: mrd(*x)
    for n, (ks, ft) in enumerate(seq):
        if ft % 2 == 0:
            last = max(i for i, t in enumerate(pend) if t == (ks, ft + 1))
            a(f"s_waitcnt lgkmcnt({len(pend)-1-last})")
            del pend[:last+1]
        s = ks % NSET
        c = f"v[{OUT+4*ft}:{OUT+4*ft+3}]" if ks else "0"
        a(f"v_mfma_f32_16x16x32_bf16 v[{OUT+4*ft}:{OUT+4*ft+3}], v[{MF[s]+4*ft}:{MF[s]+4*ft+3}], v[{PQ+4*ks}:{PQ+4*ks+3}], {c}")
        if n + LOOK < len(seq): mrd(*seq[n + LOOK])
    stamp(a, 7, diag)
    if opts.get("twice2"):
        a("s_cmp_eq_u32 s90, 0")
        a("s_cbranch_scc0 L_g2twice_done")
        stamp(a, 15, diag)
        a("s_mov_b32 s90, 1")
        a("s_barrier")
        a("s_branch L_g2twice")
        a.label("L_g2twice_done")
    srd(a, 16, S_OUT, S_OUT+1, 2048*2304)
    a("s_lshl_b32 s25, s22, 7")
    a("s_lshl_b32 s26, s3, 4")
    a("s_add_u32 s25, s25, s26")
    a("s_mul_i32 s25, s25, 2304")
    a("s_lshl_b32 s26, s23, 7")
    a("s_add_u32 s25, s25, s26")
    a(f"v_mul_u32_u24 v4, 2304, v{V_L15}")
    a(f"v_lshl_add_u32 v4, v{V_G}, 4, v4")
    for pr in range(2):
        A_ = OUT + 8*pr; B_ = A_ + 4; p = 64 + 4*pr
        a(f"v_cvt_pk_bf16_f32 v{p}, v{A_}, v{A_+1}")
        a(f"v_cvt_pk_bf16_f32 v{p+1}, v{A_+2}, v{A_+3}")
        a(f"v_cvt_pk_bf16_f32 v{p+2}, v{B_}, v{B_+1}")
        a(f"v_cvt_pk_bf16_f32 v{p+3}, v{B_+2}, v{B_+3}")
        a("s_nop 1")
        a(f"v_permlane32_swap_b32 v{p}, v{p+2}")
        a(f"v_permlane32_swap_b32 v{p+1}, v{p+3}")
        a("s_nop 1")
        a(f"v_permlane16_swap_b32 v{p}, v{p+2}")
        a(f"v_permlane16_swap_b32 v{p+1}, v{p+3}")
        a("s_nop 1")
        a(f"buffer_store_dwordx4 v[{p}:{p+3}], v4, s[16:19], s25 offen offset:{64*pr}{opts.get('osc_a', '')}")

def g2_role(a, sc, diag, wait_kv, wait_pq, opts={}):
    g2_dma(a, 0, 8)
    g2_addr(a, diag)
    g2_post(a, sc, diag, wait_kv, wait_pq, opts)
```

```python
import sys
from common import *
from g1 import *
from prep import *
from conv import *
from g2 import *
from sync import *
NAME = "concat_heads__linear_attn_block__ssm_conv_h3__prompt"
LDS = 163840

def kd(a, name, vgpr, sgpr=102, acc=None):
    a.raw(f".amdhsa_kernel {name}")
    a.raw(f"  .amdhsa_next_free_vgpr {vgpr}")
    a.raw(f"  .amdhsa_next_free_sgpr {sgpr}")
    a.raw(f"  .amdhsa_accum_offset {acc or vgpr}")
    a.raw("  .amdhsa_group_segment_fixed_size 0")
    a.raw("  .amdhsa_kernarg_size 96")
    a.raw("  .amdhsa_user_sgpr_count 2")
    a.raw("  .amdhsa_user_sgpr_kernarg_segment_ptr 1")
    a.raw("  .amdhsa_system_sgpr_workgroup_id_x 1")
    a.raw(".end_amdhsa_kernel")

def phase1_ids(a):
    a(f"s_cmp_ge_u32 s2, {ID_B}")
    a("s_cbranch_scc1 L_roleB")
    a(f"s_cmp_ge_u32 s2, {ID_Q}")
    a("s_cbranch_scc1 L_roleQ")

def k1(a, diag, nskv, nsq, opts):
    name = "k1_kernel"
    entry(a, name, ID_Z + 1)
    if opts.get("pf"):
        a("s_cmp_eq_u32 s3, 3")
        a("s_cbranch_scc0 L_k1_nopf")
        code_prefetch(a, name, f"L_{name}_exit", "k1")
        a.label("L_k1_nopf")
    stamp(a, 0, diag)
    phase1_ids(a)
    a("s_and_b32 s20, s2, 7"); a("s_lshr_b32 s21, s2, 3")
    a("s_lshr_b32 s22, s20, 1"); a("s_lshl_b32 s22, s22, 2"); a("s_and_b32 s23, s21, 3"); a("s_add_u32 s22, s22, s23")
    a("s_and_b32 s23, s20, 1"); a("s_lshl_b32 s23, s23, 2"); a("s_lshr_b32 s24, s21, 2"); a("s_add_u32 s23, s23, s24")
    g1_role(a, False, nskv, "", diag, lambda k: a("s_endpgm"))
    a.label("L_roleQ")
    a("s_and_b32 s20, s2, 7"); a(f"s_sub_u32 s21, s2, {ID_Q}"); a("s_lshr_b32 s21, s21, 3")
    a("s_lshl_b32 s22, s20, 1"); a("s_and_b32 s23, s21, 1"); a("s_add_u32 s22, s22, s23")
    a("s_lshr_b32 s23, s21, 1")
    g1_role(a, True, nsq, "", diag, lambda k: a("s_endpgm"))
    a.label("L_roleB")
    a(f"s_cmp_eq_u32 s2, {ID_Z}")
    a("s_cbranch_scc1 L_roleZ")
    a(f"s_sub_u32 s20, s2, {ID_B}")
    a("s_cmp_ge_u32 s3, 4")
    a("s_cbranch_scc1 L_k1_kernel_exit")
    prep_role(a, "", diag)
    if diag: a("s_waitcnt vmcnt(0)")
    stamp(a, 3, diag)
    a("s_endpgm")
    a.label("L_roleZ")
    z_role(a, diag)
    if opts.get("wopf", 0):
        for k in range(11):
            a(f"v_add_u32 v2, {512*k}, v0")
            a(f"s_movk_i32 s22, 5184")
            a("v_cmp_gt_u32 vcc, s22, v2")
            a("v_lshlrev_b32 v2, 7, v2")
            a("s_mov_b64 exec, vcc")
            L = a.newlabel("wopf")
            a(f"s_cbranch_execz {L}")
            a(f"global_load_dword v253, v2, s[{S_WO}:{S_WO+1}]")
            a.label(L)
            a("s_mov_b64 exec, -1")
    a.label(f"L_{name}_exit")
    a("s_endpgm")

def k2(a, diag, opts):
    name = "k2_kernel"
    entry(a, name, ID_Z)
    if opts.get("pf"):
        a("s_cmp_eq_u32 s3, 3")
        a("s_cbranch_scc0 L_k2_nopf")
        code_prefetch(a, name, f"L_{name}_exit", "k2")
        a.label("L_k2_nopf")
    stamp(a, 4, diag)
    a(f"s_cmp_ge_u32 s2, {ID_B}")
    a("s_cbranch_scc1 L_k2_conv")
    a("s_cmp_lt_u32 s2, 96")
    a("s_cbranch_scc1 L_k2_lo")
    a(f"s_cmp_lt_u32 s2, {ID_Q}")
    a(f"s_cbranch_scc1 L_{name}_exit")
    a("s_sub_u32 s20, s2, 32")
    a("s_branch L_k2_g2")
    a.label("L_k2_lo")
    a("s_mov_b32 s20, s2")
    a.label("L_k2_g2")
    g2_role(a, "", diag, None, None, opts)
    if diag: a("s_waitcnt vmcnt(0)")
    stamp(a, 8, diag)
    a("s_endpgm")
    a.label("L_k2_conv")
    a(f"s_sub_u32 s20, s2, {ID_B}")
    conv_role(a, "", diag, lambda: None)
    if diag: a("s_waitcnt vmcnt(0)")
    stamp(a, 8, diag)
    a.label(f"L_{name}_exit")
    a("s_endpgm")

def k3(a, sel):
    name = "k3_kernel"
    entry(a, name, 1)
    a("s_cmp_eq_u32 s3, 0")
    a(f"s_cbranch_scc0 L_{name}_exit")
    a(f"v_mov_b32 v2, {WS_STAMP}")
    a(f"global_load_dword v3, v2, s[{S_WS}:{S_WS+1}] sc0 sc1")
    a("v_mov_b32 v4, 0")
    for i, (wg, idx) in enumerate(sel):
        a(f"v_cmp_eq_u32 vcc, {i}, v1")
        a(f"v_mov_b32 v5, {WS_STAMP + wg*128 + idx*8}")
        a("s_nop 0")
        a("v_cndmask_b32 v4, v4, v5, vcc")
    a("v_cmp_gt_u32 vcc, 16, v1")
    a("s_and_saveexec_b64 s[20:21], vcc")
    a(f"global_load_dword v6, v4, s[{S_WS}:{S_WS+1}] sc0 sc1")
    a("s_waitcnt vmcnt(0)")
    a("v_sub_u32 v6, v6, v3")
    a("v_lshlrev_b32 v7, 2, v1")
    a(f"global_store_dword v7, v6, s[{S_DBG}:{S_DBG+1}]")
    a.label(f"L_{name}_exit")
    a("s_endpgm")

def fused(a, diag, opts):
    name = NAME + "_kernel"
    sc = {0: " sc0 sc1", 1: " sc1", 2: ""}[opts.get("sc", 1)]
    entry(a, name, ID_Z + 1)
    if opts.get("pf", 1):
        a("s_cmp_eq_u32 s3, 3")
        a("s_cbranch_scc0 L_nopf")
        code_prefetch(a, name, f"L_{name}_exit", "k")
        a.label("L_nopf")
    stamp(a, 0, diag)
    if diag and opts.get("xcc"):
        a("s_getreg_b32 s96, hwreg(HW_REG_XCC_ID)")
        a("s_getreg_b32 s97, hwreg(HW_REG_HW_ID)")
        a("v_mov_b32 v250, s96"); a("v_mov_b32 v251, s97")
        a("s_lshl_b32 s98, s2, 7")
        a(f"s_add_u32 s98, s98, {WS_STAMP + 15*8}")
        a("v_mov_b32 v252, s98")
        a("s_mov_b64 exec, 1")
        a(f"global_store_dwordx2 v252, v[250:251], s[{S_WS}:{S_WS+1}]")
        a("s_mov_b64 exec, -1")
    phase1_ids(a)
    def g2_index():
        a("s_sub_u32 s20, s2, 32")
        a(f"s_cmp_ge_u32 s2, {ID_Q}")
        a("s_cselect_b32 s20, s20, s2")
        a("s_cmp_ge_u32 s20, 96")
        a("s_cselect_b32 s21, 1, 0")
        a(f"s_cmp_ge_u32 s2, {ID_Q}")
        a("s_cselect_b32 s21, 0, s21")
        a("s_cmp_eq_u32 s21, 1")
    def after_g1(q):
        def f(kind):
            L = "q" if q else "kv"
            if kind == "loader":
                a("s_barrier")
                g2_index()
                a("s_cbranch_scc1 L_%s_idle" % L)
                n1 = opts.get("dma1_q" if q else "dma1_kv", 40 if q else 72)
                g2_dma_setup(a, 4)
                g2_dma_pieces(a, 4, n1)
                if not q: a("s_barrier")
                if n1 < 72: g2_dma_pieces(a, 4, 72)
                g2_dma_zero(a, 4, 4)
                g2_addr(a, diag)
                a("s_barrier")
                a("s_branch L_A_post")
                a.label("L_%s_idle" % L)
                if not q: a("s_barrier")
                a("s_barrier")
                a("s_endpgm")
            else:
                if q: stamp(a, 14, diag)
                g2_index()
                a(f"s_cselect_b32 s65, 1, 0")
                if not q:
                    a("s_cbranch_scc1 L_%s_noaddr" % L)
                    g2_addr(a, diag)
                    a.label("L_%s_noaddr" % L)
                a("s_waitcnt vmcnt(0)")
                stamp(a, 3, diag)
                if q and opts.get("qtouch", 1):
                    q_touch(a)
                a("s_barrier")
                a("s_cmp_eq_u32 s3, 0")
                a("s_cbranch_scc0 L_%s_noflag" % L)
                if q:
                    a("v_readfirstlane_b32 s66, v14")
                    a("s_cmp_lg_u32 s66, 0")
                    a("s_cbranch_scc1 L_q_dbgok")
                    wait_dbg(a)
                    a.label("L_q_dbgok")
                    a(f"s_sub_u32 s21, s2, {ID_Q - FL_Q}")
                else:
                    a(f"s_add_u32 s21, s2, {FL_KV}")
                flag_store(a, "s21")
                a.label("L_%s_noflag" % L)
                if q:
                    g2_addr(a, diag)
                else:
                    a("s_cmp_eq_u32 s65, 1")
                    a(f"s_cbranch_scc1 L_{name}_exit")
                a("s_branch L_A_post")
        return f
    a("s_and_b32 s20, s2, 7"); a("s_lshr_b32 s21, s2, 3")
    a("s_lshr_b32 s22, s20, 1"); a("s_lshl_b32 s22, s22, 2"); a("s_and_b32 s23, s21, 3"); a("s_add_u32 s22, s22, s23")
    a("s_and_b32 s23, s20, 1"); a("s_lshl_b32 s23, s23, 2"); a("s_lshr_b32 s24, s21, 2"); a("s_add_u32 s23, s23, s24")
    g1_role(a, False, opts.get('nskv', 3), sc, diag, after_g1(False), opts.get("prio", 0))
    a.label("L_roleQ")
    a("s_and_b32 s20, s2, 7"); a(f"s_sub_u32 s21, s2, {ID_Q}"); a("s_lshr_b32 s21, s21, 3")
    a("s_and_b32 s23, s21, 1"); a("s_lshl_b32 s23, s23, 3"); a("s_add_u32 s22, s20, s23")
    a("s_lshr_b32 s23, s21, 1")
    g1_role(a, True, 4, sc, diag, after_g1(True), opts.get("prio", 0))
    a.label("L_A_post")
    if opts.get("prio", 0): a("s_setprio 0")
    stamp(a, 4, diag)
    g2_ids(a)
    def wait_pq():
        a("v_min_u32 v250, 2, v1")
        a("v_lshlrev_b32 v250, 4, v250")
        a("s_lshr_b32 s66, s22, 3")
        a("s_lshl_b32 s66, s66, 3")
        a("s_and_b32 s67, s22, 7")
        a("s_add_u32 s66, s66, s67")
        a(f"s_add_u32 s66, s66, {FL_Q}")
        a("v_add_u32 v250, s66, v250")
        a("v_lshlrev_b32 v250, 6, v250")
        a(f"v_add_u32 v250, {WS_FLAG}, v250")
        poll(a, [250])
    def wait_kv():
        a("v_lshlrev_b32 v251, 6, v1")
        a(f"v_add_u32 v252, {WS_FLAG + (FL_KV+64)*64}, v251")
        a(f"v_add_u32 v251, {WS_FLAG + FL_KV*64}, v251")
        poll(a, [251, 252])
    g2_post(a, opts.get("ldsc", sc), diag, wait_kv, wait_pq, opts)
    diag_delay(a, opts.get("dlyA", 0))
    if diag: a("s_waitcnt vmcnt(0)")
    stamp(a, 8, diag)
    a("s_endpgm")
    a.label("L_roleB")
    a(f"s_cmp_eq_u32 s2, {ID_Z}")
    a("s_cbranch_scc1 L_roleZ")
    a(f"s_sub_u32 s20, s2, {ID_B}")
    mode = opts.get("dpfmode", 0)
    if opts.get("dpf", 1) and mode == 0:
        data_prefetch(a, "s20", N_B)
        if opts.get("bwait", -1) >= 0: a(f"s_waitcnt vmcnt({opts.get('bwait', 0)})")
    conv_ids(a)
    conv_dload(a)
    a("s_cmp_ge_u32 s3, 4")
    a("s_cbranch_scc1 L_B_other")
    prep_role(a, sc, diag)
    a("s_waitcnt vmcnt(0)")
    a("s_branch L_B_noprep")
    a.label("L_B_other")
    if opts.get("dpf", 1) and mode == 1:
        data_prefetch(a, "s20", N_B, 256, 256)
        a("s_waitcnt vmcnt(0)")
    conv_filters(a)
    a("s_cmp_eq_u32 s3, 7")
    a("s_cbranch_scc0 L_B_noprep")
    wait_dbg(a)
    a.label("L_B_noprep")
    stamp(a, 3, diag)
    a("s_barrier")
    a("s_cmp_eq_u32 s3, 7")
    a("s_cbranch_scc0 L_B_geom")
    flag_store(a, "s20")
    a.label("L_B_geom")
    conv_geom(a, diag)
    a("s_cmp_eq_u32 s3, 7")
    a("s_cbranch_scc0 L_B_wait")
    a("s_lshr_b32 s66, s21, 3")
    a("s_lshl_b32 s66, s66, 3")
    a("v_and_b32 v248, 7, v1")
    a("v_add_u32 v248, s66, v248")
    a("v_lshlrev_b32 v248, 6, v248")
    a(f"v_add_u32 v248, {WS_FLAG + FL_PREP*64}, v248")
    poll(a, [248])
    a.label("L_B_wait")
    a("s_barrier")
    stamp(a, 4, diag)
    conv_post(a, sc, diag, lambda: None, opts.get("osc_b", ""))
    diag_delay(a, opts.get("dlyB", 0))
    if diag: a("s_waitcnt vmcnt(0)")
    stamp(a, 8, diag)
    a("s_endpgm")
    a.label("L_roleZ")
    z_role(a, diag)
    if opts.get("wopf", 0):
        for k in range(11):
            a(f"v_add_u32 v2, {512*k}, v0")
            a(f"s_movk_i32 s22, 5184")
            a("v_cmp_gt_u32 vcc, s22, v2")
            a("v_lshlrev_b32 v2, 7, v2")
            a("s_mov_b64 exec, vcc")
            L = a.newlabel("wopf")
            a(f"s_cbranch_execz {L}")
            a(f"global_load_dword v253, v2, s[{S_WO}:{S_WO+1}]")
            a.label(L)
            a("s_mov_b64 exec, -1")
    a.label(f"L_{name}_exit")
    a("s_endpgm")
    a.raw(".fill 1024, 4, 0xbf810000")

def main_fused(out, diag, opts):
    import g1 as _g1
    _g1.TWICE = bool(opts.get('twice'))
    _g1.KV_MID = bool(opts.get('kvmid', 0))
    a = A()
    a.raw(f"; @launch grid=({ID_Z+1},1,1) block=(512,1,1) lds={LDS}")
    a.raw('.amdgcn_target "amdgcn-amd-amdhsa--gfx950"')
    a.raw(".text")
    fused(a, diag, opts)
    a.raw('.section .rodata,"a"')
    a.raw(".p2align 6")
    kd(a, NAME + "_kernel", 256)
    open(out, "w").write(a.text())

def main(out, diag, opts):
    a = A()
    a.raw(f"; @launch kernel=k1_kernel grid=({ID_Z+1},1,1) block=(512,1,1) lds={LDS}")
    a.raw(f"; @launch kernel=k2_kernel grid=({ID_Z},1,1) block=(512,1,1) lds={LDS}")
    if opts.get("k3"): a.raw("; @launch kernel=k3_kernel grid=(1,1,1) block=(64,1,1) lds=0")
    a.raw('.amdgcn_target "amdgcn-amd-amdhsa--gfx950"')
    a.raw(".text")
    k1(a, diag, opts.get("nskv", 4), opts.get("nsq", 3), opts)
    k2(a, diag, opts)
    if opts.get("k3"):
        k3(a, [(0,1),(0,2),(0,3),(130,2),(130,3),(180,3),(0,4),(0,5),(0,6),(0,7),(0,8),(180,4),(180,5),(180,6),(180,8),(247,8)])
    a.raw('.section .rodata,"a"')
    a.raw(".p2align 6")
    kd(a, "k1_kernel", 256)
    a.raw(".p2align 6")
    kd(a, "k2_kernel", 256)
    if opts.get("k3"):
        a.raw(".p2align 6")
        kd(a, "k3_kernel", 256)
    open(out, "w").write(a.text())

if __name__ == "__main__":
    out = sys.argv[1]; diag = "diag" in sys.argv
    opts = {k: (int(v) if v.lstrip("-").isdigit() else ("" if v == "none" else " " + v.replace("+", " "))) for k, v in (x.split("=") for x in sys.argv[2:] if "=" in x)}
    (main if opts.get('multi') else main_fused)(out, diag, opts)
```

```python
import sys
from common import *
from g1 import *
from prep import *
from conv import *
from g2 import *
from sync import *
NAME = "concat_heads__linear_attn_block__ssm_conv_h3__prompt"
LDS = 163840

def kd(a, name, vgpr, sgpr=102, acc=None):
    a.raw(f".amdhsa_kernel {name}")
    a.raw(f"  .amdhsa_next_free_vgpr {vgpr}")
    a.raw(f"  .amdhsa_next_free_sgpr {sgpr}")
    a.raw(f"  .amdhsa_accum_offset {acc or vgpr}")
    a.raw("  .amdhsa_group_segment_fixed_size 0")
    a.raw("  .amdhsa_kernarg_size 96")
    a.raw("  .amdhsa_user_sgpr_count 2")
    a.raw("  .amdhsa_user_sgpr_kernarg_segment_ptr 1")
    a.raw("  .amdhsa_system_sgpr_workgroup_id_x 1")
    a.raw(".end_amdhsa_kernel")

def phase1_ids(a):
    a(f"s_cmp_ge_u32 s2, {ID_B}")
    a("s_cbranch_scc1 L_roleB")
    a(f"s_cmp_ge_u32 s2, {ID_Q}")
    a("s_cbranch_scc1 L_roleQ")

def k1(a, diag, nskv, nsq, opts):
    name = "k1_kernel"
    entry(a, name, ID_Z + 1)
    if opts.get("pf"):
        a("s_cmp_eq_u32 s3, 3")
        a("s_cbranch_scc0 L_k1_nopf")
        code_prefetch(a, name, f"L_{name}_exit", "k1")
        a.label("L_k1_nopf")
    stamp(a, 0, diag)
    phase1_ids(a)
    a("s_and_b32 s20, s2, 7"); a("s_lshr_b32 s21, s2, 3")
    a("s_lshr_b32 s22, s20, 1"); a("s_lshl_b32 s22, s22, 2"); a("s_and_b32 s23, s21, 3"); a("s_add_u32 s22, s22, s23")
    a("s_and_b32 s23, s20, 1"); a("s_lshl_b32 s23, s23, 2"); a("s_lshr_b32 s24, s21, 2"); a("s_add_u32 s23, s23, s24")
    g1_role(a, False, nskv, "", diag, lambda k: a("s_endpgm"))
    a.label("L_roleQ")
    a("s_and_b32 s20, s2, 7"); a(f"s_sub_u32 s21, s2, {ID_Q}"); a("s_lshr_b32 s21, s21, 3")
    a("s_lshl_b32 s22, s20, 1"); a("s_and_b32 s23, s21, 1"); a("s_add_u32 s22, s22, s23")
    a("s_lshr_b32 s23, s21, 1")
    g1_role(a, True, nsq, "", diag, lambda k: a("s_endpgm"))
    a.label("L_roleB")
    a(f"s_cmp_eq_u32 s2, {ID_Z}")
    a("s_cbranch_scc1 L_roleZ")
    a(f"s_sub_u32 s20, s2, {ID_B}")
    a("s_cmp_ge_u32 s3, 4")
    a("s_cbranch_scc1 L_k1_kernel_exit")
    prep_role(a, "", diag)
    if diag: a("s_waitcnt vmcnt(0)")
    stamp(a, 3, diag)
    a("s_endpgm")
    a.label("L_roleZ")
    z_role(a, diag)
    if opts.get("wopf", 0):
        for k in range(11):
            a(f"v_add_u32 v2, {512*k}, v0")
            a(f"s_movk_i32 s22, 5184")
            a("v_cmp_gt_u32 vcc, s22, v2")
            a("v_lshlrev_b32 v2, 7, v2")
            a("s_mov_b64 exec, vcc")
            L = a.newlabel("wopf")
            a(f"s_cbranch_execz {L}")
            a(f"global_load_dword v253, v2, s[{S_WO}:{S_WO+1}]")
            a.label(L)
            a("s_mov_b64 exec, -1")
    a.label(f"L_{name}_exit")
    a("s_endpgm")

def k2(a, diag, opts):
    name = "k2_kernel"
    entry(a, name, ID_Z)
    if opts.get("pf"):
        a("s_cmp_eq_u32 s3, 3")
        a("s_cbranch_scc0 L_k2_nopf")
        code_prefetch(a, name, f"L_{name}_exit", "k2")
        a.label("L_k2_nopf")
    stamp(a, 4, diag)
    a(f"s_cmp_ge_u32 s2, {ID_B}")
    a("s_cbranch_scc1 L_k2_conv")
    a("s_cmp_lt_u32 s2, 96")
    a("s_cbranch_scc1 L_k2_lo")
    a(f"s_cmp_lt_u32 s2, {ID_Q}")
    a(f"s_cbranch_scc1 L_{name}_exit")
    a("s_sub_u32 s20, s2, 32")
    a("s_branch L_k2_g2")
    a.label("L_k2_lo")
    a("s_mov_b32 s20, s2")
    a.label("L_k2_g2")
    g2_role(a, "", diag, None, None, opts)
    if diag: a("s_waitcnt vmcnt(0)")
    stamp(a, 8, diag)
    a("s_endpgm")
    a.label("L_k2_conv")
    a(f"s_sub_u32 s20, s2, {ID_B}")
    conv_role(a, "", diag, lambda: None)
    if diag: a("s_waitcnt vmcnt(0)")
    stamp(a, 8, diag)
    a.label(f"L_{name}_exit")
    a("s_endpgm")

def k3(a, sel):
    name = "k3_kernel"
    entry(a, name, 1)
    a("s_cmp_eq_u32 s3, 0")
    a(f"s_cbranch_scc0 L_{name}_exit")
    a(f"v_mov_b32 v2, {WS_STAMP}")
    a(f"global_load_dword v3, v2, s[{S_WS}:{S_WS+1}] sc0 sc1")
    a("v_mov_b32 v4, 0")
    for i, (wg, idx) in enumerate(sel):
        a(f"v_cmp_eq_u32 vcc, {i}, v1")
        a(f"v_mov_b32 v5, {WS_STAMP + wg*128 + idx*8}")
        a("s_nop 0")
        a("v_cndmask_b32 v4, v4, v5, vcc")
    a("v_cmp_gt_u32 vcc, 16, v1")
    a("s_and_saveexec_b64 s[20:21], vcc")
    a(f"global_load_dword v6, v4, s[{S_WS}:{S_WS+1}] sc0 sc1")
    a("s_waitcnt vmcnt(0)")
    a("v_sub_u32 v6, v6, v3")
    a("v_lshlrev_b32 v7, 2, v1")
    a(f"global_store_dword v7, v6, s[{S_DBG}:{S_DBG+1}]")
    a.label(f"L_{name}_exit")
    a("s_endpgm")

def fused(a, diag, opts):
    name = NAME + "_kernel"
    sc = {0: " sc0 sc1", 1: " sc1", 2: ""}[opts.get("sc", 1)]
    def early():
        if opts.get("pf", 1):
            a("s_cmp_eq_u32 s3, 3")
            a("s_cbranch_scc0 L_nopf")
            code_prefetch(a, name, f"L_{name}_exit", "k")
            a.label("L_nopf")
    entry(a, name, ID_Z + 1, early)
    stamp(a, 0, diag)
    if diag and opts.get("xcc"):
        a("s_getreg_b32 s96, hwreg(HW_REG_XCC_ID)")
        a("s_getreg_b32 s97, hwreg(HW_REG_HW_ID)")
        a("v_mov_b32 v250, s96"); a("v_mov_b32 v251, s97")
        a("s_lshl_b32 s98, s2, 7")
        a(f"s_add_u32 s98, s98, {WS_STAMP + 15*8}")
        a("v_mov_b32 v252, s98")
        a("s_mov_b64 exec, 1")
        a(f"global_store_dwordx2 v252, v[250:251], s[{S_WS}:{S_WS+1}]")
        a("s_mov_b64 exec, -1")
    phase1_ids(a)
    def g2_index():
        a("s_sub_u32 s20, s2, 32")
        a(f"s_cmp_ge_u32 s2, {ID_Q}")
        a("s_cselect_b32 s20, s20, s2")
        a("s_cmp_ge_u32 s20, 96")
        a("s_cselect_b32 s21, 1, 0")
        a(f"s_cmp_ge_u32 s2, {ID_Q}")
        a("s_cselect_b32 s21, 0, s21")
        a("s_cmp_eq_u32 s21, 1")
    def after_g1(q):
        def f(kind):
            L = "q" if q else "kv"
            if kind == "loader":
                a("s_barrier")
                g2_index()
                a("s_cbranch_scc1 L_%s_idle" % L)
                n1 = opts.get("dma1_q" if q else "dma1_kv", 40 if q else 72)
                g2_dma_setup(a, 4)
                g2_dma_pieces(a, 4, n1)
                if not q: a("s_barrier")
                if n1 < 72: g2_dma_pieces(a, 4, 72)
                g2_dma_zero(a, 4, 4)
                g2_addr(a, diag)
                a("s_barrier")
                a("s_branch L_A_post")
                a.label("L_%s_idle" % L)
                if not q: a("s_barrier")
                a("s_barrier")
                a("s_endpgm")
            else:
                if q: stamp(a, 14, diag)
                g2_index()
                a(f"s_cselect_b32 s65, 1, 0")
                if not q:
                    a("s_cbranch_scc1 L_%s_noaddr" % L)
                    g2_addr(a, diag)
                    a.label("L_%s_noaddr" % L)
                a("s_waitcnt vmcnt(0)")
                stamp(a, 3, diag)
                if q and opts.get("qtouch", 1):
                    q_touch(a)
                a("s_barrier")
                a("s_cmp_eq_u32 s3, 0")
                a("s_cbranch_scc0 L_%s_noflag" % L)
                if q:
                    a("v_readfirstlane_b32 s66, v14")
                    a("s_cmp_lg_u32 s66, 0")
                    a("s_cbranch_scc1 L_q_dbgok")
                    wait_dbg(a)
                    a.label("L_q_dbgok")
                    a(f"s_sub_u32 s21, s2, {ID_Q - FL_Q}")
                else:
                    a(f"s_add_u32 s21, s2, {FL_KV}")
                flag_store(a, "s21")
                a.label("L_%s_noflag" % L)
                if q:
                    g2_addr(a, diag)
                else:
                    a("s_cmp_eq_u32 s65, 1")
                    a(f"s_cbranch_scc1 L_{name}_exit")
                a("s_branch L_A_post")
        return f
    a("s_and_b32 s20, s2, 7"); a("s_lshr_b32 s21, s2, 3")
    a("s_lshr_b32 s22, s20, 1"); a("s_lshl_b32 s22, s22, 2"); a("s_and_b32 s23, s21, 3"); a("s_add_u32 s22, s22, s23")
    a("s_and_b32 s23, s20, 1"); a("s_lshl_b32 s23, s23, 2"); a("s_lshr_b32 s24, s21, 2"); a("s_add_u32 s23, s23, s24")
    g1_role(a, False, opts.get('nskv', 3), sc, diag, after_g1(False), opts.get("prio", 0))
    a.label("L_roleQ")
    a("s_and_b32 s20, s2, 7"); a(f"s_sub_u32 s21, s2, {ID_Q}"); a("s_lshr_b32 s21, s21, 3")
    a("s_and_b32 s23, s21, 1"); a("s_lshl_b32 s23, s23, 3"); a("s_add_u32 s22, s20, s23")
    a("s_lshr_b32 s23, s21, 1")
    g1_role(a, True, 4, sc, diag, after_g1(True), opts.get("prio", 0))
    a.label("L_A_post")
    if opts.get("prio", 0): a("s_setprio 0")
    stamp(a, 4, diag)
    g2_ids(a)
    def wait_pq():
        a("v_min_u32 v250, 2, v1")
        a("v_lshlrev_b32 v250, 4, v250")
        a("s_lshr_b32 s66, s22, 3")
        a("s_lshl_b32 s66, s66, 3")
        a("s_and_b32 s67, s22, 7")
        a("s_add_u32 s66, s66, s67")
        a(f"s_add_u32 s66, s66, {FL_Q}")
        a("v_add_u32 v250, s66, v250")
        a("v_lshlrev_b32 v250, 6, v250")
        a(f"v_add_u32 v250, {WS_FLAG}, v250")
        poll(a, [250])
    def wait_kv():
        a("v_lshlrev_b32 v251, 6, v1")
        a(f"v_add_u32 v252, {WS_FLAG + (FL_KV+64)*64}, v251")
        a(f"v_add_u32 v251, {WS_FLAG + FL_KV*64}, v251")
        poll(a, [251, 252])
    g2_post(a, opts.get("ldsc", sc), diag, wait_kv, wait_pq, opts)
    diag_delay(a, opts.get("dlyA", 0))
    if diag: a("s_waitcnt vmcnt(0)")
    stamp(a, 8, diag)
    a("s_endpgm")
    a.label("L_roleB")
    a(f"s_cmp_eq_u32 s2, {ID_Z}")
    a("s_cbranch_scc1 L_roleZ")
    a(f"s_sub_u32 s20, s2, {ID_B}")
    mode = opts.get("dpfmode", 0)
    if opts.get("dpf", 1) and mode == 0:
        data_prefetch(a, "s20", N_B)
        if opts.get("bwait", -1) >= 0: a(f"s_waitcnt vmcnt({opts.get('bwait', 0)})")
    conv_ids(a)
    conv_dload(a)
    a("s_cmp_ge_u32 s3, 4")
    a("s_cbranch_scc1 L_B_other")
    prep_role(a, sc, diag)
    a("s_waitcnt vmcnt(0)")
    a("s_branch L_B_noprep")
    a.label("L_B_other")
    if opts.get("dpf", 1) and mode == 1:
        data_prefetch(a, "s20", N_B, 256, 256)
        a("s_waitcnt vmcnt(0)")
    conv_filters(a)
    a("s_cmp_eq_u32 s3, 7")
    a("s_cbranch_scc0 L_B_noprep")
    wait_dbg(a)
    a.label("L_B_noprep")
    stamp(a, 3, diag)
    a("s_barrier")
    a("s_cmp_eq_u32 s3, 7")
    a("s_cbranch_scc0 L_B_geom")
    flag_store(a, "s20")
    a.label("L_B_geom")
    conv_geom(a, diag)
    a("s_cmp_eq_u32 s3, 7")
    a("s_cbranch_scc0 L_B_wait")
    a("s_lshr_b32 s66, s21, 3")
    a("s_lshl_b32 s66, s66, 3")
    a("v_and_b32 v248, 7, v1")
    a("v_add_u32 v248, s66, v248")
    a("v_lshlrev_b32 v248, 6, v248")
    a(f"v_add_u32 v248, {WS_FLAG + FL_PREP*64}, v248")
    poll(a, [248])
    a.label("L_B_wait")
    a("s_barrier")
    stamp(a, 4, diag)
    conv_post(a, sc, diag, lambda: None, opts.get("osc_b", ""))
    diag_delay(a, opts.get("dlyB", 0))
    if diag: a("s_waitcnt vmcnt(0)")
    stamp(a, 8, diag)
    a("s_endpgm")
    a.label("L_roleZ")
    z_role(a, diag)
    if opts.get("wopf", 0):
        for k in range(11):
            a(f"v_add_u32 v2, {512*k}, v0")
            a(f"s_movk_i32 s22, 5184")
            a("v_cmp_gt_u32 vcc, s22, v2")
            a("v_lshlrev_b32 v2, 7, v2")
            a("s_mov_b64 exec, vcc")
            L = a.newlabel("wopf")
            a(f"s_cbranch_execz {L}")
            a(f"global_load_dword v253, v2, s[{S_WO}:{S_WO+1}]")
            a.label(L)
            a("s_mov_b64 exec, -1")
    a.label(f"L_{name}_exit")
    a("s_endpgm")
    a.raw(".fill 1024, 4, 0xbf810000")

def main_fused(out, diag, opts):
    import g1 as _g1
    _g1.TWICE = bool(opts.get('twice'))
    _g1.KV_MID = bool(opts.get('kvmid', 0))
    a = A()
    a.raw(f"; @launch grid=({ID_Z+1},1,1) block=(512,1,1) lds={LDS}")
    a.raw('.amdgcn_target "amdgcn-amd-amdhsa--gfx950"')
    a.raw(".text")
    fused(a, diag, opts)
    a.raw('.section .rodata,"a"')
    a.raw(".p2align 6")
    kd(a, NAME + "_kernel", 256)
    open(out, "w").write(a.text())

def main(out, diag, opts):
    a = A()
    a.raw(f"; @launch kernel=k1_kernel grid=({ID_Z+1},1,1) block=(512,1,1) lds={LDS}")
    a.raw(f"; @launch kernel=k2_kernel grid=({ID_Z},1,1) block=(512,1,1) lds={LDS}")
    if opts.get("k3"): a.raw("; @launch kernel=k3_kernel grid=(1,1,1) block=(64,1,1) lds=0")
    a.raw('.amdgcn_target "amdgcn-amd-amdhsa--gfx950"')
    a.raw(".text")
    k1(a, diag, opts.get("nskv", 4), opts.get("nsq", 3), opts)
    k2(a, diag, opts)
    if opts.get("k3"):
        k3(a, [(0,1),(0,2),(0,3),(130,2),(130,3),(180,3),(0,4),(0,5),(0,6),(0,7),(0,8),(180,4),(180,5),(180,6),(180,8),(247,8)])
    a.raw('.section .rodata,"a"')
    a.raw(".p2align 6")
    kd(a, "k1_kernel", 256)
    a.raw(".p2align 6")
    kd(a, "k2_kernel", 256)
    if opts.get("k3"):
        a.raw(".p2align 6")
        kd(a, "k3_kernel", 256)
    open(out, "w").write(a.text())

if __name__ == "__main__":
    out = sys.argv[1]; diag = "diag" in sys.argv
    opts = {k: (int(v) if v.lstrip("-").isdigit() else ("" if v == "none" else " " + v.replace("+", " "))) for k, v in (x.split("=") for x in sys.argv[2:] if "=" in x)}
    (main if opts.get('multi') else main_fused)(out, diag, opts)
```

```python
import sys
from common import *
from g1 import *
from prep import *
from conv import *
from g2 import *
from sync import *
NAME = "concat_heads__linear_attn_block__ssm_conv_h3__prompt"
LDS = 163840

def kd(a, name, vgpr, sgpr=102, acc=None):
    a.raw(f".amdhsa_kernel {name}")
    a.raw(f"  .amdhsa_next_free_vgpr {vgpr}")
    a.raw(f"  .amdhsa_next_free_sgpr {sgpr}")
    a.raw(f"  .amdhsa_accum_offset {acc or vgpr}")
    a.raw("  .amdhsa_group_segment_fixed_size 0")
    a.raw("  .amdhsa_kernarg_size 96")
    a.raw("  .amdhsa_user_sgpr_count 2")
    a.raw("  .amdhsa_user_sgpr_kernarg_segment_ptr 1")
    a.raw("  .amdhsa_system_sgpr_workgroup_id_x 1")
    a.raw(".end_amdhsa_kernel")

def phase1_ids(a):
    a(f"s_cmp_ge_u32 s2, {ID_B}")
    a("s_cbranch_scc1 L_roleB")
    a(f"s_cmp_ge_u32 s2, {ID_Q}")
    a("s_cbranch_scc1 L_roleQ")

def k1(a, diag, nskv, nsq, opts):
    name = "k1_kernel"
    entry(a, name, ID_Z + 1)
    if opts.get("pf"):
        a("s_cmp_eq_u32 s3, 3")
        a("s_cbranch_scc0 L_k1_nopf")
        code_prefetch(a, name, f"L_{name}_exit", "k1")
        a.label("L_k1_nopf")
    stamp(a, 0, diag)
    phase1_ids(a)
    a("s_and_b32 s20, s2, 7"); a("s_lshr_b32 s21, s2, 3")
    a("s_lshr_b32 s22, s20, 1"); a("s_lshl_b32 s22, s22, 2"); a("s_and_b32 s23, s21, 3"); a("s_add_u32 s22, s22, s23")
    a("s_and_b32 s23, s20, 1"); a("s_lshl_b32 s23, s23, 2"); a("s_lshr_b32 s24, s21, 2"); a("s_add_u32 s23, s23, s24")
    g1_role(a, False, nskv, "", diag, lambda k: a("s_endpgm"))
    a.label("L_roleQ")
    a("s_and_b32 s20, s2, 7"); a(f"s_sub_u32 s21, s2, {ID_Q}"); a("s_lshr_b32 s21, s21, 3")
    a("s_lshl_b32 s22, s20, 1"); a("s_and_b32 s23, s21, 1"); a("s_add_u32 s22, s22, s23")
    a("s_lshr_b32 s23, s21, 1")
    g1_role(a, True, nsq, "", diag, lambda k: a("s_endpgm"))
    a.label("L_roleB")
    a(f"s_cmp_eq_u32 s2, {ID_Z}")
    a("s_cbranch_scc1 L_roleZ")
    a(f"s_sub_u32 s20, s2, {ID_B}")
    a("s_cmp_ge_u32 s3, 4")
    a("s_cbranch_scc1 L_k1_kernel_exit")
    prep_role(a, "", diag)
    if diag: a("s_waitcnt vmcnt(0)")
    stamp(a, 3, diag)
    a("s_endpgm")
    a.label("L_roleZ")
    z_role(a, diag)
    if opts.get("wopf", 0):
        for k in range(11):
            a(f"v_add_u32 v2, {512*k}, v0")
            a(f"s_movk_i32 s22, 5184")
            a("v_cmp_gt_u32 vcc, s22, v2")
            a("v_lshlrev_b32 v2, 7, v2")
            a("s_mov_b64 exec, vcc")
            L = a.newlabel("wopf")
            a(f"s_cbranch_execz {L}")
            a(f"global_load_dword v253, v2, s[{S_WO}:{S_WO+1}]")
            a.label(L)
            a("s_mov_b64 exec, -1")
    a.label(f"L_{name}_exit")
    a("s_endpgm")

def k2(a, diag, opts):
    name = "k2_kernel"
    entry(a, name, ID_Z)
    if opts.get("pf"):
        a("s_cmp_eq_u32 s3, 3")
        a("s_cbranch_scc0 L_k2_nopf")
        code_prefetch(a, name, f"L_{name}_exit", "k2")
        a.label("L_k2_nopf")
    stamp(a, 4, diag)
    a(f"s_cmp_ge_u32 s2, {ID_B}")
    a("s_cbranch_scc1 L_k2_conv")
    a("s_cmp_lt_u32 s2, 96")
    a("s_cbranch_scc1 L_k2_lo")
    a(f"s_cmp_lt_u32 s2, {ID_Q}")
    a(f"s_cbranch_scc1 L_{name}_exit")
    a("s_sub_u32 s20, s2, 32")
    a("s_branch L_k2_g2")
    a.label("L_k2_lo")
    a("s_mov_b32 s20, s2")
    a.label("L_k2_g2")
    g2_role(a, "", diag, None, None, opts)
    if diag: a("s_waitcnt vmcnt(0)")
    stamp(a, 8, diag)
    a("s_endpgm")
    a.label("L_k2_conv")
    a(f"s_sub_u32 s20, s2, {ID_B}")
    conv_role(a, "", diag, lambda: None)
    if diag: a("s_waitcnt vmcnt(0)")
    stamp(a, 8, diag)
    a.label(f"L_{name}_exit")
    a("s_endpgm")

def k3(a, sel):
    name = "k3_kernel"
    entry(a, name, 1)
    a("s_cmp_eq_u32 s3, 0")
    a(f"s_cbranch_scc0 L_{name}_exit")
    a(f"v_mov_b32 v2, {WS_STAMP}")
    a(f"global_load_dword v3, v2, s[{S_WS}:{S_WS+1}] sc0 sc1")
    a("v_mov_b32 v4, 0")
    for i, (wg, idx) in enumerate(sel):
        a(f"v_cmp_eq_u32 vcc, {i}, v1")
        a(f"v_mov_b32 v5, {WS_STAMP + wg*128 + idx*8}")
        a("s_nop 0")
        a("v_cndmask_b32 v4, v4, v5, vcc")
    a("v_cmp_gt_u32 vcc, 16, v1")
    a("s_and_saveexec_b64 s[20:21], vcc")
    a(f"global_load_dword v6, v4, s[{S_WS}:{S_WS+1}] sc0 sc1")
    a("s_waitcnt vmcnt(0)")
    a("v_sub_u32 v6, v6, v3")
    a("v_lshlrev_b32 v7, 2, v1")
    a(f"global_store_dword v7, v6, s[{S_DBG}:{S_DBG+1}]")
    a.label(f"L_{name}_exit")
    a("s_endpgm")

def fused(a, diag, opts):
    name = NAME + "_kernel"
    sc = {0: " sc0 sc1", 1: " sc1", 2: ""}[opts.get("sc", 1)]
    def early():
        if opts.get("pf", 1):
            a("s_cmp_eq_u32 s3, 3")
            a("s_cbranch_scc0 L_nopf")
            code_prefetch(a, name, f"L_{name}_exit", "k")
            a.label("L_nopf")
    entry(a, name, ID_Z + 1, early)
    stamp(a, 0, diag)
    if diag and opts.get("xcc"):
        a("s_getreg_b32 s96, hwreg(HW_REG_XCC_ID)")
        a("s_getreg_b32 s97, hwreg(HW_REG_HW_ID)")
        a("v_mov_b32 v250, s96"); a("v_mov_b32 v251, s97")
        a("s_lshl_b32 s98, s2, 7")
        a(f"s_add_u32 s98, s98, {WS_STAMP + 15*8}")
        a("v_mov_b32 v252, s98")
        a("s_mov_b64 exec, 1")
        a(f"global_store_dwordx2 v252, v[250:251], s[{S_WS}:{S_WS+1}]")
        a("s_mov_b64 exec, -1")
    phase1_ids(a)
    def g2_index():
        a("s_sub_u32 s20, s2, 32")
        a(f"s_cmp_ge_u32 s2, {ID_Q}")
        a("s_cselect_b32 s20, s20, s2")
        a("s_cmp_ge_u32 s20, 96")
        a("s_cselect_b32 s21, 1, 0")
        a(f"s_cmp_ge_u32 s2, {ID_Q}")
        a("s_cselect_b32 s21, 0, s21")
        a("s_cmp_eq_u32 s21, 1")
    def after_g1(q):
        def f(kind):
            L = "q" if q else "kv"
            if kind == "loader":
                a("s_barrier")
                g2_index()
                a("s_cbranch_scc1 L_%s_idle" % L)
                n1 = opts.get("dma1_q" if q else "dma1_kv", 40 if q else 72)
                g2_dma_setup(a, 4)
                g2_dma_pieces(a, 4, n1)
                if not q: a("s_barrier")
                if n1 < 72: g2_dma_pieces(a, 4, 72)
                g2_dma_zero(a, 4, 4)
                g2_addr(a, diag)
                a("s_barrier")
                a("s_waitcnt vmcnt(0)")
                a("s_branch L_A_post")
                a.label("L_%s_idle" % L)
                if not q: a("s_barrier")
                a("s_barrier")
                a("s_endpgm")
            else:
                if q: stamp(a, 14, diag)
                g2_index()
                a(f"s_cselect_b32 s65, 1, 0")
                a("s_waitcnt vmcnt(0)")
                stamp(a, 3, diag)
                if q and opts.get("qtouch", 1):
                    q_touch(a)
                a("s_barrier")
                a("s_cmp_eq_u32 s3, 0")
                a("s_cbranch_scc0 L_%s_noflag" % L)
                if q:
                    a("v_readfirstlane_b32 s66, v14")
                    a("s_cmp_lg_u32 s66, 0")
                    a("s_cbranch_scc1 L_q_dbgok")
                    wait_dbg(a)
                    a.label("L_q_dbgok")
                    a(f"s_sub_u32 s21, s2, {ID_Q - FL_Q}")
                else:
                    a(f"s_add_u32 s21, s2, {FL_KV}")
                flag_store(a, "s21")
                a.label("L_%s_noflag" % L)
                if not q:
                    a("s_cmp_eq_u32 s65, 1")
                    a(f"s_cbranch_scc1 L_{name}_exit")
                a("s_branch L_A_post")
        return f
    def pre_addr(tag):
        def f():
            g2_addr(a, diag)
        return f
    a("s_and_b32 s20, s2, 7"); a("s_lshr_b32 s21, s2, 3")
    a("s_lshr_b32 s22, s20, 1"); a("s_lshl_b32 s22, s22, 2"); a("s_and_b32 s23, s21, 3"); a("s_add_u32 s22, s22, s23")
    a("s_and_b32 s23, s20, 1"); a("s_lshl_b32 s23, s23, 2"); a("s_lshr_b32 s24, s21, 2"); a("s_add_u32 s23, s23, s24")
    g1_role(a, False, opts.get('nskv', 3), sc, diag, after_g1(False), opts.get("prio", 0), pre_addr("kv"))
    a.label("L_roleQ")
    a("s_and_b32 s20, s2, 7"); a(f"s_sub_u32 s21, s2, {ID_Q}"); a("s_lshr_b32 s21, s21, 3")
    a("s_and_b32 s23, s21, 1"); a("s_lshl_b32 s23, s23, 3"); a("s_add_u32 s22, s20, s23")
    a("s_lshr_b32 s23, s21, 1")
    g1_role(a, True, 4, sc, diag, after_g1(True), opts.get("prio", 0), pre_addr("q"))
    a.label("L_A_post")
    if opts.get("prio", 0): a("s_setprio 0")
    stamp(a, 4, diag)
    g2_ids(a)
    def wait_pq():
        a("v_min_u32 v250, 2, v1")
        a("v_lshlrev_b32 v250, 4, v250")
        a("s_lshr_b32 s66, s22, 3")
        a("s_lshl_b32 s66, s66, 3")
        a("s_and_b32 s67, s22, 7")
        a("s_add_u32 s66, s66, s67")
        a(f"s_add_u32 s66, s66, {FL_Q}")
        a("v_add_u32 v250, s66, v250")
        a("v_lshlrev_b32 v250, 6, v250")
        a(f"v_add_u32 v250, {WS_FLAG}, v250")
        poll(a, [250])
    def wait_kv():
        a("v_lshlrev_b32 v251, 6, v1")
        a(f"v_add_u32 v252, {WS_FLAG + (FL_KV+64)*64}, v251")
        a(f"v_add_u32 v251, {WS_FLAG + FL_KV*64}, v251")
        poll(a, [251, 252])
    g2_post(a, opts.get("ldsc", sc), diag, wait_kv, wait_pq, opts)
    diag_delay(a, opts.get("dlyA", 0))
    if diag: a("s_waitcnt vmcnt(0)")
    stamp(a, 8, diag)
    a("s_endpgm")
    a.label("L_roleB")
    a(f"s_cmp_eq_u32 s2, {ID_Z}")
    a("s_cbranch_scc1 L_roleZ")
    a(f"s_sub_u32 s20, s2, {ID_B}")
    mode = opts.get("dpfmode", 0)
    if opts.get("dpf", 1) and mode == 0:
        data_prefetch(a, "s20", N_B)
        if opts.get("bwait", -1) >= 0: a(f"s_waitcnt vmcnt({opts.get('bwait', 0)})")
    conv_ids(a)
    conv_dload(a)
    a("s_cmp_ge_u32 s3, 4")
    a("s_cbranch_scc1 L_B_other")
    prep_role(a, sc, diag)
    a("s_waitcnt vmcnt(0)")
    a("s_branch L_B_noprep")
    a.label("L_B_other")
    if opts.get("dpf", 1) and mode == 1:
        data_prefetch(a, "s20", N_B, 256, 256)
        a("s_waitcnt vmcnt(0)")
    conv_filters(a)
    a("s_cmp_eq_u32 s3, 7")
    a("s_cbranch_scc0 L_B_noprep")
    wait_dbg(a)
    a.label("L_B_noprep")
    stamp(a, 3, diag)
    a("s_barrier")
    a("s_cmp_eq_u32 s3, 7")
    a("s_cbranch_scc0 L_B_geom")
    flag_store(a, "s20")
    a.label("L_B_geom")
    conv_geom(a, diag)
    a("s_cmp_eq_u32 s3, 7")
    a("s_cbranch_scc0 L_B_wait")
    a("s_lshr_b32 s66, s21, 3")
    a("s_lshl_b32 s66, s66, 3")
    a("v_and_b32 v248, 7, v1")
    a("v_add_u32 v248, s66, v248")
    a("v_lshlrev_b32 v248, 6, v248")
    a(f"v_add_u32 v248, {WS_FLAG + FL_PREP*64}, v248")
    poll(a, [248])
    a.label("L_B_wait")
    a("s_barrier")
    stamp(a, 4, diag)
    conv_post(a, sc, diag, lambda: None, opts.get("osc_b", ""))
    diag_delay(a, opts.get("dlyB", 0))
    if diag: a("s_waitcnt vmcnt(0)")
    stamp(a, 8, diag)
    a("s_endpgm")
    a.label("L_roleZ")
    z_role(a, diag)
    if opts.get("wopf", 0):
        for k in range(11):
            a(f"v_add_u32 v2, {512*k}, v0")
            a(f"s_movk_i32 s22, 5184")
            a("v_cmp_gt_u32 vcc, s22, v2")
            a("v_lshlrev_b32 v2, 7, v2")
            a("s_mov_b64 exec, vcc")
            L = a.newlabel("wopf")
            a(f"s_cbranch_execz {L}")
            a(f"global_load_dword v253, v2, s[{S_WO}:{S_WO+1}]")
            a.label(L)
            a("s_mov_b64 exec, -1")
    a.label(f"L_{name}_exit")
    a("s_endpgm")
    a.raw(".fill 1024, 4, 0xbf810000")

def main_fused(out, diag, opts):
    import g1 as _g1
    _g1.TWICE = bool(opts.get('twice'))
    _g1.KV_MID = bool(opts.get('kvmid', 0))
    a = A()
    a.raw(f"; @launch grid=({ID_Z+1},1,1) block=(512,1,1) lds={LDS}")
    a.raw('.amdgcn_target "amdgcn-amd-amdhsa--gfx950"')
    a.raw(".text")
    fused(a, diag, opts)
    a.raw('.section .rodata,"a"')
    a.raw(".p2align 6")
    kd(a, NAME + "_kernel", 256)
    open(out, "w").write(a.text())

def main(out, diag, opts):
    a = A()
    a.raw(f"; @launch kernel=k1_kernel grid=({ID_Z+1},1,1) block=(512,1,1) lds={LDS}")
    a.raw(f"; @launch kernel=k2_kernel grid=({ID_Z},1,1) block=(512,1,1) lds={LDS}")
    if opts.get("k3"): a.raw("; @launch kernel=k3_kernel grid=(1,1,1) block=(64,1,1) lds=0")
    a.raw('.amdgcn_target "amdgcn-amd-amdhsa--gfx950"')
    a.raw(".text")
    k1(a, diag, opts.get("nskv", 4), opts.get("nsq", 3), opts)
    k2(a, diag, opts)
    if opts.get("k3"):
        k3(a, [(0,1),(0,2),(0,3),(130,2),(130,3),(180,3),(0,4),(0,5),(0,6),(0,7),(0,8),(180,4),(180,5),(180,6),(180,8),(247,8)])
    a.raw('.section .rodata,"a"')
    a.raw(".p2align 6")
    kd(a, "k1_kernel", 256)
    a.raw(".p2align 6")
    kd(a, "k2_kernel", 256)
    if opts.get("k3"):
        a.raw(".p2align 6")
        kd(a, "k3_kernel", 256)
    open(out, "w").write(a.text())

if __name__ == "__main__":
    out = sys.argv[1]; diag = "diag" in sys.argv
    opts = {k: (int(v) if v.lstrip("-").isdigit() else ("" if v == "none" else " " + v.replace("+", " "))) for k, v in (x.split("=") for x in sys.argv[2:] if "=" in x)}
    (main if opts.get('multi') else main_fused)(out, diag, opts)
```

```python
from common import *

CV_HE, CV_HO, CV_U = 0, 4160, 8320
CV_WAVE = 13056
CV_Y = 8*CV_WAVE
CV_LDS = CV_Y + 8*4096

def conv_ids(a):
    a("s_and_b32 s21, s20, 7")
    a("s_mul_i32 s21, s21, 9")
    a("s_lshr_b32 s22, s20, 3")
    a("s_add_u32 s21, s21, s22")
    a("s_lshl_b32 s22, s21, 3")
    a("s_add_u32 s22, s22, s3")
    a(f"s_mul_i32 s23, s3, {CV_WAVE}")
    a("s_lshl_b32 s24, s22, 12")

CV_H = 208
HNT = [" nt"]
def conv_hload(a, H, so):
    a("v_lshlrev_b32 v2, 4, v1")
    for j in range(4):
        a(f"buffer_load_dwordx4 v[{H+8*j}:{H+8*j+3}], v2, s[16:19], {so} offen offset:{1024*j}{HNT[0]}")
        a(f"buffer_load_dword v{H+8*j+4}, v2, s[16:19], {so} offen offset:{1024*j+16}{HNT[0]}")

def conv_dload(a):
    a("s_lshr_b32 s25, s22, 1")
    a("s_lshl_b32 s25, s25, 2")
    a(f"s_load_dword s64, s[{S_D}:{S_D+1}], s25")

def conv_copies(a, H, sbase):
    a("v_lshlrev_b32 v2, 4, v1")
    a("v_mov_b32 v4, 0"); a("v_mov_b32 v5, 0"); a("v_mov_b32 v6, 0"); a("v_mov_b32 v7, 0")
    a(f"v_add_u32 v3, {sbase}, v2")
    a("s_mov_b32 exec_lo, -1"); a("s_mov_b32 exec_hi, 0")
    a(f"ds_write_b128 v3, v[4:7] offset:{CV_U+4096}")
    a("s_mov_b64 exec, 3")
    a(f"ds_write_b128 v3, v[4:7] offset:{CV_HE}")
    a(f"ds_write_b128 v3, v[4:7] offset:{CV_HO}")
    a("s_mov_b64 exec, -1")
    for j in range(4):
        h = H + 8*j
        a(f"ds_write_b128 v3, v[{h}:{h+3}] offset:{CV_HE + 32 + 1024*j}")
        t = 96 + 4*(j & 1)
        for i in range(4): a(f"v_alignbit_b32 v{t+i}, v{h+i+1}, v{h+i}, 16")
        a(f"ds_write_b128 v3, v[{t}:{t+3}] offset:{CV_HO + 32 + 1024*j}")
    a(f"v_lshlrev_b32 v4, 16, v{H}")
    a("s_mov_b64 exec, 1")
    a(f"ds_write_b32 v3, v4 offset:{CV_HO + 28}")
    a("s_mov_b64 exec, -1")

def conv_filters_load(a):
    conv_ids(a)
    srd(a, 16, S_H, S_H+1, 576*4096)
    a("s_sub_u32 s26, s24, 16384")
    conv_hload(a, 128, "s26")
    conv_hload(a, 160, "s24")

def conv_filters_build(a):
    a.c("==== conv: Toeplitz copies of the filters ====")
    conv_ids(a)
    a(f"s_sub_u32 s27, s23, {4*CV_WAVE}")
    conv_copies(a, 128, "s27")
    conv_copies(a, 160, "s23")

def conv_filters(a):
    a.c("==== conv: Toeplitz copies of the filters ====")
    conv_ids(a)
    srd(a, 16, S_H, S_H+1, 576*4096)
    a("s_sub_u32 s26, s24, 16384")
    a(f"s_sub_u32 s27, s23, {4*CV_WAVE}")
    conv_hload(a, 128, "s26")
    conv_hload(a, 160, "s24")
    a("s_waitcnt vmcnt(8)")
    conv_copies(a, 128, "s27")
    a("s_waitcnt vmcnt(0)")
    conv_copies(a, 160, "s23")
    a("s_waitcnt lgkmcnt(0)")

def conv_filters_post(a):
    a.c("==== conv: Toeplitz copies of the filters ====")
    a("s_cmp_eq_u32 s3, 7")
    a("s_cbranch_scc1 L_cf_done")
    conv_ids(a)
    srd(a, 16, S_H, S_H+1, 576*4096)
    conv_hload(a, 128, "s24")
    a("s_cmp_eq_u32 s3, 6")
    a("s_cbranch_scc0 L_cf_one")
    a("s_add_u32 s26, s24, 4096")
    a(f"s_add_u32 s27, s23, {CV_WAVE}")
    conv_hload(a, 160, "s26")
    a("s_waitcnt vmcnt(0)")
    conv_copies(a, 160, "s27")
    a.label("L_cf_one")
    a("s_waitcnt vmcnt(0)")
    conv_copies(a, 128, "s23")
    a.label("L_cf_done")

CV_QQ = 224
def conv_qearly(a):
    srd(a, 16, S_Q, S_Q+1, 2048*1152)
    a("v_mul_u32_u24 v4, 4608, v0")
    a("s_lshl_b32 s27, s21, 4")
    for row in range(4):
        a(f"buffer_load_dwordx4 v[{CV_QQ+4*row}:{CV_QQ+4*row+3}], v4, s[16:19], s27 offen offset:{1152*row} nt")

def conv_geom(a, diag):
    a.c("==== conv: geometry ====")
    conv_ids(a)
    a("s_waitcnt lgkmcnt(0)")
    a("v_lshlrev_b32 v2, 4, v1")
    a("v_add_u32 v3, s23, v2")
    a("v_and_b32 v8, 15, v1")
    a("v_lshrrev_b32 v9, 4, v1")
    a("v_lshrrev_b32 v10, 1, v9")
    a("v_and_b32 v11, 1, v9")
    a("v_lshlrev_b32 v12, 4, v10")
    a("v_lshl_add_u32 v12, v11, 3, v12")
    a("v_add_u32 v12, v12, v8")
    a("v_and_b32 v13, 1, v8")
    a("v_add_u32 v12, v12, v13")
    a("v_lshlrev_b32 v12, 1, v12")
    a("v_cmp_eq_u32 vcc, 0, v13")
    a(f"v_mov_b32 v14, {CV_HO}")
    a("v_add_u32 v12, s23, v12")
    a("v_cndmask_b32 v14, 0, v14, vcc")
    a("v_add_u32 v16, v12, v14")
    for t in range(1, 4): a(f"v_add_u32 v{16+t}, {1024*t}, v16")
    a("v_sub_u32 v20, v10, v8")
    a("v_lshlrev_b32 v20, 5, v20")
    a("v_lshl_add_u32 v20, v11, 4, v20")
    a(f"v_add_u32 v20, {CV_U + 32*127 - 3584}, v20")
    a("v_add_u32 v20, s23, v20")
    AD = 24
    a("s_waitcnt lgkmcnt(0)")
    a("s_and_b32 s25, s22, 1")
    a("s_lshl_b32 s25, s25, 4")
    a("s_lshr_b32 s26, s64, s25")
    a("s_and_b32 s26, s26, 0xffff")
    a("v_sub_u32 v4, 15, v8")
    a("v_lshrrev_b32 v5, 3, v4")
    a("v_and_b32 v4, 7, v4")
    a("v_and_b32 v6, 1, v4")
    a("v_lshlrev_b32 v6, 4, v6")
    a("v_mov_b32 v7, s26")
    a("v_lshlrev_b32 v7, v6, v7")
    a("v_lshrrev_b32 v4, 1, v4")
    a("v_cmp_eq_u32 vcc, v5, v9")
    a("s_nop 1")
    a("v_cndmask_b32 v7, 0, v7, vcc")
    for j in range(4):
        a(f"v_cmp_eq_u32 vcc, {j}, v4")
        a("s_nop 1")
        a(f"v_cndmask_b32 v{AD+j}, 0, v7, vcc")

def conv_post(a, sc, diag, wait_inputs, osc=''):
    a.c("==== conv (post): long causal convolution via Toeplitz MFMA ====")
    AD = 24
    srd(a, 12, S_WS, S_WS+1, WS_SRD_BYTES)
    wait_inputs()
    UU = 64
    for j in range(4):
        a(f"buffer_load_dwordx4 v[{UU+4*j}:{UU+4*j+3}], v2, s[12:15], s24 offen offset:{1024*j}{sc}")
    a("s_waitcnt vmcnt(0)")
    for j in range(4):
        a(f"ds_write_b128 v3, v[{UU+4*j}:{UU+4*j+3}] offset:{CV_U + 1024*j}")
    QQ = 224
    srd(a, 16, S_Q, S_Q+1, 2048*1152)
    a("v_mul_u32_u24 v4, 4608, v0")
    a("s_lshl_b32 s27, s21, 4")
    a("v_mov_b32 v21, v4")
    def qload(row):
        a(f"buffer_load_dwordx4 v[{QQ+4*row}:{QQ+4*row+3}], v21, s[16:19], s27 offen offset:{1152*row} nt")
    a("s_waitcnt lgkmcnt(0)")
    stamp(a, 5, diag)
    ACCV = 32
    SA = [64, 128]; SB = [96, 160]
    def reads(s):
        out = []
        for j in range(8):
            b = 16 + (j >> 1); o = 128*(j & 1); r = SA[s] + 4*j
            out.append(f"ds_read2_b32 v[{r}:{r+1}], v{b} offset0:{o} offset1:{o+1}")
            out.append(f"ds_read2_b32 v[{r+2}:{r+3}], v{b} offset0:{o+2} offset1:{o+3}")
        B = [f"ds_read_b128 v[{SB[s]+4*i}:{SB[s]+4*i+3}], v20 offset:{512*(7-i)}" for i in range(8)]
        seq = []
        for k in range(8):
            seq += [B[k], out[2*k], out[2*k+1]]
        return seq
    def adv():
        for t in range(4): a(f"v_add_u32 v{16+t}, 64, v{16+t}")
        a("v_add_u32 v20, 64, v20")
    for r in reads(0): a(r)
    adv()
    a("s_waitcnt lgkmcnt(0)")
    for t in range(8):
        a(f"v_mfma_f32_16x16x32_bf16 v[{ACCV+4*t}:{ACCV+4*t+3}], v[{AD}:{AD+3}], v[{SB[0]+4*t}:{SB[0]+4*t+3}], 0")
    pairs = sorted([(i, j) for i in range(8) for j in range(8) if i + j <= 7], key=lambda p: (max(p), p[0]+p[1]))
    def body(s, nxt):
        rs = reads(1 - s) if nxt else []
        k = 0
        for idx, (i, j) in enumerate(pairs):
            if k < len(rs): a(rs[k]); k += 1
            t = i + j
            a(f"v_mfma_f32_16x16x32_bf16 v[{ACCV+4*t}:{ACCV+4*t+3}], v[{SA[s]+4*j}:{SA[s]+4*j+3}], v[{SB[s]+4*i}:{SB[s]+4*i+3}], v[{ACCV+4*t}:{ACCV+4*t+3}]")
        if nxt:
            adv()
            a("s_waitcnt lgkmcnt(0)")
    def qslot(hi, last):
        L = a.newlabel("ql")
        a("s_cmp_lt_u32 s3, 4")
        a(f"s_cbranch_scc{'1' if hi else '0'} {L}")
        if last: qload(3)
        else:
            for row in range(3):
                L2 = a.newlabel("qr")
                a(f"s_cmp_eq_u32 s28, {row}")
                a(f"s_cbranch_scc0 {L2}")
                qload(row)
                a.label(L2)
        a.label(L)
    a("s_mov_b32 s28, 0")
    a.label("L_conv_loop")
    qslot(False, False)
    body(0, True)
    qslot(True, False)
    body(1, True)
    a("s_add_u32 s28, s28, 1")
    a("s_cmp_lt_u32 s28, 3")
    a("s_cbranch_scc1 L_conv_loop")
    qslot(False, True)
    body(0, True)
    qslot(True, True)
    body(1, False)
    stamp(a, 6, diag)
    a("v_lshrrev_b32 v5, 2, v8")
    a("v_xor_b32 v5, v5, v9")
    a("v_lshlrev_b32 v4, 2, v8")
    a("v_add_u32 v4, v4, v5")
    a("v_lshlrev_b32 v4, 3, v4")
    a("s_lshl_b32 s25, s3, 12")
    a(f"s_add_u32 s25, s25, {CV_Y}")
    a("v_add_u32 v4, s25, v4")
    a("v_mov_b32 v14, 0xffff0000")
    for t in range(8):
        r = ACCV + 4*t; u = 64 + 2*(t & 3)
        a(f"v_cvt_pk_bf16_f32 v{u}, v{r}, v{r+1}")
        a(f"v_cvt_pk_bf16_f32 v{u+1}, v{r+2}, v{r+3}")
        a(f"ds_write_b64 v4, v[{u}:{u+1}] offset:{512*t}")
    a("s_waitcnt lgkmcnt(0)")
    a("s_barrier")
    a("v_bfe_u32 v5, v0, 4, 2")
    a("v_xor_b32 v4, v5, v0")
    a("v_lshlrev_b32 v4, 3, v4")
    a(f"v_add_u32 v4, {CV_Y}, v4")
    Y = 64
    for ch in range(8): a(f"ds_read_b64 v[{Y+2*ch}:{Y+2*ch+1}], v4 offset:{4096*ch}")
    srd(a, 16, S_OUT, S_OUT+1, 2048*2304)
    a("v_mul_u32_u24 v5, 9216, v0")
    a("s_lshl_b32 s25, s21, 4")
    a("s_add_u32 s25, s25, 1152")
    a("s_waitcnt vmcnt(0) lgkmcnt(0)")
    for row in range(4):
        d = row >> 1; hi = row & 1
        o = 96 + 4*row
        T = 112
        for k in range(4):
            t = T + 4*(k & 1)
            q = QQ + 4*row + k
            for half in range(2):
                y = Y + 2*(2*k + half) + d
                if hi: a(f"v_and_b32 v{t+half}, v14, v{y}")
                else:  a(f"v_lshlrev_b32 v{t+half}, 16, v{y}")
            a(f"v_lshlrev_b32 v{t+2}, 16, v{q}")
            a(f"v_and_b32 v{t+3}, v14, v{q}")
            a(f"v_pk_mul_f32 v[{t}:{t+1}], v[{t}:{t+1}], v[{t+2}:{t+3}]")
            a(f"v_cvt_pk_bf16_f32 v{o+k}, v{t}, v{t+1}")
        if row == 0: a(f"buffer_store_dwordx4 v[{o}:{o+3}], v5, s[16:19], s25 offen{osc}")
        elif row == 1: a(f"buffer_store_dwordx4 v[{o}:{o+3}], v5, s[16:19], s25 offen offset:2304{osc}")
        else:
            if row == 2: a("s_add_u32 s25, s25, 4608")
            a(f"buffer_store_dwordx4 v[{o}:{o+3}], v5, s[16:19], s25 offen offset:{2304*(row-2)}{osc}")

def conv_role(a, sc, diag, wait_inputs):
    raise NotImplementedError("multi-kernel variant retired")
    conv_post(a, sc, diag, wait_inputs)
```

```python
from common import *

G2_WO = 0
G2_RS = 304
G2_GS = 64*G2_RS
G2_KVB = 4*G2_GS
G2_ZT = G2_KVB + 590*48
G2_ZZ = G2_ZT + 32*288
G2_LDS = G2_ZZ + 288

V_L15, V_G, V_T16 = 213, 214, 215
TA, OA, OB, KB0, KB1 = 200, 208, 212, 216, 220
KW = 224
ZD = 233
MA = 235
PQ = 128

def swz(a, dst, row, cu, t1, t2, block=True):
    a(f"v_lshrrev_b32 v{t1}, 3, v{row}")
    if block:
        a(f"v_mul_u32_u24 v{t2}, 3641, v{row}")
        a(f"v_lshrrev_b32 v{t2}, 19, v{t2}")
        a(f"v_add_u32 v{t1}, v{t1}, v{t2}")
    a(f"v_and_b32 v{t1}, 1, v{t1}")
    a(f"v_and_b32 v{t2}, 3, v{row}")
    a(f"v_lshl_or_b32 v{t1}, v{t1}, 2, v{t2}")
    a(f"v_lshrrev_b32 v{t2}, 1, v{cu}")
    a(f"v_xor_b32 v{t1}, v{t1}, v{t2}")
    a(f"v_lshlrev_b32 v{dst}, 7, v{row}")
    a(f"v_lshl_add_u32 v{dst}, v{t1}, 4, v{dst}")
    a(f"v_and_b32 v{t2}, 1, v{cu}")
    a(f"v_lshl_add_u32 v{dst}, v{t2}, 3, v{dst}")

def mswz(a, dst, row, cu, t1, t2, block=True):
    a(f"v_lshrrev_b32 v{t1}, 3, v{row}")
    if block:
        a(f"v_mul_u32_u24 v{t2}, 3641, v{row}")
        a(f"v_lshrrev_b32 v{t2}, 19, v{t2}")
        a(f"v_add_u32 v{t1}, v{t1}, v{t2}")
    a(f"v_and_b32 v{t1}, 1, v{t1}")
    a(f"v_bfe_u32 v{t2}, v{row}, 1, 1")
    a(f"v_lshl_or_b32 v{t1}, v{t1}, 1, v{t2}")
    a(f"v_bfe_u32 v{t2}, v{row}, 2, 1")
    a(f"v_lshl_or_b32 v{t1}, v{t1}, 1, v{t2}")
    a(f"v_and_b32 v{t2}, 1, v{row}")
    a(f"v_lshl_or_b32 v{t1}, v{t1}, 1, v{t2}")
    a(f"v_xor_b32 v{t1}, v{t1}, v{cu}")
    a(f"v_lshlrev_b32 v{dst}, 7, v{row}")
    a(f"v_lshl_add_u32 v{dst}, v{t1}, 3, v{dst}")

def g2_ids(a):
    a("s_and_b32 s22, s20, 15")
    a("s_lshr_b32 s23, s20, 4")

def g2_dma_setup(a, first_wave):
    g2_ids(a)
    srd(a, 16, S_WO, S_WO+1, 576*1152)
    a("v_lshrrev_b32 v2, 3, v1")
    a("v_and_b32 v3, 7, v1")
    a("v_and_b32 v4, 3, v2")
    a("v_xor_b32 v3, v3, v4")
    a("v_lshlrev_b32 v3, 4, v3")
    a("v_mul_u32_u24 v2, 1152, v2")
    a("v_add_u32 v2, v2, v3")
    a("s_lshl_b32 s82, s23, 7")
    a(f"s_sub_u32 s83, s3, {first_wave}")

def g2_dma_pieces(a, nwaves, limit):
    L = a.newlabel("g2wo")
    a.label(L)
    a("s_mul_i32 s26, s83, 3641")
    a("s_lshr_b32 s26, s26, 16")
    a("s_add_u32 s26, s26, s83")
    a("s_and_b32 s26, s26, 1")
    a("s_lshl_b32 s26, s26, 6")
    a("v_xor_b32 v3, s26, v2")
    a("s_lshl_b32 m0, s83, 10")
    a("s_mul_i32 s25, s83, 9216")
    a("s_add_u32 s25, s25, s82")
    a("buffer_load_dwordx4 v3, s[16:19], s25 offen lds")
    a(f"s_add_u32 s83, s83, {nwaves}")
    a(f"s_cmp_lt_u32 s83, {limit}")
    a(f"s_cbranch_scc1 {L}")

def g2_dma_zero(a, first_wave, nwaves):
    for i in range(4): a(f"v_mov_b32 v{4+i}, 0")
    a(f"v_subrev_u32 v12, {64*first_wave}, v0")
    a("v_lshlrev_b32 v13, 4, v12")
    nthr = 64*nwaves
    a("v_cmp_gt_u32 vcc, 112, v12")
    a("s_and_saveexec_b64 s[26:27], vcc")
    a(f"v_add_u32 v11, {576*128}, v13")
    a("ds_write_b128 v11, v[4:7]")
    a("s_mov_b64 exec, -1")
    a(f"v_add_u32 v11, {G2_KVB}, v13")
    n16 = (590*48 + 9504) // 16
    k = 0
    while k*nthr < n16:
        rem = n16 - k*nthr
        if rem < nthr:
            a(f"s_movk_i32 s38, {rem}")
            a("v_cmp_gt_u32 vcc, s38, v12")
            a("s_and_saveexec_b64 s[26:27], vcc")
        a(f"ds_write_b128 v11, v[4:7] offset:{k*nthr*16}")
        k += 1
    a("s_mov_b64 exec, -1")

def g2_dma(a, first_wave, nwaves):
    g2_dma_setup(a, first_wave)
    g2_dma_pieces(a, nwaves, 72)
    g2_dma_zero(a, first_wave, nwaves)

def g2_addr(a, diag):
    a.c("==== G2 (addr) ====")
    a(f"v_lshlrev_b32 v{V_T16}, 4, v0")
    a(f"v_and_b32 v{V_L15}, 15, v1")
    a(f"v_lshrrev_b32 v{V_G}, 4, v1")
    a(f"v_lshrrev_b32 v12, 2, v{V_L15}")
    a(f"v_and_b32 v13, 3, v{V_L15}")
    a("v_lshl_add_u32 v13, v12, 3, v13")
    a("v_mul_u32_u24 v13, 288, v13")
    a(f"v_add_u32 v13, {G2_ZT}, v13")
    a(f"v_add_u32 v14, {4*288}, v13")
    a(f"v_mov_b32 v15, {G2_ZZ}")
    a(f"v_cmp_eq_u32 vcc, v12, v{V_G}")
    a("s_nop 1")
    a(f"v_cndmask_b32 v{ZD}, v15, v13, vcc")
    a(f"v_cndmask_b32 v{ZD+1}, v15, v14, vcc")
    a("s_mul_i32 s24, s3, 18")
    a("v_bfe_u32 v12, v1, 2, 2")
    a("v_and_b32 v21, 3, v1")
    a(f"v_lshl_add_u32 v20, v{V_G}, 3, v12")
    a("v_add_u32 v20, s24, v20")
    for hh in range(2):
        if hh: a("v_add_u32 v20, 4, v20")
        swz(a, 23, 20, 21, 24, 25, block=False)
        for t in range(4): a(f"v_xor_b32 v{TA+4*hh+t}, {32*t}, v23")
    a(f"v_add_u32 v20, s24, v{V_L15}")
    a(f"v_mul_u32_u24 v23, {G2_RS}, v{V_L15}")
    a("s_mul_i32 s25, s3, 36")
    a("v_add_u32 v23, s25, v23")
    a(f"v_lshl_add_u32 v{OA}, v{V_G}, 3, v23")
    for ft in range(1, 4): a(f"v_add_u32 v{OA+ft}, {16*G2_RS*ft}, v{OA}")
    a(f"v_mul_u32_u24 v24, {G2_GS}, v{V_G}")
    a("v_add_u32 v24, v24, v23")
    a(f"v_add_u32 v{OB}, 32, v24")
    a(f"v_lshrrev_b32 v24, 2, v{V_L15}")
    a(f"v_and_b32 v25, 3, v{V_L15}")
    a("s_add_u32 s25, s24, 16")
    a(f"v_mul_u32_u24 v22, 48, v20")
    a(f"v_lshl_add_u32 v22, v{V_G}, 4, v22")
    a(f"v_add_u32 v22, {G2_KVB}, v22")
    a(f"v_mov_b32 v15, {G2_ZZ}")
    a(f"v_cmp_eq_u32 s[34:35], 3, v{V_G}")
    a("v_cmp_gt_u32 s[38:39], 2, v25")
    a("v_add_u32 v23, s25, v25")
    a("v_mul_u32_u24 v23, 48, v23")
    a(f"v_lshl_add_u32 v23, v{V_G}, 4, v23")
    a(f"v_add_u32 v23, {G2_KVB}, v23")
    a("s_andn2_b64 s[38:39], s[38:39], s[34:35]")
    for g in range(4):
        a(f"v_add_u32 v28, {6912*g}, v22")
        a(f"v_cndmask_b32 v{KB0+g}, v28, v15, s[34:35]")
        a(f"v_cmp_eq_u32 vcc, {g}, v24")
        a(f"v_add_u32 v28, {6912*g}, v23")
        a("s_nop 0")
        a(f"s_and_b64 s[36:37], vcc, s[38:39]")
        a(f"v_cndmask_b32 v{KB1+g}, v15, v28, s[36:37]")
    for i in range(7):
        a(f"v_add_u32 v12, {512*i}, v0")
        a("v_mul_u32_u24 v13, 10923, v12")
        a("v_lshrrev_b32 v13, 16, v13")
        a("v_mul_u32_u24 v14, 6, v13")
        a("v_sub_u32 v14, v12, v14")
        a(f"v_cmp_eq_u32 s[{68+2*i}:{69+2*i}], 5, v14")
        a("v_mul_u32_u24 v14, 3641, v13")
        a("v_lshrrev_b32 v15, 16, v14")
        a("v_lshrrev_b32 v14, 19, v14")
        a("v_mul_u32_u24 v14, 144, v14")
        a("v_sub_u32 v14, v13, v14")
        a("v_mul_u32_u24 v15, 288, v15")
        a("v_lshl_add_u32 v14, v14, 1, v15")
        a(f"v_add_u32 v14, {G2_ZT}, v14")
        a("v_lshlrev_b32 v12, 3, v12")
        a(f"v_add_u32 v12, {G2_KVB}, v12")
        a(f"v_cndmask_b32 v{KW+i}, v12, v14, s[{68+2*i}:{69+2*i}]")
    a(f"v_mul_u32_u24 v12, {G2_RS}, v{V_L15}")
    a(f"v_mul_u32_u24 v13, {G2_GS}, v{V_G}")
    a(f"v_add_u32 v{MA}, v12, v13")

def g2_post(a, sc, diag, wait_kv, wait_pq, opts={}):
    a.c("==== G2 (post): tables, den, fold, normalise, main GEMM ====")
    srd(a, 12, S_WS, S_WS+1, WS_SRD_BYTES)
    a(f"s_mov_b32 s28, s{S_WS}"); a(f"s_and_b32 s29, s{S_WS+1}, 0xffff")
    a(f"s_mov_b32 s30, {WS_KVS + KVS_BYTES}"); a("s_mov_b32 s31, 0x20000")
    a("s_lshl_b32 s25, s22, 3")
    a("s_add_u32 s25, s25, s3")
    a("s_mul_i32 s25, s25, 18432")
    a(f"s_add_u32 s25, s25, {WS_PQ}")
    a("v_lshlrev_b32 v11, 4, v1")
    pq_list = []
    for ks in range(18):
        pq_list.append((f"buffer_load_dwordx4 v[{PQ+4*ks}:{PQ+4*ks+3}], v11, s[12:15], s25 offen offset:{1024*(ks % 4)}{sc}", ks % 4 == 3))
    issued = [0]
    def pq_issue(n):
        for ins, adv in pq_list[issued[0]:issued[0]+n]:
            a(ins)
            if adv: a("s_add_u32 s25, s25, 4096")
        issued[0] = min(18, issued[0] + n)
    def pq_loads(): pq_issue(18)
    KV = 80
    def kv_loads():
        for i in range(7):
            a(f"s_mov_b32 s26, {WS_KVS + i*8192}")
            a(f"buffer_load_dwordx4 v[{KV+4*i}:{KV+4*i+3}], v{V_T16}, s[28:31], s26 offen{sc}")
    def tables(per_step):
        for i in range(7):
            k = KV + 4*i
            a(f"s_waitcnt vmcnt({issued[0] + 6 - i})")
            a(f"v_cvt_pk_bf16_f32 v{k}, v{k}, v{k+1}")
            a(f"v_cvt_pk_bf16_f32 v{k+1}, v{k+2}, v{k+3}")
            if i == 6:
                a("s_movk_i32 s38, 384")
                a("v_cmp_gt_u32 vcc, s38, v0")
                a("s_nop 0")
                a(f"s_and_b64 s[26:27], vcc, s[{68+2*i}:{69+2*i}]")
                a(f"s_andn2_b64 exec, vcc, s[{68+2*i}:{69+2*i}]")
                a(f"ds_write_b64 v{KW+i}, v[{k}:{k+1}]")
                a("s_mov_b64 exec, s[26:27]")
            else:
                a(f"s_andn2_b64 exec, -1, s[{68+2*i}:{69+2*i}]")
                a(f"ds_write_b64 v{KW+i}, v[{k}:{k+1}]")
                a(f"s_mov_b64 exec, s[{68+2*i}:{69+2*i}]")
            a(f"ds_write_b16 v{KW+i}, v{k}")
            a("s_mov_b64 exec, -1")
            pq_issue(per_step)
    AF4 = [16, 32, 48, 64]
    a("s_waitcnt lgkmcnt(0)")
    a("s_barrier")
    n = 0
    for g in range(4):
        for ft in range(4):
            t = ft ^ (2*(g & 1))
            for hh in range(2):
                r = AF4[g] + 4*ft + 2*hh
                a(f"ds_read_b64_tr_b16 v[{r}:{r+1}], v{TA+4*hh+t} offset:{18432*g}")
                n += 1
                if n % 12 == 0: a("s_waitcnt lgkmcnt(4)")
    early = opts.get("pq_early", 8) if wait_pq is not None else 0
    if wait_pq is not None:
        a("s_cmp_eq_u32 s3, 0")
        a("s_cbranch_scc0 L_g2_nopoll1")
        wait_pq()
        a.label("L_g2_nopoll1")
        a("s_barrier")
        a("s_cmp_eq_u32 s3, 0")
        a("s_cbranch_scc1 L_g2_poll2")
        a("s_mov_b32 s91, s25")
        for ins, adv in pq_list[:early]:
            a(ins)
            if adv: a("s_add_u32 s25, s25, 4096")
        a("s_branch L_g2_nopoll2")
        a.label("L_g2_poll2")
        wait_kv()
        a.label("L_g2_nopoll2")
    a("s_waitcnt lgkmcnt(0)")
    a("s_barrier")
    stamp(a, 13, diag)
    if opts.get("touch", 0):
        a("s_cmp_lt_u32 s3, 3")
        a("s_cbranch_scc0 L_g2_notouch")
        a("s_cmp_eq_u32 s3, 2")
        a("s_cbranch_scc1 L_g2_touchkv")
        a("s_mul_i32 s26, s22, 147456")
        a("s_lshl_b32 s27, s23, 14")
        a("s_add_u32 s26, s26, s27")
        a("s_lshl_b32 s27, s3, 13")
        a("s_add_u32 s26, s26, s27")
        a(f"s_add_u32 s26, s26, {WS_PQ}")
        a("v_lshlrev_b32 v12, 7, v1")
        a(f"buffer_load_dword v253, v12, s[12:15], s26 offen{sc}")
        a("s_branch L_g2_notouch")
        a.label("L_g2_touchkv")
        a("s_lshr_b32 s26, s22, 3")
        a("s_mul_i32 s26, s26, 9")
        a("s_add_u32 s26, s26, s23")
        a("s_mul_i32 s26, s26, 3072")
        a(f"s_add_u32 s26, s26, {WS_KVS}")
        a("v_lshlrev_b32 v12, 7, v1")
        a("s_mov_b64 exec, 0xffffff")
        a(f"buffer_load_dword v253, v12, s[12:15], s26 offen{sc}")
        a("s_mov_b64 exec, -1")
        a.label("L_g2_notouch")
    kv_loads()
    pq_issue(opts.get("pq0", 0))
    tables(opts.get("pq1", 0))
    if opts.get("allwait"): a("s_waitcnt vmcnt(0)")
    a("s_waitcnt lgkmcnt(0)")
    a("s_barrier")
    stamp(a, 5, diag)
    if opts.get("delay5"):
        for _ in range(opts["delay5"]): a("s_sleep 8")
        stamp(a, 10, diag)
    if opts.get("twice2"):
        a("s_mov_b32 s90, 0")
        a.label("L_g2twice")
        stamp(a, 14, diag)
    def late_pq():
        if early and issued[0] == 0:
            a("s_cmp_eq_u32 s3, 0")
            a("s_cbranch_scc0 L_g2_pqrest")
            for ins, adv in pq_list[:early]:
                a(ins)
                if adv: a("s_add_u32 s25, s25, 4096")
            a.label("L_g2_pqrest")
            issued[0] = early
        pq_issue(18)
    if opts.get("late_pre", 0): late_pq()
    BF = [112, 120]; MO = 80; M1 = 96
    def fold_read_ops(g):
        s = g & 1
        return [f"ds_read_b128 v[{BF[s]}:{BF[s]+3}], v{KB0+g}", f"ds_read_b128 v[{BF[s]+4}:{BF[s]+7}], v{KB1+g}"]
    def fold_out_ops(g):
        cv, wr = [], []
        for ft in range(4):
            r = MO + 4*ft
            cv += [f"v_cvt_pk_bf16_f32 v{r}, v{r}, v{r+1}", f"v_cvt_pk_bf16_f32 v{r+1}, v{r+2}, v{r+3}"]
            wr.append(f"ds_write2_b32 v{OA+ft}, v{r}, v{r+1} offset0:0 offset1:1")
        return cv, wr
    def next_block():
        for ft in range(4): a(f"v_add_u32 v{OA+ft}, {G2_GS}, v{OA+ft}")
    for x in fold_read_ops(0): a(x)
    for g in range(4):
        s = g & 1
        a("s_waitcnt lgkmcnt(0)" if g < 2 or opts.get("fnow") else "s_waitcnt lgkmcnt(1)")
        if opts.get("fst2") and g in (0, 1): stamp(a, {0: 14, 1: 15}[g], diag)
        if opts.get("late_mid") and early:
            if g == opts.get("late_g0", 1):
                a("s_cmp_eq_u32 s3, 0")
                a("s_cbranch_scc0 L_g2_pqrest")
                for ins, adv in pq_list[:early]:
                    a(ins)
                    if adv: a("s_add_u32 s25, s25, 4096")
                a.label("L_g2_pqrest")
                issued[0] = early
            if g >= opts.get("late_g0", 1): pq_issue(opts["late_mid"])
        else: pq_issue(opts.get("pq2", 0))
        rd = fold_read_ops(g + 1) if g + 1 < 4 else []
        cv, wr = fold_out_ops(g - 1) if g else ([], [])
        A_ = AF4[g]
        m0 = [f"v_mfma_f32_16x16x32_bf16 v[{MO+4*ft}:{MO+4*ft+3}], v[{BF[s]}:{BF[s]+3}], v[{A_+4*ft}:{A_+4*ft+3}], 0" for ft in range(4)]
        m1 = []
        for ft in range(4):
            r = M1 + 4*ft
            c = f"v[{r}:{r+3}]" if g else "0"
            m1.append(f"v_mfma_f32_16x16x32_bf16 v[{r}:{r+3}], v[{BF[s]+4}:{BF[s]+7}], v[{A_+4*ft}:{A_+4*ft+3}], {c}")
        W = lambda k: a(wr[k]) if wr else None
        C = lambda k: (a(cv[2*k]), a(cv[2*k+1])) if cv else None
        a(m1[0]); a(m1[1]); C(0)
        a(m1[2]); C(1); W(0)
        a(m1[3]); C(2); W(1)
        a(m0[0]); C(3); W(2)
        for x in rd: a(x)
        a(m0[1]); W(3)
        if wr: next_block()
        a(m0[2]); a(m0[3])
    if opts.get("fst2"): stamp(a, 12, diag)
    a("s_nop 7")
    cv, wr = fold_out_ops(3)
    for k in range(4):
        a(cv[2*k]); a(cv[2*k+1])
        if k and wr: a(wr[k-1])
    if wr: a(wr[3])
    for ft in range(4):
        r = M1 + 4*ft
        a(f"v_cvt_pk_bf16_f32 v{r}, v{r}, v{r+1}")
    for ft in range(4):
        r = M1 + 4*ft
        a(f"ds_write_b32 v{OB}, v{r} offset:{16*G2_RS*ft}")
    late_pq()
    ZF = 32; DEN = 16; RD = 24
    a("s_waitcnt lgkmcnt(0)")
    order = list(range(18))
    ZF2 = {i: ZF + 4*(n % 12) for n, i in enumerate(order)}
    def zr(n):
        i = order[n]; th = i // 9
        a(f"ds_read_b128 v[{ZF2[i]}:{ZF2[i]+3}], v{ZD+th} offset:{16*i}")
    for n in range(11): zr(n)
    nst = 0
    for n in range(18):
        i = order[n]; th, k = divmod(i, 9)
        outstanding = min(18, n + 11) - n - 1
        a(f"s_waitcnt vmcnt({17 - i}) lgkmcnt({outstanding})")
        c = f"v[{DEN+4*th}:{DEN+4*th+3}]" if k else "0"
        a(f"v_mfma_f32_16x16x32_bf16 v[{DEN+4*th}:{DEN+4*th+3}], v[{ZF2[i]}:{ZF2[i]+3}], v[{PQ+4*i}:{PQ+4*i+3}], {c}")
        if n + 11 < 18: zr(n + 11)
    if not opts.get("fst2"): stamp(a, 12, diag)
    a("s_nop 7")
    for x in range(8):
        a(f"v_add_f32 v{RD+x}, {hex(EPS)}, v{DEN+x}")
    for x in range(8):
        a(f"v_rcp_f32 v{RD+x}, v{RD+x}")
    a("v_mov_b32 v14, 0xffff0000")
    def norm(ks):
        for p in range(4):
            x = (8*ks + 2*p)//18
            src = PQ + 4*ks + p; t = 32 + 2*p
            rd = RD + x
            a(f"v_lshlrev_b32 v{t}, 16, v{src}")
            a(f"v_and_b32 v{t+1}, v14, v{src}")
            if rd % 2 == 0: a(f"v_pk_mul_f32 v[{t}:{t+1}], v[{t}:{t+1}], v[{rd}:{rd+1}] op_sel_hi:[1,0]")
            else:           a(f"v_pk_mul_f32 v[{t}:{t+1}], v[{t}:{t+1}], v[{rd-1}:{rd}] op_sel:[0,1] op_sel_hi:[1,1]")
        for p in range(4):
            a(f"v_cvt_pk_bf16_f32 v{PQ+4*ks+p}, v{32+2*p}, v{32+2*p+1}")
    if not opts.get("nonorm"):
        for ks in range(18): norm(ks)
    stamp(a, 9, diag)
    a("s_waitcnt lgkmcnt(0)")
    a("s_barrier")
    stamp(a, 6, diag)
    OUT = 16; NSET = 4; MF = [64, 80, 96, 112]
    pend = []
    def mrd(ks, ft):
        s = ks % NSET
        a(f"ds_read_b128 v[{MF[s]+4*ft}:{MF[s]+4*ft+3}], v{MA} offset:{16*G2_RS*ft + 16*ks}"); pend.append((ks, ft))
    LOOK = 10
    seq = [(ks, ft) for ks in range(18) for ft in range(4)]
    for x in seq[:LOOK]: mrd(*x)
    for n, (ks, ft) in enumerate(seq):
        if ft % 2 == 0:
            last = max(i for i, t in enumerate(pend) if t == (ks, ft + 1))
            a(f"s_waitcnt lgkmcnt({len(pend)-1-last})")
            del pend[:last+1]
        s = ks % NSET
        c = f"v[{OUT+4*ft}:{OUT+4*ft+3}]" if ks else "0"
        a(f"v_mfma_f32_16x16x32_bf16 v[{OUT+4*ft}:{OUT+4*ft+3}], v[{MF[s]+4*ft}:{MF[s]+4*ft+3}], v[{PQ+4*ks}:{PQ+4*ks+3}], {c}")
        if n + LOOK < len(seq): mrd(*seq[n + LOOK])
    stamp(a, 7, diag)
    if opts.get("twice2"):
        a("s_cmp_eq_u32 s90, 0")
        a("s_cbranch_scc0 L_g2twice_done")
        stamp(a, 15, diag)
        a("s_mov_b32 s90, 1")
        a("s_barrier")
        a("s_branch L_g2twice")
        a.label("L_g2twice_done")
    srd(a, 16, S_OUT, S_OUT+1, 2048*2304)
    a("s_lshl_b32 s25, s22, 7")
    a("s_lshl_b32 s26, s3, 4")
    a("s_add_u32 s25, s25, s26")
    a("s_mul_i32 s25, s25, 2304")
    a("s_lshl_b32 s26, s23, 7")
    a("s_add_u32 s25, s25, s26")
    a(f"v_mul_u32_u24 v4, 2304, v{V_L15}")
    a(f"v_lshl_add_u32 v4, v{V_G}, 4, v4")
    for pr in range(2):
        A_ = OUT + 8*pr; B_ = A_ + 4; p = 64 + 4*pr
        a(f"v_cvt_pk_bf16_f32 v{p}, v{A_}, v{A_+1}")
        a(f"v_cvt_pk_bf16_f32 v{p+1}, v{A_+2}, v{A_+3}")
        a(f"v_cvt_pk_bf16_f32 v{p+2}, v{B_}, v{B_+1}")
        a(f"v_cvt_pk_bf16_f32 v{p+3}, v{B_+2}, v{B_+3}")
        a("s_nop 1")
        a(f"v_permlane32_swap_b32 v{p}, v{p+2}")
        a(f"v_permlane32_swap_b32 v{p+1}, v{p+3}")
        a("s_nop 1")
        a(f"v_permlane16_swap_b32 v{p}, v{p+2}")
        a(f"v_permlane16_swap_b32 v{p+1}, v{p+3}")
        a("s_nop 1")
        a(f"buffer_store_dwordx4 v[{p}:{p+3}], v4, s[16:19], s25 offen offset:{64*pr}{opts.get('osc_a', '')}")

def g2_role(a, sc, diag, wait_kv, wait_pq, opts={}):
    g2_dma(a, 0, 8)
    g2_addr(a, diag)
    g2_post(a, sc, diag, wait_kv, wait_pq, opts)
```

```python
import sys
from common import *
from g1 import *
from prep import *
from conv import *
from g2 import *
from sync import *
NAME = "concat_heads__linear_attn_block__ssm_conv_h3__prompt"
LDS = 163840

def kd(a, name, vgpr, sgpr=102, acc=None):
    a.raw(f".amdhsa_kernel {name}")
    a.raw(f"  .amdhsa_next_free_vgpr {vgpr}")
    a.raw(f"  .amdhsa_next_free_sgpr {sgpr}")
    a.raw(f"  .amdhsa_accum_offset {acc or vgpr}")
    a.raw("  .amdhsa_group_segment_fixed_size 0")
    a.raw("  .amdhsa_kernarg_size 96")
    a.raw("  .amdhsa_user_sgpr_count 2")
    a.raw("  .amdhsa_user_sgpr_kernarg_segment_ptr 1")
    a.raw("  .amdhsa_system_sgpr_workgroup_id_x 1")
    a.raw(".end_amdhsa_kernel")

def phase1_ids(a):
    a(f"s_cmp_ge_u32 s2, {ID_B}")
    a("s_cbranch_scc1 L_roleB")
    a(f"s_cmp_ge_u32 s2, {ID_Q}")
    a("s_cbranch_scc1 L_roleQ")

def k1(a, diag, nskv, nsq, opts):
    name = "k1_kernel"
    entry(a, name, ID_Z + 1)
    if opts.get("pf"):
        a("s_cmp_eq_u32 s3, 3")
        a("s_cbranch_scc0 L_k1_nopf")
        code_prefetch(a, name, f"L_{name}_exit", "k1")
        a.label("L_k1_nopf")
    stamp(a, 0, diag)
    phase1_ids(a)
    a("s_and_b32 s20, s2, 7"); a("s_lshr_b32 s21, s2, 3")
    a("s_lshr_b32 s22, s20, 1"); a("s_lshl_b32 s22, s22, 2"); a("s_and_b32 s23, s21, 3"); a("s_add_u32 s22, s22, s23")
    a("s_and_b32 s23, s20, 1"); a("s_lshl_b32 s23, s23, 2"); a("s_lshr_b32 s24, s21, 2"); a("s_add_u32 s23, s23, s24")
    g1_role(a, False, nskv, "", diag, lambda k: a("s_endpgm"))
    a.label("L_roleQ")
    a("s_and_b32 s20, s2, 7"); a(f"s_sub_u32 s21, s2, {ID_Q}"); a("s_lshr_b32 s21, s21, 3")
    a("s_lshl_b32 s22, s20, 1"); a("s_and_b32 s23, s21, 1"); a("s_add_u32 s22, s22, s23")
    a("s_lshr_b32 s23, s21, 1")
    g1_role(a, True, nsq, "", diag, lambda k: a("s_endpgm"))
    a.label("L_roleB")
    a(f"s_cmp_eq_u32 s2, {ID_Z}")
    a("s_cbranch_scc1 L_roleZ")
    a(f"s_sub_u32 s20, s2, {ID_B}")
    a("s_cmp_ge_u32 s3, 4")
    a("s_cbranch_scc1 L_k1_kernel_exit")
    prep_role(a, "", diag)
    if diag: a("s_waitcnt vmcnt(0)")
    stamp(a, 3, diag)
    a("s_endpgm")
    a.label("L_roleZ")
    z_role(a, diag)
    if opts.get("wopf", 0):
        for k in range(11):
            a(f"v_add_u32 v2, {512*k}, v0")
            a(f"s_movk_i32 s22, 5184")
            a("v_cmp_gt_u32 vcc, s22, v2")
            a("v_lshlrev_b32 v2, 7, v2")
            a("s_mov_b64 exec, vcc")
            L = a.newlabel("wopf")
            a(f"s_cbranch_execz {L}")
            a(f"global_load_dword v253, v2, s[{S_WO}:{S_WO+1}]")
            a.label(L)
            a("s_mov_b64 exec, -1")
    a.label(f"L_{name}_exit")
    a("s_endpgm")

def k2(a, diag, opts):
    name = "k2_kernel"
    entry(a, name, ID_Z)
    if opts.get("pf"):
        a("s_cmp_eq_u32 s3, 3")
        a("s_cbranch_scc0 L_k2_nopf")
        code_prefetch(a, name, f"L_{name}_exit", "k2")
        a.label("L_k2_nopf")
    stamp(a, 4, diag)
    a(f"s_cmp_ge_u32 s2, {ID_B}")
    a("s_cbranch_scc1 L_k2_conv")
    a("s_cmp_lt_u32 s2, 96")
    a("s_cbranch_scc1 L_k2_lo")
    a(f"s_cmp_lt_u32 s2, {ID_Q}")
    a(f"s_cbranch_scc1 L_{name}_exit")
    a("s_sub_u32 s20, s2, 32")
    a("s_branch L_k2_g2")
    a.label("L_k2_lo")
    a("s_mov_b32 s20, s2")
    a.label("L_k2_g2")
    g2_role(a, "", diag, None, None, opts)
    if diag: a("s_waitcnt vmcnt(0)")
    stamp(a, 8, diag)
    a("s_endpgm")
    a.label("L_k2_conv")
    a(f"s_sub_u32 s20, s2, {ID_B}")
    conv_role(a, "", diag, lambda: None)
    if diag: a("s_waitcnt vmcnt(0)")
    stamp(a, 8, diag)
    a.label(f"L_{name}_exit")
    a("s_endpgm")

def k3(a, sel):
    name = "k3_kernel"
    entry(a, name, 1)
    a("s_cmp_eq_u32 s3, 0")
    a(f"s_cbranch_scc0 L_{name}_exit")
    a(f"v_mov_b32 v2, {WS_STAMP}")
    a(f"global_load_dword v3, v2, s[{S_WS}:{S_WS+1}] sc0 sc1")
    a("v_mov_b32 v4, 0")
    for i, (wg, idx) in enumerate(sel):
        a(f"v_cmp_eq_u32 vcc, {i}, v1")
        a(f"v_mov_b32 v5, {WS_STAMP + wg*128 + idx*8}")
        a("s_nop 0")
        a("v_cndmask_b32 v4, v4, v5, vcc")
    a("v_cmp_gt_u32 vcc, 16, v1")
    a("s_and_saveexec_b64 s[20:21], vcc")
    a(f"global_load_dword v6, v4, s[{S_WS}:{S_WS+1}] sc0 sc1")
    a("s_waitcnt vmcnt(0)")
    a("v_sub_u32 v6, v6, v3")
    a("v_lshlrev_b32 v7, 2, v1")
    a(f"global_store_dword v7, v6, s[{S_DBG}:{S_DBG+1}]")
    a.label(f"L_{name}_exit")
    a("s_endpgm")

def fused(a, diag, opts):
    name = NAME + "_kernel"
    sc = {0: " sc0 sc1", 1: " sc1", 2: ""}[opts.get("sc", 1)]
    def early():
        if opts.get("pf", 1):
            a("s_cmp_eq_u32 s3, 3")
            a("s_cbranch_scc0 L_nopf")
            code_prefetch(a, name, f"L_{name}_exit", "k")
            a.label("L_nopf")
    entry(a, name, ID_Z + 1, early)
    stamp(a, 0, diag)
    if diag and opts.get("xcc"):
        a("s_getreg_b32 s96, hwreg(HW_REG_XCC_ID)")
        a("s_getreg_b32 s97, hwreg(HW_REG_HW_ID)")
        a("v_mov_b32 v250, s96"); a("v_mov_b32 v251, s97")
        a("s_lshl_b32 s98, s2, 7")
        a(f"s_add_u32 s98, s98, {WS_STAMP + 15*8}")
        a("v_mov_b32 v252, s98")
        a("s_mov_b64 exec, 1")
        a(f"global_store_dwordx2 v252, v[250:251], s[{S_WS}:{S_WS+1}]")
        a("s_mov_b64 exec, -1")
    phase1_ids(a)
    def g2_index():
        a("s_sub_u32 s20, s2, 32")
        a(f"s_cmp_ge_u32 s2, {ID_Q}")
        a("s_cselect_b32 s20, s20, s2")
        a("s_cmp_ge_u32 s20, 96")
        a("s_cselect_b32 s21, 1, 0")
        a(f"s_cmp_ge_u32 s2, {ID_Q}")
        a("s_cselect_b32 s21, 0, s21")
        a("s_cmp_eq_u32 s21, 1")
    def after_g1(q):
        def f(kind):
            L = "q" if q else "kv"
            if kind == "loader":
                a("s_barrier")
                g2_index()
                a("s_cbranch_scc1 L_%s_idle" % L)
                n1 = opts.get("dma1_q" if q else "dma1_kv", 40 if q else 72)
                g2_dma_setup(a, 4)
                g2_dma_pieces(a, 4, n1)
                if not q: a("s_barrier")
                if n1 < 72: g2_dma_pieces(a, 4, 72)
                g2_dma_zero(a, 4, 4)
                g2_addr(a, diag)
                a("s_barrier")
                a("s_waitcnt vmcnt(0)")
                a("s_branch L_A_post")
                a.label("L_%s_idle" % L)
                if not q: a("s_barrier")
                a("s_barrier")
                a("s_endpgm")
            else:
                if q: stamp(a, 14, diag)
                g2_index()
                a(f"s_cselect_b32 s65, 1, 0")
                a("s_waitcnt vmcnt(0)")
                stamp(a, 3, diag)
                if q and opts.get("qtouch", 1):
                    q_touch(a)
                a("s_barrier")
                a("s_cmp_eq_u32 s3, 0")
                a("s_cbranch_scc0 L_%s_noflag" % L)
                if q:
                    a("v_readfirstlane_b32 s66, v14")
                    a("s_cmp_lg_u32 s66, 0")
                    a("s_cbranch_scc1 L_q_dbgok")
                    wait_dbg(a)
                    a.label("L_q_dbgok")
                    a(f"s_sub_u32 s21, s2, {ID_Q - FL_Q}")
                else:
                    a(f"s_add_u32 s21, s2, {FL_KV}")
                flag_store(a, "s21")
                a.label("L_%s_noflag" % L)
                if not q:
                    a("s_cmp_eq_u32 s65, 1")
                    a(f"s_cbranch_scc1 L_{name}_exit")
                a("s_branch L_A_post")
        return f
    def pre_addr(tag):
        def f():
            g2_addr(a, diag)
        return f
    a("s_and_b32 s20, s2, 7"); a("s_lshr_b32 s21, s2, 3")
    a("s_lshr_b32 s22, s20, 1"); a("s_lshl_b32 s22, s22, 2"); a("s_and_b32 s23, s21, 3"); a("s_add_u32 s22, s22, s23")
    a("s_and_b32 s23, s20, 1"); a("s_lshl_b32 s23, s23, 2"); a("s_lshr_b32 s24, s21, 2"); a("s_add_u32 s23, s23, s24")
    g1_role(a, False, opts.get('nskv', 3), sc, diag, after_g1(False), opts.get("prio", 0), pre_addr("kv"))
    a.label("L_roleQ")
    a("s_and_b32 s20, s2, 7"); a(f"s_sub_u32 s21, s2, {ID_Q}"); a("s_lshr_b32 s21, s21, 3")
    a("s_and_b32 s23, s21, 1"); a("s_lshl_b32 s23, s23, 3"); a("s_add_u32 s22, s20, s23")
    a("s_lshr_b32 s23, s21, 1")
    g1_role(a, True, 4, sc, diag, after_g1(True), opts.get("prio", 0), pre_addr("q"))
    a.label("L_A_post")
    if opts.get("prio", 0): a("s_setprio 0")
    stamp(a, 4, diag)
    g2_ids(a)
    def wait_pq():
        a("v_min_u32 v250, 2, v1")
        a("v_lshlrev_b32 v250, 4, v250")
        a("s_lshr_b32 s66, s22, 3")
        a("s_lshl_b32 s66, s66, 3")
        a("s_and_b32 s67, s22, 7")
        a("s_add_u32 s66, s66, s67")
        a(f"s_add_u32 s66, s66, {FL_Q}")
        a("v_add_u32 v250, s66, v250")
        a("v_lshlrev_b32 v250, 6, v250")
        a(f"v_add_u32 v250, {WS_FLAG}, v250")
        poll(a, [250])
    def wait_kv():
        a("v_lshlrev_b32 v251, 6, v1")
        a(f"v_add_u32 v252, {WS_FLAG + (FL_KV+64)*64}, v251")
        a(f"v_add_u32 v251, {WS_FLAG + FL_KV*64}, v251")
        poll(a, [251, 252])
    g2_post(a, opts.get("ldsc", sc), diag, wait_kv, wait_pq, opts)
    diag_delay(a, opts.get("dlyA", 0))
    if diag: a("s_waitcnt vmcnt(0)")
    stamp(a, 8, diag)
    a("s_endpgm")
    a.label("L_roleB")
    a(f"s_cmp_eq_u32 s2, {ID_Z}")
    a("s_cbranch_scc1 L_roleZ")
    a(f"s_sub_u32 s20, s2, {ID_B}")
    mode = opts.get("dpfmode", 0)
    if opts.get("bpre"):
        conv_ids(a)
        conv_dload(a)
        a("s_waitcnt lgkmcnt(0)")
    if opts.get("dpf", 1) and mode == 0:
        data_prefetch(a, "s20", N_B, with_wo=not opts.get("hlate", 1))
        if opts.get("bwait", -1) >= 0: a(f"s_waitcnt vmcnt({opts.get('bwait', 0)})")
    conv_ids(a)
    conv_dload(a)
    a("s_cmp_ge_u32 s3, 4")
    a("s_cbranch_scc1 L_B_other")
    prep_role(a, sc, diag, bool(opts.get("hbar", 0)))
    a("s_waitcnt vmcnt(0)")
    a("s_branch L_B_noprep")
    a.label("L_B_other")
    if opts.get("dpf", 1) and mode == 1:
        data_prefetch(a, "s20", N_B, 256, 256)
        a("s_waitcnt vmcnt(0)")
    if opts.get("hlate", 1) and mode == 0:
        a("s_waitcnt vmcnt(0)")
        a("s_mul_i32 s21, s20, 72")
        a("v_subrev_u32 v4, 256, v0")
        a("v_cmp_gt_u32 s[26:27], 72, v4") if False else None
        a("s_movk_i32 s22, 72")
        a("v_cmp_gt_u32 vcc, s22, v4")
        a("v_add_u32 v2, s21, v4")
        a("v_lshlrev_b32 v2, 7, v2")
        a("s_and_saveexec_b64 s[22:23], vcc")
        a("s_cbranch_execz L_B_nowo")
        a(f"global_load_dword v255, v2, s[{S_WO}:{S_WO+1}]")
        a.label("L_B_nowo")
        a("s_mov_b64 exec, -1")
        if opts.get("htouch"):
            conv_ids(a)
            a("s_sub_u32 s26, s22, s3")
            a("s_sub_u32 s27, s3, 4")
            a("s_lshl_b32 s27, s27, 1")
            a("s_add_u32 s26, s26, s27")
            a("s_lshl_b32 s26, s26, 12")
            a("v_lshlrev_b32 v2, 7, v1")
            a("v_add_u32 v2, s26, v2")
            a(f"global_load_dword v254, v2, s[{S_H}:{S_H+1}]")
    if opts.get("hbar", 0): a("s_barrier")
    if opts.get("hsplit", 1):
        conv_filters_load(a)
        a("s_waitcnt vmcnt(0)")
    elif not opts.get("hpost", 0): conv_filters(a)
    a("s_cmp_eq_u32 s3, 7")
    a("s_cbranch_scc0 L_B_noprep")
    wait_dbg(a)
    a.label("L_B_noprep")
    stamp(a, 3, diag)
    a("s_barrier")
    a("s_cmp_eq_u32 s3, 7")
    a("s_cbranch_scc0 L_B_geom")
    flag_store(a, "s20")
    a.label("L_B_geom")
    if opts.get("hsplit", 1):
        a("s_cmp_ge_u32 s3, 4")
        a("s_cbranch_scc0 L_B_nobuild")
        conv_filters_build(a)
        a.label("L_B_nobuild")
    if opts.get("hpost", 0):
        conv_filters_post(a)
    conv_geom(a, diag)
    a("s_cmp_eq_u32 s3, 7")
    a("s_cbranch_scc0 L_B_wait")
    a("s_lshr_b32 s66, s21, 3")
    a("s_lshl_b32 s66, s66, 3")
    a("v_and_b32 v248, 7, v1")
    a("v_add_u32 v248, s66, v248")
    a("v_lshlrev_b32 v248, 6, v248")
    a(f"v_add_u32 v248, {WS_FLAG + FL_PREP*64}, v248")
    poll(a, [248])
    a.label("L_B_wait")
    a("s_barrier")
    stamp(a, 4, diag)
    conv_post(a, sc, diag, lambda: None, opts.get("osc_b", ""))
    diag_delay(a, opts.get("dlyB", 0))
    if diag: a("s_waitcnt vmcnt(0)")
    stamp(a, 8, diag)
    a("s_endpgm")
    a.label("L_roleZ")
    z_role(a, diag)
    if opts.get("wopf", 0):
        for k in range(11):
            a(f"v_add_u32 v2, {512*k}, v0")
            a(f"s_movk_i32 s22, 5184")
            a("v_cmp_gt_u32 vcc, s22, v2")
            a("v_lshlrev_b32 v2, 7, v2")
            a("s_mov_b64 exec, vcc")
            L = a.newlabel("wopf")
            a(f"s_cbranch_execz {L}")
            a(f"global_load_dword v253, v2, s[{S_WO}:{S_WO+1}]")
            a.label(L)
            a("s_mov_b64 exec, -1")
    a.label(f"L_{name}_exit")
    a("s_endpgm")
    a.raw(".fill 1024, 4, 0xbf810000")

def main_fused(out, diag, opts):
    import g1 as _g1
    import conv as _cv
    _cv.HNT[0] = '' if opts.get('htouch') else ' nt'
    _g1.TWICE = bool(opts.get('twice'))
    _g1.KV_MID = bool(opts.get('kvmid', 0))
    a = A()
    a.raw(f"; @launch grid=({ID_Z+1},1,1) block=(512,1,1) lds={LDS}")
    a.raw('.amdgcn_target "amdgcn-amd-amdhsa--gfx950"')
    a.raw(".text")
    fused(a, diag, opts)
    a.raw('.section .rodata,"a"')
    a.raw(".p2align 6")
    kd(a, NAME + "_kernel", 256)
    open(out, "w").write(a.text())

def main(out, diag, opts):
    a = A()
    a.raw(f"; @launch kernel=k1_kernel grid=({ID_Z+1},1,1) block=(512,1,1) lds={LDS}")
    a.raw(f"; @launch kernel=k2_kernel grid=({ID_Z},1,1) block=(512,1,1) lds={LDS}")
    if opts.get("k3"): a.raw("; @launch kernel=k3_kernel grid=(1,1,1) block=(64,1,1) lds=0")
    a.raw('.amdgcn_target "amdgcn-amd-amdhsa--gfx950"')
    a.raw(".text")
    k1(a, diag, opts.get("nskv", 4), opts.get("nsq", 3), opts)
    k2(a, diag, opts)
    if opts.get("k3"):
        k3(a, [(0,1),(0,2),(0,3),(130,2),(130,3),(180,3),(0,4),(0,5),(0,6),(0,7),(0,8),(180,4),(180,5),(180,6),(180,8),(247,8)])
    a.raw('.section .rodata,"a"')
    a.raw(".p2align 6")
    kd(a, "k1_kernel", 256)
    a.raw(".p2align 6")
    kd(a, "k2_kernel", 256)
    if opts.get("k3"):
        a.raw(".p2align 6")
        kd(a, "k3_kernel", 256)
    open(out, "w").write(a.text())

if __name__ == "__main__":
    out = sys.argv[1]; diag = "diag" in sys.argv
    opts = {k: (int(v) if v.lstrip("-").isdigit() else ("" if v == "none" else " " + v.replace("+", " "))) for k, v in (x.split("=") for x in sys.argv[2:] if "=" in x)}
    (main if opts.get('multi') else main_fused)(out, diag, opts)
```

```python
from common import *

G2_WO = 0
G2_RS = 304
G2_GS = 64*G2_RS
G2_KVB = 4*G2_GS
G2_ZT = G2_KVB + 590*48
G2_ZZ = G2_ZT + 32*288
G2_LDS = G2_ZZ + 288

V_L15, V_G, V_T16 = 213, 214, 215
TA, OA, OB, KB0, KB1 = 200, 208, 212, 216, 220
KW = 224
ZD = 233
MA = 235
PQ = 128

def swz(a, dst, row, cu, t1, t2, block=True):
    a(f"v_lshrrev_b32 v{t1}, 3, v{row}")
    if block:
        a(f"v_mul_u32_u24 v{t2}, 3641, v{row}")
        a(f"v_lshrrev_b32 v{t2}, 19, v{t2}")
        a(f"v_add_u32 v{t1}, v{t1}, v{t2}")
    a(f"v_and_b32 v{t1}, 1, v{t1}")
    a(f"v_and_b32 v{t2}, 3, v{row}")
    a(f"v_lshl_or_b32 v{t1}, v{t1}, 2, v{t2}")
    a(f"v_lshrrev_b32 v{t2}, 1, v{cu}")
    a(f"v_xor_b32 v{t1}, v{t1}, v{t2}")
    a(f"v_lshlrev_b32 v{dst}, 7, v{row}")
    a(f"v_lshl_add_u32 v{dst}, v{t1}, 4, v{dst}")
    a(f"v_and_b32 v{t2}, 1, v{cu}")
    a(f"v_lshl_add_u32 v{dst}, v{t2}, 3, v{dst}")

def mswz(a, dst, row, cu, t1, t2, block=True):
    a(f"v_lshrrev_b32 v{t1}, 3, v{row}")
    if block:
        a(f"v_mul_u32_u24 v{t2}, 3641, v{row}")
        a(f"v_lshrrev_b32 v{t2}, 19, v{t2}")
        a(f"v_add_u32 v{t1}, v{t1}, v{t2}")
    a(f"v_and_b32 v{t1}, 1, v{t1}")
    a(f"v_bfe_u32 v{t2}, v{row}, 1, 1")
    a(f"v_lshl_or_b32 v{t1}, v{t1}, 1, v{t2}")
    a(f"v_bfe_u32 v{t2}, v{row}, 2, 1")
    a(f"v_lshl_or_b32 v{t1}, v{t1}, 1, v{t2}")
    a(f"v_and_b32 v{t2}, 1, v{row}")
    a(f"v_lshl_or_b32 v{t1}, v{t1}, 1, v{t2}")
    a(f"v_xor_b32 v{t1}, v{t1}, v{cu}")
    a(f"v_lshlrev_b32 v{dst}, 7, v{row}")
    a(f"v_lshl_add_u32 v{dst}, v{t1}, 3, v{dst}")

def g2_ids(a):
    a("s_and_b32 s22, s20, 15")
    a("s_lshr_b32 s23, s20, 4")

def g2_dma_setup(a, first_wave):
    g2_ids(a)
    srd(a, 16, S_WO, S_WO+1, 576*1152)
    a("v_lshrrev_b32 v2, 3, v1")
    a("v_and_b32 v3, 7, v1")
    a("v_and_b32 v4, 3, v2")
    a("v_xor_b32 v3, v3, v4")
    a("v_lshlrev_b32 v3, 4, v3")
    a("v_mul_u32_u24 v2, 1152, v2")
    a("v_add_u32 v2, v2, v3")
    a("s_lshl_b32 s82, s23, 7")
    a(f"s_sub_u32 s83, s3, {first_wave}")

def g2_dma_pieces(a, nwaves, limit):
    L = a.newlabel("g2wo")
    a.label(L)
    a("s_mul_i32 s26, s83, 3641")
    a("s_lshr_b32 s26, s26, 16")
    a("s_add_u32 s26, s26, s83")
    a("s_and_b32 s26, s26, 1")
    a("s_lshl_b32 s26, s26, 6")
    a("v_xor_b32 v3, s26, v2")
    a("s_lshl_b32 m0, s83, 10")
    a("s_mul_i32 s25, s83, 9216")
    a("s_add_u32 s25, s25, s82")
    a("buffer_load_dwordx4 v3, s[16:19], s25 offen lds")
    a(f"s_add_u32 s83, s83, {nwaves}")
    a(f"s_cmp_lt_u32 s83, {limit}")
    a(f"s_cbranch_scc1 {L}")

def g2_dma_zero(a, first_wave, nwaves):
    for i in range(4): a(f"v_mov_b32 v{4+i}, 0")
    a(f"v_subrev_u32 v12, {64*first_wave}, v0")
    a("v_lshlrev_b32 v13, 4, v12")
    nthr = 64*nwaves
    a("v_cmp_gt_u32 vcc, 112, v12")
    a("s_and_saveexec_b64 s[26:27], vcc")
    a(f"v_add_u32 v11, {576*128}, v13")
    a("ds_write_b128 v11, v[4:7]")
    a("s_mov_b64 exec, -1")
    a(f"v_add_u32 v11, {G2_KVB}, v13")
    n16 = (590*48 + 9504) // 16
    k = 0
    while k*nthr < n16:
        rem = n16 - k*nthr
        if rem < nthr:
            a(f"s_movk_i32 s38, {rem}")
            a("v_cmp_gt_u32 vcc, s38, v12")
            a("s_and_saveexec_b64 s[26:27], vcc")
        a(f"ds_write_b128 v11, v[4:7] offset:{k*nthr*16}")
        k += 1
    a("s_mov_b64 exec, -1")

def g2_dma(a, first_wave, nwaves):
    g2_dma_setup(a, first_wave)
    g2_dma_pieces(a, nwaves, 72)
    g2_dma_zero(a, first_wave, nwaves)

def g2_addr(a, diag):
    a.c("==== G2 (addr) ====")
    a(f"v_lshlrev_b32 v{V_T16}, 4, v0")
    a(f"v_and_b32 v{V_L15}, 15, v1")
    a(f"v_lshrrev_b32 v{V_G}, 4, v1")
    a(f"v_lshrrev_b32 v12, 2, v{V_L15}")
    a(f"v_and_b32 v13, 3, v{V_L15}")
    a("v_lshl_add_u32 v13, v12, 3, v13")
    a("v_mul_u32_u24 v13, 288, v13")
    a(f"v_add_u32 v13, {G2_ZT}, v13")
    a(f"v_add_u32 v14, {4*288}, v13")
    a(f"v_mov_b32 v15, {G2_ZZ}")
    a(f"v_cmp_eq_u32 vcc, v12, v{V_G}")
    a("s_nop 1")
    a(f"v_cndmask_b32 v{ZD}, v15, v13, vcc")
    a(f"v_cndmask_b32 v{ZD+1}, v15, v14, vcc")
    a("s_mul_i32 s24, s3, 18")
    a("v_bfe_u32 v12, v1, 2, 2")
    a("v_and_b32 v21, 3, v1")
    a(f"v_lshl_add_u32 v20, v{V_G}, 3, v12")
    a("v_add_u32 v20, s24, v20")
    for hh in range(2):
        if hh: a("v_add_u32 v20, 4, v20")
        swz(a, 23, 20, 21, 24, 25, block=False)
        for t in range(4): a(f"v_xor_b32 v{TA+4*hh+t}, {32*t}, v23")
    a(f"v_add_u32 v20, s24, v{V_L15}")
    a(f"v_mul_u32_u24 v23, {G2_RS}, v{V_L15}")
    a("s_mul_i32 s25, s3, 36")
    a("v_add_u32 v23, s25, v23")
    a(f"v_lshl_add_u32 v{OA}, v{V_G}, 3, v23")
    for ft in range(1, 4): a(f"v_add_u32 v{OA+ft}, {16*G2_RS*ft}, v{OA}")
    a(f"v_mul_u32_u24 v24, {G2_GS}, v{V_G}")
    a("v_add_u32 v24, v24, v23")
    a(f"v_add_u32 v{OB}, 32, v24")
    a(f"v_lshrrev_b32 v24, 2, v{V_L15}")
    a(f"v_and_b32 v25, 3, v{V_L15}")
    a("s_add_u32 s25, s24, 16")
    a(f"v_mul_u32_u24 v22, 48, v20")
    a(f"v_lshl_add_u32 v22, v{V_G}, 4, v22")
    a(f"v_add_u32 v22, {G2_KVB}, v22")
    a(f"v_mov_b32 v15, {G2_ZZ}")
    a(f"v_cmp_eq_u32 s[34:35], 3, v{V_G}")
    a("v_cmp_gt_u32 s[38:39], 2, v25")
    a("v_add_u32 v23, s25, v25")
    a("v_mul_u32_u24 v23, 48, v23")
    a(f"v_lshl_add_u32 v23, v{V_G}, 4, v23")
    a(f"v_add_u32 v23, {G2_KVB}, v23")
    a("s_andn2_b64 s[38:39], s[38:39], s[34:35]")
    for g in range(4):
        a(f"v_add_u32 v28, {6912*g}, v22")
        a(f"v_cndmask_b32 v{KB0+g}, v28, v15, s[34:35]")
        a(f"v_cmp_eq_u32 vcc, {g}, v24")
        a(f"v_add_u32 v28, {6912*g}, v23")
        a("s_nop 0")
        a(f"s_and_b64 s[36:37], vcc, s[38:39]")
        a(f"v_cndmask_b32 v{KB1+g}, v15, v28, s[36:37]")
    for i in range(7):
        a(f"v_add_u32 v12, {512*i}, v0")
        a("v_mul_u32_u24 v13, 10923, v12")
        a("v_lshrrev_b32 v13, 16, v13")
        a("v_mul_u32_u24 v14, 6, v13")
        a("v_sub_u32 v14, v12, v14")
        a(f"v_cmp_eq_u32 s[{68+2*i}:{69+2*i}], 5, v14")
        a("v_mul_u32_u24 v14, 3641, v13")
        a("v_lshrrev_b32 v15, 16, v14")
        a("v_lshrrev_b32 v14, 19, v14")
        a("v_mul_u32_u24 v14, 144, v14")
        a("v_sub_u32 v14, v13, v14")
        a("v_mul_u32_u24 v15, 288, v15")
        a("v_lshl_add_u32 v14, v14, 1, v15")
        a(f"v_add_u32 v14, {G2_ZT}, v14")
        a("v_lshlrev_b32 v12, 3, v12")
        a(f"v_add_u32 v12, {G2_KVB}, v12")
        a(f"v_cndmask_b32 v{KW+i}, v12, v14, s[{68+2*i}:{69+2*i}]")
    a(f"v_mul_u32_u24 v12, {G2_RS}, v{V_L15}")
    a(f"v_mul_u32_u24 v13, {G2_GS}, v{V_G}")
    a(f"v_add_u32 v{MA}, v12, v13")

def g2_post(a, sc, diag, wait_kv, wait_pq, opts={}):
    a.c("==== G2 (post): tables, den, fold, normalise, main GEMM ====")
    srd(a, 12, S_WS, S_WS+1, WS_SRD_BYTES)
    a(f"s_mov_b32 s28, s{S_WS}"); a(f"s_and_b32 s29, s{S_WS+1}, 0xffff")
    a(f"s_mov_b32 s30, {WS_KVS + KVS_BYTES}"); a("s_mov_b32 s31, 0x20000")
    a("s_lshl_b32 s25, s22, 3")
    a("s_add_u32 s25, s25, s3")
    a("s_mul_i32 s25, s25, 18432")
    a(f"s_add_u32 s25, s25, {WS_PQ}")
    a("v_lshlrev_b32 v11, 4, v1")
    pq_list = []
    for ks in range(18):
        pq_list.append((f"buffer_load_dwordx4 v[{PQ+4*ks}:{PQ+4*ks+3}], v11, s[12:15], s25 offen offset:{1024*(ks % 4)}{sc}", ks % 4 == 3))
    issued = [0]
    def pq_issue(n):
        for ins, adv in pq_list[issued[0]:issued[0]+n]:
            a(ins)
            if adv: a("s_add_u32 s25, s25, 4096")
        issued[0] = min(18, issued[0] + n)
    def pq_loads(): pq_issue(18)
    KV = 80
    def kv_loads():
        for i in range(7):
            a(f"s_mov_b32 s26, {WS_KVS + i*8192}")
            a(f"buffer_load_dwordx4 v[{KV+4*i}:{KV+4*i+3}], v{V_T16}, s[28:31], s26 offen{sc}")
    def tables(per_step):
        for i in range(7):
            k = KV + 4*i
            a(f"s_waitcnt vmcnt({issued[0] + 6 - i})")
            a(f"v_cvt_pk_bf16_f32 v{k}, v{k}, v{k+1}")
            a(f"v_cvt_pk_bf16_f32 v{k+1}, v{k+2}, v{k+3}")
            if i == 6:
                a("s_movk_i32 s38, 384")
                a("v_cmp_gt_u32 vcc, s38, v0")
                a("s_nop 0")
                a(f"s_and_b64 s[26:27], vcc, s[{68+2*i}:{69+2*i}]")
                a(f"s_andn2_b64 exec, vcc, s[{68+2*i}:{69+2*i}]")
                a(f"ds_write_b64 v{KW+i}, v[{k}:{k+1}]")
                a("s_mov_b64 exec, s[26:27]")
            else:
                a(f"s_andn2_b64 exec, -1, s[{68+2*i}:{69+2*i}]")
                a(f"ds_write_b64 v{KW+i}, v[{k}:{k+1}]")
                a(f"s_mov_b64 exec, s[{68+2*i}:{69+2*i}]")
            a(f"ds_write_b16 v{KW+i}, v{k}")
            a("s_mov_b64 exec, -1")
            pq_issue(per_step)
    AF4 = [16, 32, 48, 64]
    a("s_waitcnt lgkmcnt(0)")
    a("s_barrier")
    n = 0
    for g in range(4):
        for ft in range(4):
            t = ft ^ (2*(g & 1))
            for hh in range(2):
                r = AF4[g] + 4*ft + 2*hh
                a(f"ds_read_b64_tr_b16 v[{r}:{r+1}], v{TA+4*hh+t} offset:{18432*g}")
                n += 1
                if n % 12 == 0: a("s_waitcnt lgkmcnt(4)")
    early = opts.get("pq_early", 8) if wait_pq is not None else 0
    if wait_pq is not None:
        a("s_cmp_eq_u32 s3, 0")
        a("s_cbranch_scc0 L_g2_nopoll1")
        wait_pq()
        a.label("L_g2_nopoll1")
        a("s_barrier")
        a("s_cmp_eq_u32 s3, 0")
        a("s_cbranch_scc1 L_g2_poll2")
        a("s_mov_b32 s91, s25")
        for ins, adv in pq_list[:early]:
            a(ins)
            if adv: a("s_add_u32 s25, s25, 4096")
        a("s_branch L_g2_nopoll2")
        a.label("L_g2_poll2")
        wait_kv()
        a.label("L_g2_nopoll2")
    a("s_waitcnt lgkmcnt(0)")
    a("s_barrier")
    stamp(a, 13, diag)
    if opts.get("touch", 0):
        a("s_cmp_lt_u32 s3, 3")
        a("s_cbranch_scc0 L_g2_notouch")
        a("s_cmp_eq_u32 s3, 2")
        a("s_cbranch_scc1 L_g2_touchkv")
        a("s_mul_i32 s26, s22, 147456")
        a("s_lshl_b32 s27, s23, 14")
        a("s_add_u32 s26, s26, s27")
        a("s_lshl_b32 s27, s3, 13")
        a("s_add_u32 s26, s26, s27")
        a(f"s_add_u32 s26, s26, {WS_PQ}")
        a("v_lshlrev_b32 v12, 7, v1")
        a(f"buffer_load_dword v253, v12, s[12:15], s26 offen{sc}")
        a("s_branch L_g2_notouch")
        a.label("L_g2_touchkv")
        a("s_lshr_b32 s26, s22, 3")
        a("s_mul_i32 s26, s26, 9")
        a("s_add_u32 s26, s26, s23")
        a("s_mul_i32 s26, s26, 3072")
        a(f"s_add_u32 s26, s26, {WS_KVS}")
        a("v_lshlrev_b32 v12, 7, v1")
        a("s_mov_b64 exec, 0xffffff")
        a(f"buffer_load_dword v253, v12, s[12:15], s26 offen{sc}")
        a("s_mov_b64 exec, -1")
        a.label("L_g2_notouch")
    kv_loads()
    pq_issue(opts.get("pq0", 0))
    tables(opts.get("pq1", 0))
    if opts.get("allwait"): a("s_waitcnt vmcnt(0)")
    a("s_waitcnt lgkmcnt(0)")
    a("s_barrier")
    stamp(a, 5, diag)
    if opts.get("delay5"):
        for _ in range(opts["delay5"]): a("s_sleep 8")
        stamp(a, 10, diag)
    if opts.get("twice2"):
        a("s_mov_b32 s90, 0")
        a.label("L_g2twice")
        stamp(a, 14, diag)
    def late_pq():
        if early and issued[0] == 0:
            a("s_cmp_eq_u32 s3, 0")
            a("s_cbranch_scc0 L_g2_pqrest")
            for ins, adv in pq_list[:early]:
                a(ins)
                if adv: a("s_add_u32 s25, s25, 4096")
            a.label("L_g2_pqrest")
            issued[0] = early
        pq_issue(18)
    if opts.get("late_pre", 0): late_pq()
    BF = [112, 120]; MO = 80; M1 = 96
    def fold_read_ops(g):
        s = g & 1
        return [f"ds_read_b128 v[{BF[s]}:{BF[s]+3}], v{KB0+g}", f"ds_read_b128 v[{BF[s]+4}:{BF[s]+7}], v{KB1+g}"]
    def fold_out_ops(g):
        cv, wr = [], []
        for ft in range(4):
            r = MO + 4*ft
            cv += [f"v_cvt_pk_bf16_f32 v{r}, v{r}, v{r+1}", f"v_cvt_pk_bf16_f32 v{r+1}, v{r+2}, v{r+3}"]
            wr.append(f"ds_write2_b32 v{OA+ft}, v{r}, v{r+1} offset0:0 offset1:1")
        return cv, wr
    def next_block():
        for ft in range(4): a(f"v_add_u32 v{OA+ft}, {G2_GS}, v{OA+ft}")
    for x in fold_read_ops(0): a(x)
    for g in range(4):
        s = g & 1
        a("s_waitcnt lgkmcnt(0)" if g < 2 or opts.get("fnow") else "s_waitcnt lgkmcnt(1)")
        if opts.get("fst2") and g in (0, 1): stamp(a, {0: 14, 1: 15}[g], diag)
        if opts.get("late_mid") and early:
            if g == opts.get("late_g0", 1):
                a("s_cmp_eq_u32 s3, 0")
                a("s_cbranch_scc0 L_g2_pqrest")
                for ins, adv in pq_list[:early]:
                    a(ins)
                    if adv: a("s_add_u32 s25, s25, 4096")
                a.label("L_g2_pqrest")
                issued[0] = early
            if g >= opts.get("late_g0", 1): pq_issue(opts["late_mid"])
        else: pq_issue(opts.get("pq2", 0))
        rd = fold_read_ops(g + 1) if g + 1 < 4 else []
        cv, wr = fold_out_ops(g - 1) if g else ([], [])
        A_ = AF4[g]
        m0 = [f"v_mfma_f32_16x16x32_bf16 v[{MO+4*ft}:{MO+4*ft+3}], v[{BF[s]}:{BF[s]+3}], v[{A_+4*ft}:{A_+4*ft+3}], 0" for ft in range(4)]
        m1 = []
        for ft in range(4):
            r = M1 + 4*ft
            c = f"v[{r}:{r+3}]" if g else "0"
            m1.append(f"v_mfma_f32_16x16x32_bf16 v[{r}:{r+3}], v[{BF[s]+4}:{BF[s]+7}], v[{A_+4*ft}:{A_+4*ft+3}], {c}")
        W = lambda k: a(wr[k]) if wr else None
        C = lambda k: (a(cv[2*k]), a(cv[2*k+1])) if cv else None
        a(m1[0]); a(m1[1]); C(0)
        a(m1[2]); C(1); W(0)
        a(m1[3]); C(2); W(1)
        a(m0[0]); C(3); W(2)
        for x in rd: a(x)
        a(m0[1]); W(3)
        if wr: next_block()
        a(m0[2]); a(m0[3])
    if opts.get("fst2"): stamp(a, 12, diag)
    a("s_nop 7")
    cv, wr = fold_out_ops(3)
    for k in range(4):
        a(cv[2*k]); a(cv[2*k+1])
        if k and wr: a(wr[k-1])
    if wr: a(wr[3])
    for ft in range(4):
        r = M1 + 4*ft
        a(f"v_cvt_pk_bf16_f32 v{r}, v{r}, v{r+1}")
    for ft in range(4):
        r = M1 + 4*ft
        a(f"ds_write_b32 v{OB}, v{r} offset:{16*G2_RS*ft}")
    late_pq()
    if opts.get("bar_early", 0):
        a("s_waitcnt lgkmcnt(0)")
        a("s_barrier")
    ZF = 32; DEN = 16; RD = 24
    a("s_waitcnt lgkmcnt(0)")
    order = list(range(18))
    ZF2 = {i: ZF + 4*(n % 12) for n, i in enumerate(order)}
    def zr(n):
        i = order[n]; th = i // 9
        a(f"ds_read_b128 v[{ZF2[i]}:{ZF2[i]+3}], v{ZD+th} offset:{16*i}")
    for n in range(11): zr(n)
    nst = 0
    for n in range(18):
        i = order[n]; th, k = divmod(i, 9)
        outstanding = min(18, n + 11) - n - 1
        a(f"s_waitcnt vmcnt({17 - i}) lgkmcnt({outstanding})")
        c = f"v[{DEN+4*th}:{DEN+4*th+3}]" if k else "0"
        a(f"v_mfma_f32_16x16x32_bf16 v[{DEN+4*th}:{DEN+4*th+3}], v[{ZF2[i]}:{ZF2[i]+3}], v[{PQ+4*i}:{PQ+4*i+3}], {c}")
        if n + 11 < 18: zr(n + 11)
    if not opts.get("fst2"): stamp(a, 12, diag)
    a("s_nop 7")
    for x in range(8):
        a(f"v_add_f32 v{RD+x}, {hex(EPS)}, v{DEN+x}")
    for x in range(8):
        a(f"v_rcp_f32 v{RD+x}, v{RD+x}")
    a("v_mov_b32 v14, 0xffff0000")
    def norm(ks):
        for p in range(4):
            x = (8*ks + 2*p)//18
            src = PQ + 4*ks + p; t = 32 + 2*p
            rd = RD + x
            a(f"v_lshlrev_b32 v{t}, 16, v{src}")
            a(f"v_and_b32 v{t+1}, v14, v{src}")
            if rd % 2 == 0: a(f"v_pk_mul_f32 v[{t}:{t+1}], v[{t}:{t+1}], v[{rd}:{rd+1}] op_sel_hi:[1,0]")
            else:           a(f"v_pk_mul_f32 v[{t}:{t+1}], v[{t}:{t+1}], v[{rd-1}:{rd}] op_sel:[0,1] op_sel_hi:[1,1]")
        for p in range(4):
            a(f"v_cvt_pk_bf16_f32 v{PQ+4*ks+p}, v{32+2*p}, v{32+2*p+1}")
    if not opts.get("nonorm"):
        for ks in range(18): norm(ks)
    stamp(a, 9, diag)
    if not opts.get("bar_early", 0):
        a("s_waitcnt lgkmcnt(0)")
        a("s_barrier")
    stamp(a, 6, diag)
    srd(a, 16, S_OUT, S_OUT+1, 2048*2304)
    a("s_lshl_b32 s25, s22, 7")
    a("s_lshl_b32 s26, s3, 4")
    a("s_add_u32 s25, s25, s26")
    a("s_mul_i32 s25, s25, 2304")
    a("s_lshl_b32 s26, s23, 7")
    a("s_add_u32 s25, s25, s26")
    a(f"v_mul_u32_u24 v12, 2304, v{V_L15}")
    a(f"v_lshl_add_u32 v12, v{V_G}, 4, v12")
    OUT = 16; NSET = 4; MF = [64, 80, 96, 112]
    pend = []
    def mrd(ks, ft):
        s = ks % NSET
        a(f"ds_read_b128 v[{MF[s]+4*ft}:{MF[s]+4*ft+3}], v{MA} offset:{16*G2_RS*ft + 16*ks}"); pend.append((ks, ft))
    LOOK = 10
    seq = [(ks, ft) for ks in range(18) for ft in range(4)]
    for x in seq[:LOOK]: mrd(*x)
    for n, (ks, ft) in enumerate(seq):
        if ft % 2 == 0:
            last = max(i for i, t in enumerate(pend) if t == (ks, ft + 1))
            a(f"s_waitcnt lgkmcnt({len(pend)-1-last})")
            del pend[:last+1]
        s = ks % NSET
        c = f"v[{OUT+4*ft}:{OUT+4*ft+3}]" if ks else "0"
        a(f"v_mfma_f32_16x16x32_bf16 v[{OUT+4*ft}:{OUT+4*ft+3}], v[{MF[s]+4*ft}:{MF[s]+4*ft+3}], v[{PQ+4*ks}:{PQ+4*ks+3}], {c}")
        if n + LOOK < len(seq): mrd(*seq[n + LOOK])
    stamp(a, 7, diag)
    if opts.get("twice2"):
        a("s_cmp_eq_u32 s90, 0")
        a("s_cbranch_scc0 L_g2twice_done")
        stamp(a, 15, diag)
        a("s_mov_b32 s90, 1")
        a("s_barrier")
        a("s_branch L_g2twice")
        a.label("L_g2twice_done")
    a("s_nop 5")
    for pr in range(2):
        A_ = OUT + 8*pr; B_ = A_ + 4; p = 64 + 4*pr
        a(f"v_cvt_pk_bf16_f32 v{p}, v{A_}, v{A_+1}")
        a(f"v_cvt_pk_bf16_f32 v{p+1}, v{A_+2}, v{A_+3}")
        a(f"v_cvt_pk_bf16_f32 v{p+2}, v{B_}, v{B_+1}")
        a(f"v_cvt_pk_bf16_f32 v{p+3}, v{B_+2}, v{B_+3}")
        a("s_nop 1")
        a(f"v_permlane32_swap_b32 v{p}, v{p+2}")
        a(f"v_permlane32_swap_b32 v{p+1}, v{p+3}")
        a("s_nop 1")
        a(f"v_permlane16_swap_b32 v{p}, v{p+2}")
        a(f"v_permlane16_swap_b32 v{p+1}, v{p+3}")
        a("s_nop 1")
        a(f"buffer_store_dwordx4 v[{p}:{p+3}], v12, s[16:19], s25 offen offset:{64*pr}{opts.get('osc_a', '')}")

def g2_role(a, sc, diag, wait_kv, wait_pq, opts={}):
    g2_dma(a, 0, 8)
    g2_addr(a, diag)
    g2_post(a, sc, diag, wait_kv, wait_pq, opts)
```

```python
import sys
from common import *
from g1 import *
from prep import *
from conv import *
from g2 import *
from sync import *
NAME = "concat_heads__linear_attn_block__ssm_conv_h3__prompt"
LDS = 163840

def kd(a, name, vgpr, sgpr=102, acc=None):
    a.raw(f".amdhsa_kernel {name}")
    a.raw(f"  .amdhsa_next_free_vgpr {vgpr}")
    a.raw(f"  .amdhsa_next_free_sgpr {sgpr}")
    a.raw(f"  .amdhsa_accum_offset {acc or vgpr}")
    a.raw("  .amdhsa_group_segment_fixed_size 0")
    a.raw("  .amdhsa_kernarg_size 96")
    a.raw("  .amdhsa_user_sgpr_count 2")
    a.raw("  .amdhsa_user_sgpr_kernarg_segment_ptr 1")
    a.raw("  .amdhsa_system_sgpr_workgroup_id_x 1")
    a.raw(".end_amdhsa_kernel")

def phase1_ids(a):
    a(f"s_cmp_ge_u32 s2, {ID_B}")
    a("s_cbranch_scc1 L_roleB")
    a(f"s_cmp_ge_u32 s2, {ID_Q}")
    a("s_cbranch_scc1 L_roleQ")

def k1(a, diag, nskv, nsq, opts):
    name = "k1_kernel"
    entry(a, name, ID_Z + 1)
    if opts.get("pf"):
        a("s_cmp_eq_u32 s3, 3")
        a("s_cbranch_scc0 L_k1_nopf")
        code_prefetch(a, name, f"L_{name}_exit", "k1")
        a.label("L_k1_nopf")
    stamp(a, 0, diag)
    phase1_ids(a)
    a("s_and_b32 s20, s2, 7"); a("s_lshr_b32 s21, s2, 3")
    a("s_lshr_b32 s22, s20, 1"); a("s_lshl_b32 s22, s22, 2"); a("s_and_b32 s23, s21, 3"); a("s_add_u32 s22, s22, s23")
    a("s_and_b32 s23, s20, 1"); a("s_lshl_b32 s23, s23, 2"); a("s_lshr_b32 s24, s21, 2"); a("s_add_u32 s23, s23, s24")
    g1_role(a, False, nskv, "", diag, lambda k: a("s_endpgm"))
    a.label("L_roleQ")
    a("s_and_b32 s20, s2, 7"); a(f"s_sub_u32 s21, s2, {ID_Q}"); a("s_lshr_b32 s21, s21, 3")
    a("s_lshl_b32 s22, s20, 1"); a("s_and_b32 s23, s21, 1"); a("s_add_u32 s22, s22, s23")
    a("s_lshr_b32 s23, s21, 1")
    g1_role(a, True, nsq, "", diag, lambda k: a("s_endpgm"))
    a.label("L_roleB")
    a(f"s_cmp_eq_u32 s2, {ID_Z}")
    a("s_cbranch_scc1 L_roleZ")
    a(f"s_sub_u32 s20, s2, {ID_B}")
    a("s_cmp_ge_u32 s3, 4")
    a("s_cbranch_scc1 L_k1_kernel_exit")
    prep_role(a, "", diag)
    if diag: a("s_waitcnt vmcnt(0)")
    stamp(a, 3, diag)
    a("s_endpgm")
    a.label("L_roleZ")
    z_role(a, diag)
    if opts.get("wopf", 0):
        for k in range(11):
            a(f"v_add_u32 v2, {512*k}, v0")
            a(f"s_movk_i32 s22, 5184")
            a("v_cmp_gt_u32 vcc, s22, v2")
            a("v_lshlrev_b32 v2, 7, v2")
            a("s_mov_b64 exec, vcc")
            L = a.newlabel("wopf")
            a(f"s_cbranch_execz {L}")
            a(f"global_load_dword v253, v2, s[{S_WO}:{S_WO+1}]")
            a.label(L)
            a("s_mov_b64 exec, -1")
    a.label(f"L_{name}_exit")
    a("s_endpgm")

def k2(a, diag, opts):
    name = "k2_kernel"
    entry(a, name, ID_Z)
    if opts.get("pf"):
        a("s_cmp_eq_u32 s3, 3")
        a("s_cbranch_scc0 L_k2_nopf")
        code_prefetch(a, name, f"L_{name}_exit", "k2")
        a.label("L_k2_nopf")
    stamp(a, 4, diag)
    a(f"s_cmp_ge_u32 s2, {ID_B}")
    a("s_cbranch_scc1 L_k2_conv")
    a("s_cmp_lt_u32 s2, 96")
    a("s_cbranch_scc1 L_k2_lo")
    a(f"s_cmp_lt_u32 s2, {ID_Q}")
    a(f"s_cbranch_scc1 L_{name}_exit")
    a("s_sub_u32 s20, s2, 32")
    a("s_branch L_k2_g2")
    a.label("L_k2_lo")
    a("s_mov_b32 s20, s2")
    a.label("L_k2_g2")
    g2_role(a, "", diag, None, None, opts)
    if diag: a("s_waitcnt vmcnt(0)")
    stamp(a, 8, diag)
    a("s_endpgm")
    a.label("L_k2_conv")
    a(f"s_sub_u32 s20, s2, {ID_B}")
    conv_role(a, "", diag, lambda: None)
    if diag: a("s_waitcnt vmcnt(0)")
    stamp(a, 8, diag)
    a.label(f"L_{name}_exit")
    a("s_endpgm")

def k3(a, sel):
    name = "k3_kernel"
    entry(a, name, 1)
    a("s_cmp_eq_u32 s3, 0")
    a(f"s_cbranch_scc0 L_{name}_exit")
    a(f"v_mov_b32 v2, {WS_STAMP}")
    a(f"global_load_dword v3, v2, s[{S_WS}:{S_WS+1}] sc0 sc1")
    a("v_mov_b32 v4, 0")
    for i, (wg, idx) in enumerate(sel):
        a(f"v_cmp_eq_u32 vcc, {i}, v1")
        a(f"v_mov_b32 v5, {WS_STAMP + wg*128 + idx*8}")
        a("s_nop 0")
        a("v_cndmask_b32 v4, v4, v5, vcc")
    a("v_cmp_gt_u32 vcc, 16, v1")
    a("s_and_saveexec_b64 s[20:21], vcc")
    a(f"global_load_dword v6, v4, s[{S_WS}:{S_WS+1}] sc0 sc1")
    a("s_waitcnt vmcnt(0)")
    a("v_sub_u32 v6, v6, v3")
    a("v_lshlrev_b32 v7, 2, v1")
    a(f"global_store_dword v7, v6, s[{S_DBG}:{S_DBG+1}]")
    a.label(f"L_{name}_exit")
    a("s_endpgm")

def fused(a, diag, opts):
    name = NAME + "_kernel"
    sc = {0: " sc0 sc1", 1: " sc1", 2: ""}[opts.get("sc", 1)]
    def early():
        if opts.get("pf", 1):
            a("s_cmp_eq_u32 s3, 3")
            a("s_cbranch_scc0 L_nopf")
            code_prefetch(a, name, f"L_{name}_exit", "k")
            a.label("L_nopf")
    entry(a, name, ID_Z + 1, early)
    stamp(a, 0, diag)
    if diag and opts.get("xcc"):
        a("s_getreg_b32 s96, hwreg(HW_REG_XCC_ID)")
        a("s_getreg_b32 s97, hwreg(HW_REG_HW_ID)")
        a("v_mov_b32 v250, s96"); a("v_mov_b32 v251, s97")
        a("s_lshl_b32 s98, s2, 7")
        a(f"s_add_u32 s98, s98, {WS_STAMP + 15*8}")
        a("v_mov_b32 v252, s98")
        a("s_mov_b64 exec, 1")
        a(f"global_store_dwordx2 v252, v[250:251], s[{S_WS}:{S_WS+1}]")
        a("s_mov_b64 exec, -1")
    phase1_ids(a)
    def g2_index():
        a("s_sub_u32 s20, s2, 32")
        a(f"s_cmp_ge_u32 s2, {ID_Q}")
        a("s_cselect_b32 s20, s20, s2")
        a("s_cmp_ge_u32 s20, 96")
        a("s_cselect_b32 s21, 1, 0")
        a(f"s_cmp_ge_u32 s2, {ID_Q}")
        a("s_cselect_b32 s21, 0, s21")
        a("s_cmp_eq_u32 s21, 1")
    def after_g1(q):
        def f(kind):
            L = "q" if q else "kv"
            if kind == "loader":
                a("s_barrier")
                g2_index()
                a("s_cbranch_scc1 L_%s_idle" % L)
                n1 = opts.get("dma1_q" if q else "dma1_kv", 40 if q else 72)
                g2_dma_setup(a, 4)
                g2_dma_pieces(a, 4, n1)
                if not q: a("s_barrier")
                if n1 < 72: g2_dma_pieces(a, 4, 72)
                g2_dma_zero(a, 4, 4)
                g2_addr(a, diag)
                a("s_barrier")
                a("s_waitcnt vmcnt(0)")
                a("s_branch L_A_post")
                a.label("L_%s_idle" % L)
                if not q: a("s_barrier")
                a("s_barrier")
                a("s_endpgm")
            else:
                if q: stamp(a, 14, diag)
                g2_index()
                a(f"s_cselect_b32 s65, 1, 0")
                a("s_waitcnt vmcnt(0)")
                stamp(a, 3, diag)
                if q and opts.get("qtouch", 1):
                    q_touch(a)
                a("s_barrier")
                a("s_cmp_eq_u32 s3, 0")
                a("s_cbranch_scc0 L_%s_noflag" % L)
                if q:
                    a("v_readfirstlane_b32 s66, v14")
                    a("s_cmp_lg_u32 s66, 0")
                    a("s_cbranch_scc1 L_q_dbgok")
                    wait_dbg(a)
                    a.label("L_q_dbgok")
                    a(f"s_sub_u32 s21, s2, {ID_Q - FL_Q}")
                else:
                    a(f"s_add_u32 s21, s2, {FL_KV}")
                flag_store(a, "s21")
                a.label("L_%s_noflag" % L)
                if not q:
                    a("s_cmp_eq_u32 s65, 1")
                    a(f"s_cbranch_scc1 L_{name}_exit")
                a("s_branch L_A_post")
        return f
    def pre_addr(tag):
        def f():
            g2_addr(a, diag)
        return f
    a("s_and_b32 s20, s2, 7"); a("s_lshr_b32 s21, s2, 3")
    a("s_lshr_b32 s22, s20, 1"); a("s_lshl_b32 s22, s22, 2"); a("s_and_b32 s23, s21, 3"); a("s_add_u32 s22, s22, s23")
    a("s_and_b32 s23, s20, 1"); a("s_lshl_b32 s23, s23, 2"); a("s_lshr_b32 s24, s21, 2"); a("s_add_u32 s23, s23, s24")
    g1_role(a, False, opts.get('nskv', 3), sc, diag, after_g1(False), opts.get("prio", 0), pre_addr("kv"))
    a.label("L_roleQ")
    a("s_and_b32 s20, s2, 7"); a(f"s_sub_u32 s21, s2, {ID_Q}"); a("s_lshr_b32 s21, s21, 3")
    a("s_and_b32 s23, s21, 1"); a("s_lshl_b32 s23, s23, 3"); a("s_add_u32 s22, s20, s23")
    a("s_lshr_b32 s23, s21, 1")
    g1_role(a, True, 4, sc, diag, after_g1(True), opts.get("prio", 0), pre_addr("q"))
    a.label("L_A_post")
    if opts.get("prio", 0): a("s_setprio 0")
    stamp(a, 4, diag)
    g2_ids(a)
    def wait_pq():
        a("v_min_u32 v250, 2, v1")
        a("v_lshlrev_b32 v250, 4, v250")
        a("s_lshr_b32 s66, s22, 3")
        a("s_lshl_b32 s66, s66, 3")
        a("s_and_b32 s67, s22, 7")
        a("s_add_u32 s66, s66, s67")
        a(f"s_add_u32 s66, s66, {FL_Q}")
        a("v_add_u32 v250, s66, v250")
        a("v_lshlrev_b32 v250, 6, v250")
        a(f"v_add_u32 v250, {WS_FLAG}, v250")
        poll(a, [250])
    def wait_kv():
        a("v_lshlrev_b32 v251, 6, v1")
        a(f"v_add_u32 v252, {WS_FLAG + (FL_KV+64)*64}, v251")
        a(f"v_add_u32 v251, {WS_FLAG + FL_KV*64}, v251")
        poll(a, [251, 252])
    g2_post(a, opts.get("ldsc", sc), diag, wait_kv, wait_pq, opts)
    diag_delay(a, opts.get("dlyA", 0))
    if diag: a("s_waitcnt vmcnt(0)")
    stamp(a, 8, diag)
    a("s_endpgm")
    a.label("L_roleB")
    a(f"s_cmp_eq_u32 s2, {ID_Z}")
    a("s_cbranch_scc1 L_roleZ")
    a(f"s_sub_u32 s20, s2, {ID_B}")
    mode = opts.get("dpfmode", 0)
    if opts.get("bpre"):
        conv_ids(a)
        conv_dload(a)
        a("s_waitcnt lgkmcnt(0)")
    if opts.get("dpf", 1) and mode == 0:
        data_prefetch(a, "s20", N_B, with_wo=not opts.get("hlate", 1))
        if opts.get("bwait", -1) >= 0: a(f"s_waitcnt vmcnt({opts.get('bwait', 0)})")
    conv_ids(a)
    conv_dload(a)
    a("s_cmp_ge_u32 s3, 4")
    a("s_cbranch_scc1 L_B_other")
    prep_role(a, sc, diag, bool(opts.get("hbar", 0)))
    a("s_waitcnt vmcnt(0)")
    a("s_branch L_B_noprep")
    a.label("L_B_other")
    if opts.get("dpf", 1) and mode == 1:
        data_prefetch(a, "s20", N_B, 256, 256)
        a("s_waitcnt vmcnt(0)")
    if opts.get("hlate", 1) and mode == 0:
        a("s_waitcnt vmcnt(0)")
        a("s_mul_i32 s21, s20, 72")
        a("v_subrev_u32 v4, 256, v0")
        a("v_cmp_gt_u32 s[26:27], 72, v4") if False else None
        a("s_movk_i32 s22, 72")
        a("v_cmp_gt_u32 vcc, s22, v4")
        a("v_add_u32 v2, s21, v4")
        a("v_lshlrev_b32 v2, 7, v2")
        a("s_and_saveexec_b64 s[22:23], vcc")
        a("s_cbranch_execz L_B_nowo")
        a(f"global_load_dword v255, v2, s[{S_WO}:{S_WO+1}]")
        a.label("L_B_nowo")
        a("s_mov_b64 exec, -1")
        if opts.get("htouch"):
            conv_ids(a)
            a("s_sub_u32 s26, s22, s3")
            a("s_sub_u32 s27, s3, 4")
            a("s_lshl_b32 s27, s27, 1")
            a("s_add_u32 s26, s26, s27")
            a("s_lshl_b32 s26, s26, 12")
            a("v_lshlrev_b32 v2, 7, v1")
            a("v_add_u32 v2, s26, v2")
            a(f"global_load_dword v254, v2, s[{S_H}:{S_H+1}]")
    if opts.get("hbar", 0): a("s_barrier")
    if opts.get("hsplit", 1):
        conv_filters_load(a)
        a("s_waitcnt vmcnt(0)")
    elif not opts.get("hpost", 0): conv_filters(a)
    a("s_cmp_eq_u32 s3, 7")
    a("s_cbranch_scc0 L_B_noprep")
    wait_dbg(a)
    a.label("L_B_noprep")
    stamp(a, 3, diag)
    a("s_barrier")
    a("s_cmp_eq_u32 s3, 7")
    a("s_cbranch_scc0 L_B_geom")
    flag_store(a, "s20")
    a.label("L_B_geom")
    if opts.get("hsplit", 1):
        a("s_cmp_ge_u32 s3, 4")
        a("s_cbranch_scc0 L_B_nobuild")
        conv_filters_build(a)
        a.label("L_B_nobuild")
    if opts.get("hpost", 0):
        conv_filters_post(a)
    conv_geom(a, diag)
    a("s_cmp_eq_u32 s3, 7")
    a("s_cbranch_scc0 L_B_wait")
    a("s_lshr_b32 s66, s21, 3")
    a("s_lshl_b32 s66, s66, 3")
    a("v_and_b32 v248, 7, v1")
    a("v_add_u32 v248, s66, v248")
    a("v_lshlrev_b32 v248, 6, v248")
    a(f"v_add_u32 v248, {WS_FLAG + FL_PREP*64}, v248")
    poll(a, [248])
    a.label("L_B_wait")
    a("s_barrier")
    stamp(a, 4, diag)
    conv_post(a, sc, diag, lambda: None, opts.get("osc_b", ""))
    diag_delay(a, opts.get("dlyB", 0))
    if diag: a("s_waitcnt vmcnt(0)")
    stamp(a, 8, diag)
    a("s_endpgm")
    a.label("L_roleZ")
    z_role(a, diag)
    if opts.get("wopf", 0):
        for k in range(11):
            a(f"v_add_u32 v2, {512*k}, v0")
            a(f"s_movk_i32 s22, 5184")
            a("v_cmp_gt_u32 vcc, s22, v2")
            a("v_lshlrev_b32 v2, 7, v2")
            a("s_mov_b64 exec, vcc")
            L = a.newlabel("wopf")
            a(f"s_cbranch_execz {L}")
            a(f"global_load_dword v253, v2, s[{S_WO}:{S_WO+1}]")
            a.label(L)
            a("s_mov_b64 exec, -1")
    a.label(f"L_{name}_exit")
    a("s_endpgm")
    a.raw(".fill 1024, 4, 0xbf810000")

HEADER = """; Kernarg layout (96 bytes, pointers only, base s[0:1]):
;
;   phase 2 of ids 0..95 and 128..175: tile 128 x 64 of out = (phi(Q) / den) @ (blockdiag(kv) @ wo)
"""

def main_fused(out, diag, opts):
    import g1 as _g1
    import conv as _cv
    _cv.OCTMAP[0] = opts.get('octmap', 0)
    _cv.HNT[0] = '' if opts.get('htouch') else ' nt'
    _g1.TWICE = bool(opts.get('twice'))
    _g1.KV_MID = bool(opts.get('kvmid', 0))
    a = A()
    a.raw(HEADER.rstrip("\n"))
    a.raw(f"; @launch grid=({ID_Z+1},1,1) block=(512,1,1) lds={LDS}")
    a.raw('.amdgcn_target "amdgcn-amd-amdhsa--gfx950"')
    a.raw(".text")
    fused(a, diag, opts)
    a.raw('.section .rodata,"a"')
    a.raw(".p2align 6")
    kd(a, NAME + "_kernel", 256)
    open(out, "w").write(a.text())

def main(out, diag, opts):
    a = A()
    a.raw(f"; @launch kernel=k1_kernel grid=({ID_Z+1},1,1) block=(512,1,1) lds={LDS}")
    a.raw(f"; @launch kernel=k2_kernel grid=({ID_Z},1,1) block=(512,1,1) lds={LDS}")
    if opts.get("k3"): a.raw("; @launch kernel=k3_kernel grid=(1,1,1) block=(64,1,1) lds=0")
    a.raw('.amdgcn_target "amdgcn-amd-amdhsa--gfx950"')
    a.raw(".text")
    k1(a, diag, opts.get("nskv", 4), opts.get("nsq", 3), opts)
    k2(a, diag, opts)
    if opts.get("k3"):
        k3(a, [(0,1),(0,2),(0,3),(130,2),(130,3),(180,3),(0,4),(0,5),(0,6),(0,7),(0,8),(180,4),(180,5),(180,6),(180,8),(247,8)])
    a.raw('.section .rodata,"a"')
    a.raw(".p2align 6")
    kd(a, "k1_kernel", 256)
    a.raw(".p2align 6")
    kd(a, "k2_kernel", 256)
    if opts.get("k3"):
        a.raw(".p2align 6")
        kd(a, "k3_kernel", 256)
    open(out, "w").write(a.text())

if __name__ == "__main__":
    out = sys.argv[1]; diag = "diag" in sys.argv
    opts = {k: (int(v) if v.lstrip("-").isdigit() else ("" if v == "none" else " " + v.replace("+", " "))) for k, v in (x.split("=") for x in sys.argv[2:] if "=" in x)}
    (main if opts.get('multi') else main_fused)(out, diag, opts)
```

```python
from common import *

CV_HE, CV_HO, CV_U = 0, 4160, 8320
CV_WAVE = 13056
CV_Y = 8*CV_WAVE
CV_LDS = CV_Y + 8*4096

OCTMAP = [0]
def conv_ids(a):
    if OCTMAP[0] == 0:
        a("s_and_b32 s21, s20, 7")
        a("s_mul_i32 s21, s21, 9")
        a("s_lshr_b32 s22, s20, 3")
        a("s_add_u32 s21, s21, s22")
    else:
        a("s_and_b32 s21, s20, 7")
        a("s_lshr_b32 s22, s20, 3")
        a("s_lshl_b32 s23, s21, 3")
        a("s_add_u32 s23, s23, s22")
        a("s_add_u32 s21, s21, 64")
        a("s_cmp_lt_u32 s22, 8")
        a("s_cselect_b32 s21, s23, s21")
    a("s_lshl_b32 s22, s21, 3")
    a("s_add_u32 s22, s22, s3")
    a(f"s_mul_i32 s23, s3, {CV_WAVE}")
    a("s_lshl_b32 s24, s22, 12")

CV_H = 208
HNT = [" nt"]
def conv_hload(a, H, so):
    a("v_lshlrev_b32 v2, 4, v1")
    for j in range(4):
        a(f"buffer_load_dwordx4 v[{H+8*j}:{H+8*j+3}], v2, s[16:19], {so} offen offset:{1024*j}{HNT[0]}")
        a(f"buffer_load_dword v{H+8*j+4}, v2, s[16:19], {so} offen offset:{1024*j+16}{HNT[0]}")

def conv_dload(a):
    a("s_lshr_b32 s25, s22, 1")
    a("s_lshl_b32 s25, s25, 2")
    a(f"s_load_dword s64, s[{S_D}:{S_D+1}], s25")

def conv_copies(a, H, sbase):
    a("v_lshlrev_b32 v2, 4, v1")
    a("v_mov_b32 v4, 0"); a("v_mov_b32 v5, 0"); a("v_mov_b32 v6, 0"); a("v_mov_b32 v7, 0")
    a(f"v_add_u32 v3, {sbase}, v2")
    a("s_mov_b32 exec_lo, -1"); a("s_mov_b32 exec_hi, 0")
    a(f"ds_write_b128 v3, v[4:7] offset:{CV_U+4096}")
    a("s_mov_b64 exec, 3")
    a(f"ds_write_b128 v3, v[4:7] offset:{CV_HE}")
    a(f"ds_write_b128 v3, v[4:7] offset:{CV_HO}")
    a("s_mov_b64 exec, -1")
    for j in range(4):
        h = H + 8*j
        a(f"ds_write_b128 v3, v[{h}:{h+3}] offset:{CV_HE + 32 + 1024*j}")
        t = 96 + 4*(j & 1)
        for i in range(4): a(f"v_alignbit_b32 v{t+i}, v{h+i+1}, v{h+i}, 16")
        a(f"ds_write_b128 v3, v[{t}:{t+3}] offset:{CV_HO + 32 + 1024*j}")
    a(f"v_lshlrev_b32 v4, 16, v{H}")
    a("s_mov_b64 exec, 1")
    a(f"ds_write_b32 v3, v4 offset:{CV_HO + 28}")
    a("s_mov_b64 exec, -1")

def conv_filters_load(a):
    conv_ids(a)
    srd(a, 16, S_H, S_H+1, 576*4096)
    a("s_sub_u32 s26, s24, 16384")
    conv_hload(a, 128, "s26")
    conv_hload(a, 160, "s24")

def conv_filters_build(a):
    a.c("==== conv: Toeplitz copies of the filters ====")
    conv_ids(a)
    a(f"s_sub_u32 s27, s23, {4*CV_WAVE}")
    conv_copies(a, 128, "s27")
    conv_copies(a, 160, "s23")

def conv_filters(a):
    a.c("==== conv: Toeplitz copies of the filters ====")
    conv_ids(a)
    srd(a, 16, S_H, S_H+1, 576*4096)
    a("s_sub_u32 s26, s24, 16384")
    a(f"s_sub_u32 s27, s23, {4*CV_WAVE}")
    conv_hload(a, 128, "s26")
    conv_hload(a, 160, "s24")
    a("s_waitcnt vmcnt(8)")
    conv_copies(a, 128, "s27")
    a("s_waitcnt vmcnt(0)")
    conv_copies(a, 160, "s23")
    a("s_waitcnt lgkmcnt(0)")

def conv_filters_post(a):
    a.c("==== conv: Toeplitz copies of the filters ====")
    a("s_cmp_eq_u32 s3, 7")
    a("s_cbranch_scc1 L_cf_done")
    conv_ids(a)
    srd(a, 16, S_H, S_H+1, 576*4096)
    conv_hload(a, 128, "s24")
    a("s_cmp_eq_u32 s3, 6")
    a("s_cbranch_scc0 L_cf_one")
    a("s_add_u32 s26, s24, 4096")
    a(f"s_add_u32 s27, s23, {CV_WAVE}")
    conv_hload(a, 160, "s26")
    a("s_waitcnt vmcnt(0)")
    conv_copies(a, 160, "s27")
    a.label("L_cf_one")
    a("s_waitcnt vmcnt(0)")
    conv_copies(a, 128, "s23")
    a.label("L_cf_done")

CV_QQ = 224
def conv_qearly(a):
    srd(a, 16, S_Q, S_Q+1, 2048*1152)
    a("v_mul_u32_u24 v4, 4608, v0")
    a("s_lshl_b32 s27, s21, 4")
    for row in range(4):
        a(f"buffer_load_dwordx4 v[{CV_QQ+4*row}:{CV_QQ+4*row+3}], v4, s[16:19], s27 offen offset:{1152*row} nt")

def conv_geom(a, diag):
    a.c("==== conv: geometry ====")
    conv_ids(a)
    a("s_waitcnt lgkmcnt(0)")
    a("v_lshlrev_b32 v2, 4, v1")
    a("v_add_u32 v3, s23, v2")
    a("v_and_b32 v8, 15, v1")
    a("v_lshrrev_b32 v9, 4, v1")
    a("v_lshrrev_b32 v10, 1, v9")
    a("v_and_b32 v11, 1, v9")
    a("v_lshlrev_b32 v12, 4, v10")
    a("v_lshl_add_u32 v12, v11, 3, v12")
    a("v_add_u32 v12, v12, v8")
    a("v_and_b32 v13, 1, v8")
    a("v_add_u32 v12, v12, v13")
    a("v_lshlrev_b32 v12, 1, v12")
    a("v_cmp_eq_u32 vcc, 0, v13")
    a(f"v_mov_b32 v14, {CV_HO}")
    a("v_add_u32 v12, s23, v12")
    a("v_cndmask_b32 v14, 0, v14, vcc")
    a("v_add_u32 v16, v12, v14")
    for t in range(1, 4): a(f"v_add_u32 v{16+t}, {1024*t}, v16")
    a("v_sub_u32 v20, v10, v8")
    a("v_lshlrev_b32 v20, 5, v20")
    a("v_lshl_add_u32 v20, v11, 4, v20")
    a(f"v_add_u32 v20, {CV_U + 32*127 - 3584}, v20")
    a("v_add_u32 v20, s23, v20")
    AD = 24
    a("s_waitcnt lgkmcnt(0)")
    a("s_and_b32 s25, s22, 1")
    a("s_lshl_b32 s25, s25, 4")
    a("s_lshr_b32 s26, s64, s25")
    a("s_and_b32 s26, s26, 0xffff")
    a("v_sub_u32 v4, 15, v8")
    a("v_lshrrev_b32 v5, 3, v4")
    a("v_and_b32 v4, 7, v4")
    a("v_and_b32 v6, 1, v4")
    a("v_lshlrev_b32 v6, 4, v6")
    a("v_mov_b32 v7, s26")
    a("v_lshlrev_b32 v7, v6, v7")
    a("v_lshrrev_b32 v4, 1, v4")
    a("v_cmp_eq_u32 vcc, v5, v9")
    a("s_nop 1")
    a("v_cndmask_b32 v7, 0, v7, vcc")
    for j in range(4):
        a(f"v_cmp_eq_u32 vcc, {j}, v4")
        a("s_nop 1")
        a(f"v_cndmask_b32 v{AD+j}, 0, v7, vcc")

def conv_post(a, sc, diag, wait_inputs, osc=''):
    a.c("==== conv (post): long causal convolution via Toeplitz MFMA ====")
    AD = 24
    srd(a, 12, S_WS, S_WS+1, WS_SRD_BYTES)
    wait_inputs()
    UU = 64
    for j in range(4):
        a(f"buffer_load_dwordx4 v[{UU+4*j}:{UU+4*j+3}], v2, s[12:15], s24 offen offset:{1024*j}{sc}")
    a("s_waitcnt vmcnt(0)")
    for j in range(4):
        a(f"ds_write_b128 v3, v[{UU+4*j}:{UU+4*j+3}] offset:{CV_U + 1024*j}")
    QQ = 224
    srd(a, 16, S_Q, S_Q+1, 2048*1152)
    a("v_mul_u32_u24 v4, 4608, v0")
    a("s_lshl_b32 s27, s21, 4")
    a("v_mov_b32 v21, v4")
    def qload(row):
        a(f"buffer_load_dwordx4 v[{QQ+4*row}:{QQ+4*row+3}], v21, s[16:19], s27 offen offset:{1152*row} nt")
    a("s_waitcnt lgkmcnt(0)")
    stamp(a, 5, diag)
    ACCV = 32
    SA = [64, 128]; SB = [96, 160]
    def reads(s):
        out = []
        for j in range(8):
            b = 16 + (j >> 1); o = 128*(j & 1); r = SA[s] + 4*j
            out.append(f"ds_read2_b32 v[{r}:{r+1}], v{b} offset0:{o} offset1:{o+1}")
            out.append(f"ds_read2_b32 v[{r+2}:{r+3}], v{b} offset0:{o+2} offset1:{o+3}")
        B = [f"ds_read_b128 v[{SB[s]+4*i}:{SB[s]+4*i+3}], v20 offset:{512*(7-i)}" for i in range(8)]
        seq = []
        for k in range(8):
            seq += [B[k], out[2*k], out[2*k+1]]
        return seq
    def adv():
        for t in range(4): a(f"v_add_u32 v{16+t}, 64, v{16+t}")
        a("v_add_u32 v20, 64, v20")
    for r in reads(0): a(r)
    adv()
    a("s_waitcnt lgkmcnt(0)")
    for t in range(8):
        a(f"v_mfma_f32_16x16x32_bf16 v[{ACCV+4*t}:{ACCV+4*t+3}], v[{AD}:{AD+3}], v[{SB[0]+4*t}:{SB[0]+4*t+3}], 0")
    pairs = sorted([(i, j) for i in range(8) for j in range(8) if i + j <= 7], key=lambda p: (max(p), p[0]+p[1]))
    def body(s, nxt):
        rs = reads(1 - s) if nxt else []
        k = 0
        for idx, (i, j) in enumerate(pairs):
            if k < len(rs): a(rs[k]); k += 1
            t = i + j
            a(f"v_mfma_f32_16x16x32_bf16 v[{ACCV+4*t}:{ACCV+4*t+3}], v[{SA[s]+4*j}:{SA[s]+4*j+3}], v[{SB[s]+4*i}:{SB[s]+4*i+3}], v[{ACCV+4*t}:{ACCV+4*t+3}]")
        if nxt:
            adv()
            a("s_waitcnt lgkmcnt(0)")
    def qslot(hi, last):
        L = a.newlabel("ql")
        a("s_cmp_lt_u32 s3, 4")
        a(f"s_cbranch_scc{'1' if hi else '0'} {L}")
        if last: qload(3)
        else:
            for row in range(3):
                L2 = a.newlabel("qr")
                a(f"s_cmp_eq_u32 s28, {row}")
                a(f"s_cbranch_scc0 {L2}")
                qload(row)
                a.label(L2)
        a.label(L)
    a("s_mov_b32 s28, 0")
    a.label("L_conv_loop")
    qslot(False, False)
    body(0, True)
    qslot(True, False)
    body(1, True)
    a("s_add_u32 s28, s28, 1")
    a("s_cmp_lt_u32 s28, 3")
    a("s_cbranch_scc1 L_conv_loop")
    qslot(False, True)
    body(0, True)
    qslot(True, True)
    body(1, False)
    stamp(a, 6, diag)
    a("v_lshrrev_b32 v5, 2, v8")
    a("v_xor_b32 v5, v5, v9")
    a("v_lshlrev_b32 v4, 2, v8")
    a("v_add_u32 v4, v4, v5")
    a("v_lshlrev_b32 v4, 3, v4")
    a("s_lshl_b32 s25, s3, 12")
    a(f"s_add_u32 s25, s25, {CV_Y}")
    a("v_add_u32 v4, s25, v4")
    a("v_mov_b32 v14, 0xffff0000")
    for t in range(8):
        r = ACCV + 4*t; u = 64 + 2*(t & 3)
        a(f"v_cvt_pk_bf16_f32 v{u}, v{r}, v{r+1}")
        a(f"v_cvt_pk_bf16_f32 v{u+1}, v{r+2}, v{r+3}")
        a(f"ds_write_b64 v4, v[{u}:{u+1}] offset:{512*t}")
    a("s_waitcnt lgkmcnt(0)")
    a("s_barrier")
    a("v_bfe_u32 v5, v0, 4, 2")
    a("v_xor_b32 v4, v5, v0")
    a("v_lshlrev_b32 v4, 3, v4")
    a(f"v_add_u32 v4, {CV_Y}, v4")
    Y = 64
    for ch in range(8): a(f"ds_read_b64 v[{Y+2*ch}:{Y+2*ch+1}], v4 offset:{4096*ch}")
    srd(a, 16, S_OUT, S_OUT+1, 2048*2304)
    a("v_mul_u32_u24 v5, 9216, v0")
    a("s_lshl_b32 s25, s21, 4")
    a("s_add_u32 s25, s25, 1152")
    a("s_waitcnt vmcnt(0) lgkmcnt(0)")
    for row in range(4):
        d = row >> 1; hi = row & 1
        o = 96 + 4*row
        T = 112
        for k in range(4):
            t = T + 4*(k & 1)
            q = QQ + 4*row + k
            for half in range(2):
                y = Y + 2*(2*k + half) + d
                if hi: a(f"v_and_b32 v{t+half}, v14, v{y}")
                else:  a(f"v_lshlrev_b32 v{t+half}, 16, v{y}")
            a(f"v_lshlrev_b32 v{t+2}, 16, v{q}")
            a(f"v_and_b32 v{t+3}, v14, v{q}")
            a(f"v_pk_mul_f32 v[{t}:{t+1}], v[{t}:{t+1}], v[{t+2}:{t+3}]")
            a(f"v_cvt_pk_bf16_f32 v{o+k}, v{t}, v{t+1}")
        if row == 0: a(f"buffer_store_dwordx4 v[{o}:{o+3}], v5, s[16:19], s25 offen{osc}")
        elif row == 1: a(f"buffer_store_dwordx4 v[{o}:{o+3}], v5, s[16:19], s25 offen offset:2304{osc}")
        else:
            if row == 2: a("s_add_u32 s25, s25, 4608")
            a(f"buffer_store_dwordx4 v[{o}:{o+3}], v5, s[16:19], s25 offen offset:{2304*(row-2)}{osc}")

def conv_role(a, sc, diag, wait_inputs):
    raise NotImplementedError("multi-kernel variant retired")
    conv_post(a, sc, diag, wait_inputs)
```

```python
from common import *

CV_HE, CV_HO, CV_U = 0, 4160, 8320
CV_WAVE = 13056
CV_Y = 8*CV_WAVE
CV_LDS = CV_Y + 8*4096

OCTMAP = [0]
def conv_ids(a):
    if OCTMAP[0] == 0:
        a("s_and_b32 s21, s20, 7")
        a("s_mul_i32 s21, s21, 9")
        a("s_lshr_b32 s22, s20, 3")
        a("s_add_u32 s21, s21, s22")
    elif OCTMAP[0] == 2:
        a("s_mov_b32 s21, s20")
    elif OCTMAP[0] == 3:
        a("s_and_b32 s21, s20, 7")
        a("s_lshr_b32 s22, s20, 3")
        a("s_lshr_b32 s23, s22, 1")
        a("s_lshl_b32 s23, s23, 3")
        a("s_add_u32 s23, s23, s21")
        a("s_lshl_b32 s23, s23, 1")
        a("s_and_b32 s24, s22, 1")
        a("s_add_u32 s23, s23, s24")
        a("s_add_u32 s21, s21, 64")
        a("s_cmp_lt_u32 s22, 8")
        a("s_cselect_b32 s21, s23, s21")
    else:
        a("s_and_b32 s21, s20, 7")
        a("s_lshr_b32 s22, s20, 3")
        a("s_lshl_b32 s23, s21, 3")
        a("s_add_u32 s23, s23, s22")
        a("s_add_u32 s21, s21, 64")
        a("s_cmp_lt_u32 s22, 8")
        a("s_cselect_b32 s21, s23, s21")
    a("s_lshl_b32 s22, s21, 3")
    a("s_add_u32 s22, s22, s3")
    a(f"s_mul_i32 s23, s3, {CV_WAVE}")
    a("s_lshl_b32 s24, s22, 12")

CV_H = 208
HNT = [" nt"]
def conv_hload(a, H, so):
    a("v_lshlrev_b32 v2, 4, v1")
    for j in range(4):
        a(f"buffer_load_dwordx4 v[{H+8*j}:{H+8*j+3}], v2, s[16:19], {so} offen offset:{1024*j}{HNT[0]}")
        a(f"buffer_load_dword v{H+8*j+4}, v2, s[16:19], {so} offen offset:{1024*j+16}{HNT[0]}")

def conv_dload(a):
    a("s_lshr_b32 s25, s22, 1")
    a("s_lshl_b32 s25, s25, 2")
    a(f"s_load_dword s64, s[{S_D}:{S_D+1}], s25")

def conv_copies(a, H, sbase):
    a("v_lshlrev_b32 v2, 4, v1")
    a("v_mov_b32 v4, 0"); a("v_mov_b32 v5, 0"); a("v_mov_b32 v6, 0"); a("v_mov_b32 v7, 0")
    a(f"v_add_u32 v3, {sbase}, v2")
    a("s_mov_b32 exec_lo, -1"); a("s_mov_b32 exec_hi, 0")
    a(f"ds_write_b128 v3, v[4:7] offset:{CV_U+4096}")
    a("s_mov_b64 exec, 3")
    a(f"ds_write_b128 v3, v[4:7] offset:{CV_HE}")
    a(f"ds_write_b128 v3, v[4:7] offset:{CV_HO}")
    a("s_mov_b64 exec, -1")
    for j in range(4):
        h = H + 8*j
        a(f"ds_write_b128 v3, v[{h}:{h+3}] offset:{CV_HE + 32 + 1024*j}")
        t = 96 + 4*(j & 1)
        for i in range(4): a(f"v_alignbit_b32 v{t+i}, v{h+i+1}, v{h+i}, 16")
        a(f"ds_write_b128 v3, v[{t}:{t+3}] offset:{CV_HO + 32 + 1024*j}")
    a(f"v_lshlrev_b32 v4, 16, v{H}")
    a("s_mov_b64 exec, 1")
    a(f"ds_write_b32 v3, v4 offset:{CV_HO + 28}")
    a("s_mov_b64 exec, -1")

def conv_filters_load(a):
    conv_ids(a)
    srd(a, 16, S_H, S_H+1, 576*4096)
    a("s_sub_u32 s26, s24, 16384")
    conv_hload(a, 128, "s26")
    conv_hload(a, 160, "s24")

def conv_filters_build(a):
    a.c("==== conv: Toeplitz copies of the filters ====")
    conv_ids(a)
    a(f"s_sub_u32 s27, s23, {4*CV_WAVE}")
    conv_copies(a, 128, "s27")
    conv_copies(a, 160, "s23")

def conv_filters(a):
    a.c("==== conv: Toeplitz copies of the filters ====")
    conv_ids(a)
    srd(a, 16, S_H, S_H+1, 576*4096)
    a("s_sub_u32 s26, s24, 16384")
    a(f"s_sub_u32 s27, s23, {4*CV_WAVE}")
    conv_hload(a, 128, "s26")
    conv_hload(a, 160, "s24")
    a("s_waitcnt vmcnt(8)")
    conv_copies(a, 128, "s27")
    a("s_waitcnt vmcnt(0)")
    conv_copies(a, 160, "s23")
    a("s_waitcnt lgkmcnt(0)")

def conv_filters_post(a):
    a.c("==== conv: Toeplitz copies of the filters ====")
    a("s_cmp_eq_u32 s3, 7")
    a("s_cbranch_scc1 L_cf_done")
    conv_ids(a)
    srd(a, 16, S_H, S_H+1, 576*4096)
    conv_hload(a, 128, "s24")
    a("s_cmp_eq_u32 s3, 6")
    a("s_cbranch_scc0 L_cf_one")
    a("s_add_u32 s26, s24, 4096")
    a(f"s_add_u32 s27, s23, {CV_WAVE}")
    conv_hload(a, 160, "s26")
    a("s_waitcnt vmcnt(0)")
    conv_copies(a, 160, "s27")
    a.label("L_cf_one")
    a("s_waitcnt vmcnt(0)")
    conv_copies(a, 128, "s23")
    a.label("L_cf_done")

CV_QQ = 224
def conv_qearly(a):
    srd(a, 16, S_Q, S_Q+1, 2048*1152)
    a("v_mul_u32_u24 v4, 4608, v0")
    a("s_lshl_b32 s27, s21, 4")
    for row in range(4):
        a(f"buffer_load_dwordx4 v[{CV_QQ+4*row}:{CV_QQ+4*row+3}], v4, s[16:19], s27 offen offset:{1152*row} nt")

def conv_geom(a, diag):
    a.c("==== conv: geometry ====")
    conv_ids(a)
    a("s_waitcnt lgkmcnt(0)")
    a("v_lshlrev_b32 v2, 4, v1")
    a("v_add_u32 v3, s23, v2")
    a("v_and_b32 v8, 15, v1")
    a("v_lshrrev_b32 v9, 4, v1")
    a("v_lshrrev_b32 v10, 1, v9")
    a("v_and_b32 v11, 1, v9")
    a("v_lshlrev_b32 v12, 4, v10")
    a("v_lshl_add_u32 v12, v11, 3, v12")
    a("v_add_u32 v12, v12, v8")
    a("v_and_b32 v13, 1, v8")
    a("v_add_u32 v12, v12, v13")
    a("v_lshlrev_b32 v12, 1, v12")
    a("v_cmp_eq_u32 vcc, 0, v13")
    a(f"v_mov_b32 v14, {CV_HO}")
    a("v_add_u32 v12, s23, v12")
    a("v_cndmask_b32 v14, 0, v14, vcc")
    a("v_add_u32 v16, v12, v14")
    for t in range(1, 4): a(f"v_add_u32 v{16+t}, {1024*t}, v16")
    a("v_sub_u32 v20, v10, v8")
    a("v_lshlrev_b32 v20, 5, v20")
    a("v_lshl_add_u32 v20, v11, 4, v20")
    a(f"v_add_u32 v20, {CV_U + 32*127 - 3584}, v20")
    a("v_add_u32 v20, s23, v20")
    AD = 24
    a("s_waitcnt lgkmcnt(0)")
    a("s_and_b32 s25, s22, 1")
    a("s_lshl_b32 s25, s25, 4")
    a("s_lshr_b32 s26, s64, s25")
    a("s_and_b32 s26, s26, 0xffff")
    a("v_sub_u32 v4, 15, v8")
    a("v_lshrrev_b32 v5, 3, v4")
    a("v_and_b32 v4, 7, v4")
    a("v_and_b32 v6, 1, v4")
    a("v_lshlrev_b32 v6, 4, v6")
    a("v_mov_b32 v7, s26")
    a("v_lshlrev_b32 v7, v6, v7")
    a("v_lshrrev_b32 v4, 1, v4")
    a("v_cmp_eq_u32 vcc, v5, v9")
    a("s_nop 1")
    a("v_cndmask_b32 v7, 0, v7, vcc")
    for j in range(4):
        a(f"v_cmp_eq_u32 vcc, {j}, v4")
        a("s_nop 1")
        a(f"v_cndmask_b32 v{AD+j}, 0, v7, vcc")

def conv_post(a, sc, diag, wait_inputs, osc=''):
    a.c("==== conv (post): long causal convolution via Toeplitz MFMA ====")
    AD = 24
    srd(a, 12, S_WS, S_WS+1, WS_SRD_BYTES)
    wait_inputs()
    UU = 64
    for j in range(4):
        a(f"buffer_load_dwordx4 v[{UU+4*j}:{UU+4*j+3}], v2, s[12:15], s24 offen offset:{1024*j}{sc}")
    a("s_waitcnt vmcnt(0)")
    for j in range(4):
        a(f"ds_write_b128 v3, v[{UU+4*j}:{UU+4*j+3}] offset:{CV_U + 1024*j}")
    QQ = 224
    srd(a, 16, S_Q, S_Q+1, 2048*1152)
    a("v_mul_u32_u24 v4, 4608, v0")
    a("s_lshl_b32 s27, s21, 4")
    a("v_mov_b32 v21, v4")
    def qload(row):
        a(f"buffer_load_dwordx4 v[{QQ+4*row}:{QQ+4*row+3}], v21, s[16:19], s27 offen offset:{1152*row} nt")
    a("s_waitcnt lgkmcnt(0)")
    stamp(a, 5, diag)
    ACCV = 32
    SA = [64, 128]; SB = [96, 160]
    def reads(s):
        out = []
        for j in range(8):
            b = 16 + (j >> 1); o = 128*(j & 1); r = SA[s] + 4*j
            out.append(f"ds_read2_b32 v[{r}:{r+1}], v{b} offset0:{o} offset1:{o+1}")
            out.append(f"ds_read2_b32 v[{r+2}:{r+3}], v{b} offset0:{o+2} offset1:{o+3}")
        B = [f"ds_read_b128 v[{SB[s]+4*i}:{SB[s]+4*i+3}], v20 offset:{512*(7-i)}" for i in range(8)]
        seq = []
        for k in range(8):
            seq += [B[k], out[2*k], out[2*k+1]]
        return seq
    def adv():
        for t in range(4): a(f"v_add_u32 v{16+t}, 64, v{16+t}")
        a("v_add_u32 v20, 64, v20")
    for r in reads(0): a(r)
    adv()
    a("s_waitcnt lgkmcnt(0)")
    for t in range(8):
        a(f"v_mfma_f32_16x16x32_bf16 v[{ACCV+4*t}:{ACCV+4*t+3}], v[{AD}:{AD+3}], v[{SB[0]+4*t}:{SB[0]+4*t+3}], 0")
    pairs = sorted([(i, j) for i in range(8) for j in range(8) if i + j <= 7], key=lambda p: (max(p), p[0]+p[1]))
    def body(s, nxt):
        rs = reads(1 - s) if nxt else []
        k = 0
        for idx, (i, j) in enumerate(pairs):
            if k < len(rs): a(rs[k]); k += 1
            t = i + j
            a(f"v_mfma_f32_16x16x32_bf16 v[{ACCV+4*t}:{ACCV+4*t+3}], v[{SA[s]+4*j}:{SA[s]+4*j+3}], v[{SB[s]+4*i}:{SB[s]+4*i+3}], v[{ACCV+4*t}:{ACCV+4*t+3}]")
        if nxt:
            adv()
            a("s_waitcnt lgkmcnt(0)")
    def qslot(hi, last):
        L = a.newlabel("ql")
        a("s_cmp_lt_u32 s3, 4")
        a(f"s_cbranch_scc{'1' if hi else '0'} {L}")
        if last: qload(3)
        else:
            for row in range(3):
                L2 = a.newlabel("qr")
                a(f"s_cmp_eq_u32 s28, {row}")
                a(f"s_cbranch_scc0 {L2}")
                qload(row)
                a.label(L2)
        a.label(L)
    a("s_mov_b32 s28, 0")
    a.label("L_conv_loop")
    qslot(False, False)
    body(0, True)
    qslot(True, False)
    body(1, True)
    a("s_add_u32 s28, s28, 1")
    a("s_cmp_lt_u32 s28, 3")
    a("s_cbranch_scc1 L_conv_loop")
    qslot(False, True)
    body(0, True)
    qslot(True, True)
    body(1, False)
    stamp(a, 6, diag)
    a("v_lshrrev_b32 v5, 2, v8")
    a("v_xor_b32 v5, v5, v9")
    a("v_lshlrev_b32 v4, 2, v8")
    a("v_add_u32 v4, v4, v5")
    a("v_lshlrev_b32 v4, 3, v4")
    a("s_lshl_b32 s25, s3, 12")
    a(f"s_add_u32 s25, s25, {CV_Y}")
    a("v_add_u32 v4, s25, v4")
    a("v_mov_b32 v14, 0xffff0000")
    for t in range(8):
        r = ACCV + 4*t; u = 64 + 2*(t & 3)
        a(f"v_cvt_pk_bf16_f32 v{u}, v{r}, v{r+1}")
        a(f"v_cvt_pk_bf16_f32 v{u+1}, v{r+2}, v{r+3}")
        a(f"ds_write_b64 v4, v[{u}:{u+1}] offset:{512*t}")
    a("s_waitcnt lgkmcnt(0)")
    a("s_barrier")
    a("v_bfe_u32 v5, v0, 4, 2")
    a("v_xor_b32 v4, v5, v0")
    a("v_lshlrev_b32 v4, 3, v4")
    a(f"v_add_u32 v4, {CV_Y}, v4")
    Y = 64
    for ch in range(8): a(f"ds_read_b64 v[{Y+2*ch}:{Y+2*ch+1}], v4 offset:{4096*ch}")
    srd(a, 16, S_OUT, S_OUT+1, 2048*2304)
    a("v_mul_u32_u24 v5, 9216, v0")
    a("s_lshl_b32 s25, s21, 4")
    a("s_add_u32 s25, s25, 1152")
    a("s_waitcnt vmcnt(0) lgkmcnt(0)")
    for row in range(4):
        d = row >> 1; hi = row & 1
        o = 96 + 4*row
        T = 112
        for k in range(4):
            t = T + 4*(k & 1)
            q = QQ + 4*row + k
            for half in range(2):
                y = Y + 2*(2*k + half) + d
                if hi: a(f"v_and_b32 v{t+half}, v14, v{y}")
                else:  a(f"v_lshlrev_b32 v{t+half}, 16, v{y}")
            a(f"v_lshlrev_b32 v{t+2}, 16, v{q}")
            a(f"v_and_b32 v{t+3}, v14, v{q}")
            a(f"v_pk_mul_f32 v[{t}:{t+1}], v[{t}:{t+1}], v[{t+2}:{t+3}]")
            a(f"v_cvt_pk_bf16_f32 v{o+k}, v{t}, v{t+1}")
        if row == 0: a(f"buffer_store_dwordx4 v[{o}:{o+3}], v5, s[16:19], s25 offen{osc}")
        elif row == 1: a(f"buffer_store_dwordx4 v[{o}:{o+3}], v5, s[16:19], s25 offen offset:2304{osc}")
        else:
            if row == 2: a("s_add_u32 s25, s25, 4608")
            a(f"buffer_store_dwordx4 v[{o}:{o+3}], v5, s[16:19], s25 offen offset:{2304*(row-2)}{osc}")

def conv_role(a, sc, diag, wait_inputs):
    raise NotImplementedError("multi-kernel variant retired")
    conv_post(a, sc, diag, wait_inputs)
```
